```python
import torch

def _softmax(x, axis=-1):
    return torch.softmax(x, dim=axis)
def _gelu(x):
    return torch.nn.functional.gelu(x, approximate="tanh")
def _silu(x):
    return torch.nn.functional.silu(x)
def _sigmoid(x):
    return torch.sigmoid(x)
def _layernorm(x, axis=-1, eps=1e-5):
    m = x.mean(dim=axis, keepdim=True)
    v = x.var(dim=axis, keepdim=True, unbiased=False)
    return (x - m) / torch.sqrt(v + eps)
def _scatter_add(tgt, idx, src, axis=0):
    return tgt.clone().index_add_(axis, idx, src)
def _segment_sum(src, seg, n):
    out = torch.zeros((n,) + src.shape[1:], dtype=src.dtype)
    return out.index_add_(0, seg, src)
def _pad(x, pw):
    flat = tuple(v for pair in reversed(pw) for v in pair)
    return torch.nn.functional.pad(x, flat)

kernel_name = 'parallel_sum__mha_block__glu_gated_geglu__prompt'

def setup_inputs():

    _w = (lambda a: (lambda t: t.to(torch.bfloat16) if t.is_floating_point() else t)(torch.as_tensor(a)))
    def _A_setup():
        B, S, D, H = 1, 2048, 448, 16
        return {
            "x": _w((lambda *s: torch.randn(*s, dtype=torch.bfloat16) * 0.05)(B, S, D)),
            "wqkv": _w((lambda *s: torch.randn(*s, dtype=torch.bfloat16) * 0.05)(D, 3 * D)),
            "wo": _w((lambda *s: torch.randn(*s, dtype=torch.bfloat16) * 0.05)(D, D)),
        }
    _A_in = _A_setup()

    def _B_setup():
        B, S, Dm, Df = 1, 2048, 448, 1792
        return {
            "x": _w((lambda *s: torch.randn(*s, dtype=torch.bfloat16) * 0.05)(B, S, Dm)),
            "w_gate": _w((lambda *s: torch.randn(*s, dtype=torch.bfloat16) * 0.4)(Dm, Df) * (Dm ** -0.5)),
            "w_up": _w((lambda *s: torch.randn(*s, dtype=torch.bfloat16) * 0.4)(Dm, Df) * (Dm ** -0.5)),
            "w_down": _w((lambda *s: torch.randn(*s, dtype=torch.bfloat16) * 0.4)(Df, Dm) * (Df ** -0.5)),
        }
    _B_in = _B_setup()

    return {
        "A_x": _A_in["x"],
        "A_wqkv": _A_in["wqkv"],
        "A_wo": _A_in["wo"],
        "B_x": _B_in["x"],
        "B_w_gate": _B_in["w_gate"],
        "B_w_up": _B_in["w_up"],
        "B_w_down": _B_in["w_down"],
    }

def reference(A_x, A_wqkv, A_wo, B_x, B_w_gate, B_w_up, B_w_down):
    def _A_ref(x, wqkv, wo):
        B, S, D = x.shape
        H = 16
        Dh = D // H
        qkv = (lambda x, *d: x.permute(*d))((x @ wqkv).reshape(B, S, 3, H, Dh), 2, 0, 3, 1, 4)
        q, k, v = qkv[0], qkv[1], qkv[2]
        scores = torch.einsum("bhqd,bhkd->bhqk", q, k) * (Dh ** -0.5)
        p = _softmax(scores, axis=-1)
        o = torch.einsum("bhqk,bhkd->bhqd", p, v)
        return (lambda x, *d: x.permute(*d))(o, 0, 2, 1, 3).reshape(B, S, D) @ wo

    def _B_ref(x, w_gate, w_up, w_down):
        g = torch.einsum("bsd,df->bsf", x, w_gate)
        u = torch.einsum("bsd,df->bsf", x, w_up)
        h = _gelu(g) * u
        return torch.einsum("bsf,fd->bsd", h, w_down)

    x = A_x
    xn = _layernorm(x, axis=-1)
    return x + _A_ref(xn, A_wqkv, A_wo) + _B_ref(xn, B_w_gate, B_w_up, B_w_down)
```

```python
import re, itertools

REG_RE = re.compile(r'^(-|\|)?(?:abs\()?([vsa])(?:(\d+)|\[(\d+):(\d+)\])\)?\|?$')

TRANS = ('v_exp_f32', 'v_log_f32', 'v_rcp_f32', 'v_rsq_f32', 'v_sqrt_f32', 'v_sin_f32', 'v_cos_f32',
         'v_exp_f16', 'v_rcp_f16', 'v_rcp_iflag_f32')


def split_ops(s):
    out, depth, cur = [], 0, ''
    for ch in s:
        if ch in '[(':
            depth += 1
        elif ch in '])':
            depth -= 1
        if ch == ',' and depth == 0:
            out.append(cur.strip()); cur = ''
        else:
            cur += ch
    if cur.strip():
        out.append(cur.strip())
    return out


def regs_of(tok):
    tok = tok.strip()
    if tok in ('vcc',): return {('s', 106), ('s', 107)}
    if tok == 'vcc_lo': return {('s', 106)}
    if tok == 'vcc_hi': return {('s', 107)}
    if tok == 'exec': return {('s', 126), ('s', 127)}
    if tok == 'm0': return {('s', 124)}
    m = REG_RE.match(tok)
    if not m:
        return set()
    k = m.group(2)
    if m.group(3) is not None:
        return {(k, int(m.group(3)))}
    return {(k, i) for i in range(int(m.group(4)), int(m.group(5)) + 1)}


class Ins:
    _n = 0

    def __init__(self, text, tag=None, need=None):
        Ins._n += 1
        self.id = Ins._n
        self.text = text.strip()
        self.tag = tag
        self.need = need
        self.nops = 0
        self.w_lgkm = None
        self.w_vm = None
        self.parse()

    def parse(self):
        t = self.text.split(';')[0].strip()
        parts = t.split(None, 1)
        self.op = op = parts[0]
        rest = parts[1] if len(parts) > 1 else ''
        ops = split_ops(rest)
        mods = ''
        if ops:
            last = ops[-1].split(None, 1)
            ops[-1] = last[0]
            mods = last[1] if len(last) > 1 else ''
        self.ops, self.mods = ops, mods
        R = [regs_of(o) for o in ops]
        allr = set().union(*R) if R else set()
        d, u = set(), set()
        self.kind = 'other'
        self.srcc = set()
        if op == 'WAITVM':
            self.kind = 'waitvm'
        elif op.startswith('v_mfma'):
            self.kind = 'mfma'
            d = R[0]; u = R[1] | R[2] | R[3]
            self.srcc = R[3]; self.srcab = R[1] | R[2]
            self.passes = 8 if '32x32' in op else 4
        elif op.startswith('v_'):
            self.kind = 'valu'
            if op.startswith('v_cmpx'):
                raise ValueError('cmpx unsupported')
            if op.startswith(('v_permlane', 'v_swap')):
                d = allr; u = allr
            elif op.startswith(('v_fmac', 'v_dot2c', 'v_pk_fmac')):
                d = R[0]; u = allr
            elif op.startswith(('v_add_co', 'v_addc_co', 'v_sub_co', 'v_subb_co', 'v_subrev_co', 'v_mad_u64', 'v_div_scale')):
                d = R[0] | R[1]; u = set().union(*R[2:])
            elif op == 'v_nop':
                pass
            else:
                d = R[0]; u = set().union(*R[1:]) if len(R) > 1 else set()
                if 'dpp' in op or 'row_' in mods or 'quad_perm' in mods or 'UNUSED_PRESERVE' in mods or op.startswith('v_writelane'):
                    u = u | R[0]
            self.dpp = ('dpp' in op) or ('row_' in mods) or ('quad_perm' in mods) or ('wave_' in mods)
        elif op.startswith('ds_'):
            self.kind = 'ds'
            if op.startswith(('ds_read', 'ds_bpermute', 'ds_permute', 'ds_swizzle')) or '_rtn' in op:
                d = R[0]; u = set().union(*R[1:])
            else:
                u = allr
        elif op.startswith(('buffer_', 'global_', 'flat_')):
            self.kind = 'vmem'
            self.lds = bool(re.search(r'\blds\b', mods)) or '_lds_' in op
            if op in ('buffer_wbl2', 'buffer_inv'):
                pass
            elif self.lds:
                u = allr | {('s', 124)}
            elif '_load' in op:
                d = R[0]; u = set().union(*R[1:])
            elif 'atomic' in op and re.search(r'\bsc0\b', mods):
                d = R[0]; u = allr
            else:
                u = allr
            self.widestore = ('store' in op and (op.endswith('x4') or op.endswith('x3')))
            if self.widestore:
                self.sdata = R[0] if op.startswith('buffer') else R[1]
        elif op.startswith('s_'):
            self.kind = 'salu'
            if op.startswith(('s_load', 's_buffer_load', 's_memtime', 's_memrealtime')):
                self.kind = 'smem'
                d = R[0]; u = set().union(*R[1:]) if len(R) > 1 else set()
            elif op.startswith(('s_cmp', 's_waitcnt', 's_barrier', 's_branch', 's_cbranch', 's_nop', 's_setprio',
                                's_endpgm', 's_sleep', 's_bitcmp', 's_setreg', 's_sethalt')):
                u = allr
            elif 'saveexec' in op:
                d = R[0] | regs_of('exec'); u = set().union(*R[1:]) | regs_of('exec')
            else:
                d = R[0]; u = set().union(*R[1:]) if len(R) > 1 else set()
                if op.startswith(('s_addk', 's_mulk', 's_cmov', 's_bitset')):
                    u = u | R[0]
        self.defs, self.uses = d, u

    def states(self):
        if self.op == 's_nop':
            return int(self.ops[0], 0) + 1
        if self.kind == 'waitvm':
            return 1 if self.w_vm is not None else 0
        return 1


class Label:
    def __init__(self, name): self.name = name


class Raw:
    def __init__(self, text): self.text = text


class Loop:
    def __init__(self, var, trips): self.var, self.trips, self.body = var, trips, []


class If:
    def __init__(self, name, n): self.name, self.alts = name, [[] for _ in range(n)]


class Prog:
    def __init__(self):
        self.root = []
        self.stack = [self.root]

    def i(self, text, tag=None):
        last = None
        for line in text.strip().split('\n'):
            line = line.strip()
            if not line or line.startswith(';'):
                continue
            last = Ins(line, tag=tag)
            self.stack[-1].append(last)
        return last

    def waitvm(self, need):
        ins = Ins('WAITVM', need=need)
        self.stack[-1].append(ins)

    def label(self, name): self.stack[-1].append(Label(name))
    def raw(self, text): self.stack[-1].append(Raw(text))

    class _Ctx:
        def __init__(self, p, lst): self.p, self.lst = p, lst
        def __enter__(self): self.p.stack.append(self.lst)
        def __exit__(self, *a): self.p.stack.pop()

    def loop(self, var, trips):
        l = Loop(var, trips); self.stack[-1].append(l)
        return Prog._Ctx(self, l.body)

    def cond(self, name, n):
        c = If(name, n); self.stack[-1].append(c)
        return [Prog._Ctx(self, a) for a in c.alts]

    def _ifs(self, nodes, acc):
        for n in nodes:
            if isinstance(n, Loop): self._ifs(n.body, acc)
            elif isinstance(n, If):
                acc[n.name] = len(n.alts)
                for a in n.alts: self._ifs(a, acc)

    def _trace(self, nodes, env, choice, out):
        for n in nodes:
            if isinstance(n, Ins): out.append((n, dict(env)))
            elif isinstance(n, Loop):
                for it in range(n.trips):
                    e = dict(env); e[n.var] = it
                    self._trace(n.body, e, choice, out)
            elif isinstance(n, If):
                self._trace(n.alts[choice[n.name]], env, choice, out)

    def traces(self):
        acc = {}
        self._ifs(self.root, acc)
        names = list(acc)
        for combo in itertools.product(*[range(acc[k]) for k in names]):
            out = []
            self._trace(self.root, {}, dict(zip(names, combo)), out)
            yield out

    def _waits(self, tr):
        changed = False
        lg, vm = [], []
        smem_out = False
        for ins, env in tr:
            touched = ins.defs | ins.uses
            need_l = None
            for idx in range(len(lg) - 1, -1, -1):
                if lg[idx][1] & touched:
                    need_l = len(lg) - 1 - idx
                    if any(x[0].kind == 'smem' for x in lg):
                        need_l = 0
                    break
            need_v = None
            for idx in range(len(vm) - 1, -1, -1):
                hit = bool(vm[idx][1] & touched)
                if ins.kind == 'waitvm' and vm[idx][2] is not None and ins.need(vm[idx][2], env):
                    hit = True
                if hit:
                    need_v = len(vm) - 1 - idx
                    break
            if need_l is not None:
                need_l = min(need_l, 15)
                if ins.w_lgkm is None or need_l < ins.w_lgkm:
                    ins.w_lgkm = need_l; changed = True
            if need_v is not None:
                need_v = min(need_v, 63)
                if ins.w_vm is None or need_v < ins.w_vm:
                    ins.w_vm = need_v; changed = True
            wl, wv = ins.w_lgkm, ins.w_vm
            if ins.op == 's_waitcnt':
                m = re.search(r'lgkmcnt\((\d+)\)', ins.text)
                if m: wl = int(m.group(1)) if wl is None else min(wl, int(m.group(1)))
                m = re.search(r'vmcnt\((\d+)\)', ins.text)
                if m: wv = int(m.group(1)) if wv is None else min(wv, int(m.group(1)))
            if wl is not None:
                if any(x[0].kind == 'smem' for x in lg) and wl > 0:
                    pass
                else:
                    lg = lg[len(lg) - wl:] if wl < len(lg) else lg
                    if wl == 0: lg = []
            if wv is not None:
                vm = vm[len(vm) - wv:] if 0 < wv < len(vm) else ([] if wv == 0 else vm)
            if ins.kind in ('ds', 'smem'):
                lg.append((ins, ins.defs, None))
            elif ins.kind == 'vmem':
                tag = ins.tag(env) if callable(ins.tag) else ins.tag
                vm.append((ins, ins.defs, tag))
                assert len(vm) <= 63, "vmcnt overflow at " + ins.text
        return changed

    @staticmethod
    def _req(p, c):
        r = 0
        vd = {x for x in p.defs if x[0] in 'va'}
        sd = {x for x in p.defs if x[0] == 's'}
        if p.kind == 'mfma':
            big = p.passes == 8
            if c.kind == 'mfma':
                if vd & c.srcab: r = max(r, 12 if big else 8)
                if vd & c.srcc:
                    if not (c.srcc == vd and c.passes == p.passes): r = max(r, 10 if big else 6)
                elif vd & c.defs:
                    r = max(r, 12 if big else 8)
            elif c.kind in ('valu', 'ds', 'vmem'):
                if vd & (c.uses | c.defs): r = max(r, 12 if big else 8)
                if c.kind == 'valu' and (p.srcc & c.defs): r = max(r, 7 if big else 3)
        elif p.kind == 'valu':
            dot = p.op.startswith('v_dot')
            if c.kind == 'mfma' and vd & c.uses: r = max(r, 3 if dot else 2)
            if c.kind == 'valu':
                if p.op in TRANS and c.op not in TRANS and vd & c.uses: r = max(r, 1)
                if p.op in TRANS and vd & (c.uses | c.defs): r = max(r, 1)
                if sd & c.uses:
                    r = max(r, 4 if c.op.startswith(('v_readlane', 'v_writelane')) else 2)
                if vd & c.uses:
                    if c.op.startswith(('v_readlane', 'v_readfirstlane')): r = max(r, 1)
                    if c.op.startswith('v_permlane') or c.dpp: r = max(r, 2)
                    if 'sdwa' in p.op or 'op_sel' in p.mods: r = max(r, 1)
                if dot and vd & (c.uses | c.defs):
                    same_c = c.op == p.op and len(c.ops) >= 3 and (regs_of(c.ops[-1]) == vd or c.op.startswith('v_dot2c')) \
                        and not (vd & (regs_of(c.ops[1]) | regs_of(c.ops[2])))
                    if not same_c: r = max(r, 3)
            if dot and c.kind in ('ds', 'vmem') and vd & c.uses: r = max(r, 3)
            if c.kind == 'vmem' and sd & c.uses: r = max(r, 5)
            if c.kind in ('salu', 'smem') and sd & c.uses: r = max(r, 1)
        elif p.kind == 'salu':
            if ('s', 124) in sd and c.kind == 'vmem' and c.lds: r = max(r, 1)
            if (('s', 126) in sd or ('s', 127) in sd) and c.kind == 'valu' and c.dpp: r = max(r, 0)
        elif p.kind == 'vmem':
            if p.widestore and (p.sdata & c.defs): r = max(r, 2 if c.kind in ('valu', 'mfma') else 1)
        return r

    def _hazards(self, tr):
        changed = False
        hist = []
        pos = 0
        for ins, env in tr:
            pre = ins.nops + (1 if (ins.kind != 'waitvm' and (ins.w_lgkm is not None or ins.w_vm is not None)) else 0)
            here = pos + pre
            need = 0
            for p, ppos in hist[-24:]:
                r = self._req(p, ins)
                if r:
                    dist = here - ppos - 1
                    if dist < r: need = max(need, r - dist)
            if need:
                ins.nops += need; here += need; changed = True
            hist.append((ins, here + ins.states() - 1 if ins.op == 's_nop' else here))
            pos = here + ins.states()
        return changed

    def finalize(self):
        trs = list(self.traces())
        for _ in range(10):
            ch = False
            for tr in trs: ch |= self._waits(tr)
            if not ch: break
        for _ in range(10):
            ch = False
            for tr in trs: ch |= self._hazards(tr)
            if not ch: break

    def _emit(self, nodes, out):
        for n in nodes:
            if isinstance(n, Ins):
                k = n.nops
                while k > 0:
                    q = min(k, 16); out.append('  s_nop %d' % (q - 1)); k -= q
                w = []
                if n.w_vm is not None: w.append('vmcnt(%d)' % n.w_vm)
                if n.w_lgkm is not None: w.append('lgkmcnt(%d)' % n.w_lgkm)
                if w: out.append('  s_waitcnt ' + ' '.join(w))
                if n.kind != 'waitvm': out.append('  ' + n.text)
            elif isinstance(n, Label): out.append(n.name + ':')
            elif isinstance(n, Raw): out.append(n.text)
            elif isinstance(n, Loop): self._emit(n.body, out)
            elif isinstance(n, If):
                for a in n.alts: self._emit(a, out)

    def text(self):
        out = []
        self._emit(self.root, out)
        return '\n'.join(out) + '\n'

    def max_vgpr(self):
        mx = 0
        for tr in self.traces():
            for ins, _ in tr:
                for k, r in ins.defs | ins.uses:
                    if k == 'v': mx = max(mx, r)
        return mx + 1


def interleave(main, side, every=1, start=0):
    out = []
    n = len(main)
    k = 0
    for gi, g in enumerate(main):
        out.extend(g)
        if gi >= start:
            want = (len(side) * (gi - start + 1)) // max(1, (n - start))
            while k < want:
                out.append(side[k]); k += 1
    out.extend(side[k:])
    return out


def kernel_text(name, body, nvgpr, nsgpr=102, acc=None):
    acc = acc or min(256, (nvgpr + 3) // 4 * 4)
    code = """.text
.globl {n}
.p2align 8
.type {n},@function
{n}:
{body}
""".format(n=name, body=body)
    desc = """.section .rodata,"a"
.p2align 6
.amdhsa_kernel {n}
  .amdhsa_next_free_vgpr {v}
  .amdhsa_next_free_sgpr {s}
  .amdhsa_accum_offset {a}
  .amdhsa_group_segment_fixed_size 0
  .amdhsa_kernarg_size 80
  .amdhsa_user_sgpr_count 2
  .amdhsa_user_sgpr_kernarg_segment_ptr 1
  .amdhsa_system_sgpr_workgroup_id_x 1
.end_amdhsa_kernel
""".format(n=name, v=nvgpr, s=nsgpr, a=acc)
    return code, desc
```

```python
import math, struct
from asmgen import *

def f32(x): return struct.unpack('<I', struct.pack('<f', x))[0]

WS_QKV = 0
WS_ACT = 8 << 20
WS_SIZE = 32 << 20

QSCALE = (28 ** -0.5) * math.log2(math.e)
GC1 = -2.0 * math.log2(math.e) * math.sqrt(2.0 / math.pi)
GC2 = GC1 * 0.044715

def srd(p, d, ptr, size):
    p.i(f"s_mov_b32 s{d}, s{ptr}\ns_mov_b32 s{d+1}, s{ptr+1}\ns_mov_b32 s{d+2}, {size}\ns_mov_b32 s{d+3}, 0x00020000")

def gen_k1(name="k1_kernel"):
    p = Prog()
    I = p.i
    S_X, S_C0, S_C1, S_C2, S_WS, S_G, S_U = 24, 28, 32, 36, 40, 44, 48
    sW, sRB, sCBI, sROT, sXC, sG0, sU1, sU2 = 52, 53, 54, 55, 56, 57, 58, 59
    sST1, sCOL0, sCOL1, sCOL2, sCOLP2 = 60, 61, 62, 63, 64
    sROW, sT0, sT1, sW3K, sW2K, sXROW, sKB = 65, 66, 67, 68, 69, 70, 71
    sONES, sSELLO, sSELHI, sTT, sCH = 72, 73, 74, 75, 76
    sE0, sE1, sE2, sE3 = 77, 78, 79, 80
    vLANE, vXOFF, vQ, vG, vU, vC1, vC2 = 0, 1, 2, 3, 4, 5, 6
    vLB = [7, 8, 9]
    vLB2 = [10, 11]
    vA = [12, 13, 14]
    vL16 = 15
    XN = 16
    ACC1, ACC2, AF = 128, 176, 208
    T = 232
    vF, vC1P, vC2P, vIF2, vKEEP, vHI, vSW0, vSW1 = 248, 249, 250, 251, 252, 253, 254, 255
    XIMG = 114688
    SLOTS = [XIMG, XIMG + 24576, 0, 24576, 49152, 73728]
    STATS = 98304

    I("s_cmp_ge_u32 s2, 256\ns_cbranch_scc1 L_k1_end")
    I("s_load_dwordx16 s[4:19], s[0:1], 0\ns_load_dwordx4 s[20:23], s[0:1], 64")
    I(f"v_lshrrev_b32 v1, 6, v0")
    I(f"v_readfirstlane_b32 s{sW}, v1")
    I(f"v_and_b32 v{vLANE}, 63, v0")
    I(f"s_and_b32 s{sT0}, s2, 7\ns_lshr_b32 s{sT1}, s2, 3")
    I(f"s_lshr_b32 s{sXC}, s{sT0}, 1\ns_and_b32 s{sT0}, s{sT0}, 1\ns_lshl_b32 s{sT0}, s{sT0}, 3")
    I(f"s_and_b32 s{sRB}, s{sT1}, 7\ns_add_u32 s{sRB}, s{sRB}, s{sT0}\ns_lshr_b32 s{sCBI}, s{sT1}, 3")
    I(f"s_lshl_b32 s{sROT}, s{sCBI}, 1\ns_add_u32 s{sROT}, s{sROT}, s{sRB}")
    I(f"s_sub_u32 s{sT0}, s{sROT}, 14\ns_cmp_ge_u32 s{sROT}, 14\ns_cselect_b32 s{sROT}, s{sT0}, s{sROT}")
    I(f"s_sub_u32 s{sT0}, s{sROT}, 7\ns_cmp_ge_u32 s{sROT}, 7\ns_cselect_b32 s{sROT}, s{sT0}, s{sROT}")
    I(f"v_lshrrev_b32 v{T}, 3, v{vLANE}\nv_and_b32 v{T+1}, 7, v{vLANE}")
    I(f"v_mul_u32_u24 v{vXOFF}, 896, v{T}\nv_lshl_add_u32 v{vXOFF}, v{T+1}, 4, v{vXOFF}")
    I(f"s_lshl_b32 s{sXROW}, s{sRB}, 3\ns_add_u32 s{sXROW}, s{sXROW}, s{sW}\ns_mul_i32 s{sXROW}, s{sXROW}, {16*896}")
    I(f"s_lshl_b32 s{sKB}, s{sROT}, 7")
    I("s_waitcnt lgkmcnt(0)")
    srd(p, S_X, 4, 2048 * 896)
    XR = lambda g, v: XN + (g * 7 + v) * 4
    xs = [81 + v for v in range(7)]
    for v in range(7):
        I(f"s_add_u32 s{xs[v]}, s{sXROW}, s{sKB}")
        I(f"buffer_load_dwordx4 v[{XR(0,v)}:{XR(0,v)+3}], v{vXOFF}, s[{S_X}:{S_X+3}], s{xs[v]} offen")
        if v < 6:
            I(f"s_add_u32 s{sKB}, s{sKB}, 128\ns_cmp_eq_u32 s{sKB}, 896\ns_cselect_b32 s{sKB}, 0, s{sKB}")
    I(f"v_add_u32 v{T+2}, {8*896}, v{vXOFF}")
    for v in range(7):
        I(f"buffer_load_dwordx4 v[{XR(1,v)}:{XR(1,v)+3}], v{T+2}, s[{S_X}:{S_X+3}], s{xs[v]} offen")
    srd(p, S_C0, 6, 448 * 2688)
    srd(p, S_G, 12, 448 * 3584)
    srd(p, S_U, 14, 448 * 3584)
    srd(p, S_WS, 22, WS_SIZE)
    I(f"v_lshlrev_b32 v{T+3}, 1, v{T}\nv_and_b32 v{T+3}, 4, v{T+3}\nv_xor_b32 v{T+3}, v{T+3}, v{T+1}")
    I(f"v_lshlrev_b32 v{T+3}, 4, v{T+3}")
    I(f"v_mul_u32_u24 v{vQ}, 2688, v{T}\nv_add_u32 v{vQ}, v{vQ}, v{T+3}")
    I(f"v_mul_u32_u24 v{vG}, 3584, v{T}\nv_add_u32 v{vG}, v{vG}, v{T+3}")
    I(f"v_xor_b32 v{vU}, 32, v{vG}")
    I(f"s_lshr_b32 s{sCH}, s{sW}, 2\ns_and_b32 s{sTT}, s{sW}, 3")
    I(f"s_mul_i32 s{sW3K}, s{sW}, 3072\ns_lshl_b32 s{sW2K}, s{sW}, 11")
    vHH, vMH, vR4, vC4, vRS = T + 4, T + 5, T + 6, T + 7, T + 8
    I(f"v_lshrrev_b32 v{vHH}, 5, v{vLANE}\nv_bfe_u32 v{vMH}, v{vLANE}, 4, 1\nv_bfe_u32 v{vR4}, v{vLANE}, 2, 2\nv_and_b32 v{vC4}, 3, v{vLANE}")
    I(f"v_bfe_u32 v{vRS}, v{vLANE}, 3, 1\nv_lshlrev_b32 v{vRS}, 6, v{vRS}")

    def ffn_base(dst, NU, ug, tau_sgpr_x32):
        I(f"v_lshl_add_u32 v{T+9}, v{vC4}, 3, s{tau_sgpr_x32}")
        I(f"v_lshl_add_u32 v{T+10}, v{vMH}, 5, v{vRS}\nv_xor_b32 v{T+9}, v{T+9}, v{T+10}")
        I(f"v_lshl_add_u32 v{T+9}, v{vR4}, 7, v{T+9}")
        I(f"v_mul_u32_u24 v{T+10}, {NU*1024}, v{vHH}\nv_add_u32 v{T+9}, v{T+9}, v{T+10}")
        I(f"v_lshl_add_u32 v{T+9}, v{vMH}, 10, v{T+9}")
        I(f"v_add_u32 v{dst}, {ug*1024}, v{T+9}")

    def qkv_base(dst, o_sgpr):
        I(f"v_lshl_add_u32 v{T+9}, v{vC4}, 3, s{o_sgpr}\nv_lshl_add_u32 v{T+9}, v{vMH}, 5, v{T+9}")
        I(f"v_lshrrev_b32 v{T+10}, 7, v{T+9}\nv_and_b32 v{T+9}, 127, v{T+9}\nv_xor_b32 v{T+9}, v{T+9}, v{vRS}")
        I(f"v_lshl_add_u32 v{T+9}, v{T+10}, 10, v{T+9}\nv_lshl_add_u32 v{T+9}, v{vR4}, 7, v{T+9}")
        I(f"v_mul_u32_u24 v{T+10}, 3072, v{vHH}\nv_add_u32 v{dst}, v{T+9}, v{T+10}")

    I(f"s_cmp_eq_u32 s{sCBI}, 3\ns_cbranch_scc1 L_k1_setB")
    altA, altB = p.cond("type", 2)
    with altA:
        I(f"s_mul_i32 s{sG0}, s{sXC}, 3\ns_add_u32 s{sG0}, s{sG0}, s{sCBI}\ns_lshl_b32 s{sG0}, s{sG0}, 1")
        I(f"s_mov_b32 s{sU1}, s{sG0}\ns_add_u32 s{sU2}, s{sG0}, 1")
        srd(p, S_C1, 12, 448 * 3584); srd(p, S_C2, 14, 448 * 3584)
        I(f"s_movk_i32 s{sST1}, 3584\ns_mul_i32 s{sCOL0}, s{sG0}, 56\ns_lshl_b32 s{sCOL1}, s{sU1}, 7\ns_mov_b32 s{sCOL2}, s{sCOL1}")
        I(f"v_mov_b32 v{vC1}, v{vG}\nv_mov_b32 v{vC2}, v{vU}")
        I(f"s_mul_i32 s{sT0}, s{sCH}, 56")
        qkv_base(vLB[0], sT0)
        I(f"s_lshl_b32 s{sT0}, s{sCH}, 6")
        ffn_base(vLB[1], 3, 1, sT0)
        I(f"v_xor_b32 v{vLB[2]}, 32, v{vLB[1]}")
        I("s_branch L_k1_setdone")
    with altB:
        p.label("L_k1_setB")
        I(f"s_mul_i32 s{sG0}, s{sXC}, 6\ns_add_u32 s{sG0}, s{sG0}, 24")
        I(f"s_add_u32 s{sU2}, s{sXC}, 24\ns_mov_b32 s{sU1}, 0")
        srd(p, S_C1, 6, 448 * 2688); srd(p, S_C2, 6, 448 * 2688)
        I(f"s_movk_i32 s{sST1}, 2688\ns_mul_i32 s{sCOL0}, s{sG0}, 56\ns_add_u32 s{sCOL1}, s{sCOL0}, 128\ns_add_u32 s{sCOL2}, s{sCOL0}, 256")
        I(f"v_mov_b32 v{vC1}, v{vQ}\nv_mov_b32 v{vC2}, v{vQ}")
        for k in range(3):
            I(f"s_mul_i32 s{sT0}, s{sCH}, 168\ns_add_u32 s{sT0}, s{sT0}, {56*k}")
            qkv_base(vLB[k], sT0)
    p.label("L_k1_setdone")
    I(f"s_lshl_b32 s{sCOLP2}, s{sU2}, 7")
    I(f"s_lshl_b32 s{sROW}, s{sROT}, 6\ns_lshl_b32 s{sT0}, s{sW}, 3\ns_add_u32 s{sROW}, s{sROW}, s{sT0}")

    def dma_stage(n):
        slot = SLOTS[n % 6]
        groups = []
        if n < 7:
            chans = [(S_C0, vQ, None, 2688, sCOL0), (S_C1, vC1, sST1, None, sCOL1), (S_C2, vC2, sST1, None, sCOL2)]
            wk = sW3K
        else:
            chans = [(S_G, vG, None, 3584, sCOLP2), (S_U, vU, None, 3584, sCOLP2)]
            wk = sW2K
        for u, (sr, vo, sst, cst, scol) in enumerate(chans):
            g = []
            st = f"s{sst}" if sst else str(cst)
            g.append((f"s_mul_i32 s{sT1}, s{sROW}, {st}", None))
            g.append((f"s_add_u32 m0, s{wk}, {slot + u*1024}", None))
            g.append((f"s_add_u32 s{sT1}, s{sT1}, s{scol}", None))
            g.append((f"buffer_load_dwordx4 v{vo}, s[{sr}:{sr+3}], s{sT1} offen lds", ('W', n)))
            if u == len(chans) - 1:
                g.append((f"s_add_u32 s{sROW}, s{sROW}, 64", None))
                g.append((f"s_sub_u32 s{sT1}, s{sROW}, 448", None))
                g.append((f"s_cmp_ge_u32 s{sROW}, 448", None))
                g.append((f"s_cselect_b32 s{sROW}, s{sT1}, s{sROW}", None))
            groups.append(g)
        return groups

    def emit(items):
        for it in items:
            if isinstance(it, tuple): I(it[0], tag=it[1])
            elif isinstance(it, list): emit(it)
            elif callable(it): it()
            else: I(it)

    for n in (0, 1):
        for g in dma_stage(n): emit(g)

    I(f"s_lshl_b32 s{sT0}, s{sCH}, 6")
    ffn_base(vLB2[0], 2, 0, sT0)
    I(f"v_xor_b32 v{vLB2[1]}, 32, v{vLB2[0]}")
    I(f"v_lshlrev_b32 v{vL16}, 4, v{vLANE}")
    I(f"v_sub_u32 v{vHI}, 0, v{vHH}\nv_not_b32 v{vKEEP}, v{vHI}")
    I(f"v_lshlrev_b32 v{vSW0}, 6, v{vHH}\nv_or_b32 v{vSW1}, 128, v{vSW0}")
    I(f"s_mov_b32 s{sONES}, 0x3f803f80\ns_mov_b32 s{sSELLO}, 0x00003f80\ns_mov_b32 s{sSELHI}, 0x3f800000")
    vWB = [T + 9, T + 10]
    I(f"s_mul_i32 s{sT0}, s{sW}, {16*896}")
    I(f"v_lshrrev_b32 v{T+11}, 1, v{T}\nv_xor_b32 v{T+11}, v{T+11}, v{T+1}")
    I(f"v_mul_u32_u24 v{T+12}, 896, v{T}\nv_add_u32 v{T+12}, s{sT0}, v{T+12}")
    I(f"v_lshl_add_u32 v{vWB[0]}, v{T+11}, 4, v{T+12}")
    I(f"v_xor_b32 v{vWB[1]}, 64, v{vWB[0]}\nv_add_u32 v{vWB[1]}, {8*896}, v{vWB[1]}")
    vVAR = [T + 11, T + 12]
    a0, a1, lo, hi, nmu = ACC1, ACC1 + 1, ACC1 + 2, ACC1 + 6, ACC1 + 10
    I(f"s_mov_b32 s{sE0}, {f32(-1.0/448)}\ns_mov_b32 s{sE1}, {f32(1.0/448)}\ns_mov_b32 s{sE2}, {f32(1e-5)}")
    def red8(r):
        I(f"v_add_f32_dpp v{r}, v{r}, v{r} quad_perm:[1,0,3,2] row_mask:0xf bank_mask:0xf")
        I(f"v_add_f32_dpp v{r}, v{r}, v{r} quad_perm:[2,3,0,1] row_mask:0xf bank_mask:0xf")
        I(f"v_add_f32_dpp v{r}, v{r}, v{r} row_half_mirror row_mask:0xf bank_mask:0xf")
    for g in range(2):
        regs = [XR(g, 0) + k for k in range(28)]
        for k, r in enumerate(regs):
            acc = (a0, a1)[k & 1]
            I(f"v_dot2_f32_bf16 v{acc}, v{r}, s{sONES}, {'0' if k < 2 else 'v%d' % acc}")
        I(f"v_add_f32 v{a0}, v{a0}, v{a1}")
        red8(a0)
        I(f"v_mul_f32 v{nmu}, s{sE0}, v{a0}")
        for v in range(7):
            b = XR(g, v)
            for k in range(4):
                I(f"v_dot2_f32_bf16 v{lo+k}, v{b+k}, s{sSELLO}, v{nmu}")
                I(f"v_dot2_f32_bf16 v{hi+k}, v{b+k}, s{sSELHI}, v{nmu}")
            for k in range(4):
                I(f"v_cvt_pk_bf16_f32 v{b+k}, v{lo+k}, v{hi+k}")
            I(f"ds_write_b128 v{vWB[g]}, v[{b}:{b+3}] offset:{v*128}")
            for k in range(4):
                acc = (a0, a1)[k & 1]
                I(f"v_dot2_f32_bf16 v{acc}, v{b+k}, v{b+k}, {'0' if (v == 0 and k < 2) else 'v%d' % acc}")
        I(f"v_add_f32 v{a0}, v{a0}, v{a1}")
        red8(a0)
        I(f"v_mul_f32 v{a0}, s{sE1}, v{a0}\nv_add_f32 v{vVAR[g]}, s{sE2}, v{a0}")
    fa = ACC1 + 12
    I(f"v_and_b32 v{fa+4}, 31, v{vLANE}\nv_bfe_u32 v{fa+5}, v{vLANE}, 1, 3\nv_xor_b32 v{fa+5}, v{fa+5}, v{vHH}")
    I(f"s_mul_i32 s{sT0}, s{sTT}, {32*896}")
    I(f"v_mul_u32_u24 v{fa}, 896, v{fa+4}\nv_add_u32 v{fa}, s{sT0}, v{fa}\nv_lshl_add_u32 v{fa}, v{fa+5}, 4, v{fa}")
    for k in range(1, 4): I(f"v_xor_b32 v{fa+k}, {k*32}, v{fa}")
    vSTW, vSTR = T + 13, T + 14
    I(f"s_lshl_b32 s{sT0}, s{sW}, 6\nv_lshl_add_u32 v{vSTW}, v{T}, 2, s{sT0}\nv_add_u32 v{vSTW}, {STATS}, v{vSTW}")
    I(f"s_lshl_b32 s{sT0}, s{sTT}, 7\nv_lshl_add_u32 v{vSTR}, v{fa+4}, 2, s{sT0}\nv_add_u32 v{vSTR}, {STATS}, v{vSTR}")
    I("s_waitcnt lgkmcnt(0)\ns_barrier")
    for s in range(28):
        I(f"ds_read_b128 v[{XN+4*s}:{XN+4*s+3}], v{fa + (s & 3)} offset:{(s >> 2) * 128}")
    I(f"s_lshl_b32 s{sT0}, s{sRB}, 2\ns_add_u32 s{sTT}, s{sTT}, s{sT0}")
    p.waitvm(lambda tag, env: tag == ('W', 0))
    I("s_waitcnt lgkmcnt(0)\ns_barrier")
    I(f"ds_write_b32 v{vSTW}, v{vVAR[0]}\nds_write_b32 v{vSTW}, v{vVAR[1]} offset:32")

    def reads(n, s, ntile, NU, buf):
        out = []
        for t in range(ntile):
            for jh in range(2):
                d = AF + buf * 12 + t * 4 + jh * 2
                out.append(f"ds_read_b64_tr_b16 v[{d}:{d+1}], v{vA[t]} offset:{(2*s)*NU*1024 + jh*512}")
        return out

    def setaddr(n):
        lbs = vLB if n < 7 else vLB2
        return [f"v_add_u32 v{vA[t]}, {SLOTS[n % 6]}, v{lb}" for t, lb in enumerate(lbs)]

    def run_pass(n0, ntile, NU, acc, first_pending, side):
        groups = []
        pending = list(first_pending)
        for v in range(7):
            n = n0 + v
            for s in range(4):
                ks = v * 4 + s
                buf = ks & 1
                pre = []
                if s < 3:
                    nxt = reads(n, s + 1, ntile, NU, buf ^ 1)
                elif n + 1 < 14:
                    nn = n + 1
                    pre.append(lambda nn=nn: p.waitvm(lambda tag, env: tag == ('W', nn)))
                    pre.append("s_barrier")
                    pre += setaddr(nn)
                    nt2, NU2 = (3, 3) if nn < 7 else (2, 2)
                    nxt = reads(nn, 0, nt2, NU2, buf ^ 1)
                    if n >= 1 and n + 5 < 14:
                        pending += dma_stage(n + 5)
                else:
                    nxt = []
                per = (len(nxt) + ntile - 1) // ntile
                for t in range(ntile):
                    g = []
                    if t == 0: g += pre
                    g += nxt[t * per:(t + 1) * per]
                    a = AF + buf * 12 + t * 4
                    c = acc + t * 16
                    cin = '0' if ks == 0 else f"v[{c}:{c+15}]"
                    g.append(f"v_mfma_f32_32x32x16_bf16 v[{c}:{c+15}], v[{a}:{a+3}], v[{XN+4*ks}:{XN+4*ks+3}], {cin}")
                    if pending and t == ntile - 1:
                        g += pending.pop(0)
                    groups.append(g)
        return groups, pending

    emit(setaddr(0))
    emit(reads(0, 0, 3, 3, 0))
    pend = []
    for n in (2, 3, 4, 5): pend += dma_stage(n)
    for g in pend[:6]: emit(g)
    pend = pend[6:]
    g1, pend = run_pass(0, 3, 3, ACC1, pend, None)
    g1[20].append(f"ds_read_b32 v{vIF2}, v{vSTR}")
    g1[30] += [f"v_rsq_f32 v{vF}, v{vIF2}",
               f"s_mov_b32 s{sE0}, {f32(GC1)}", f"s_mov_b32 s{sE1}, {f32(GC2)}",
               f"v_mul_f32 v{vC1P}, s{sE0}, v{vF}", f"v_mul_f32 v{vC2P}, v{vF}, v{vF}",
               f"v_mul_f32 v{vC2P}, v{vC2P}, v{vF}", f"v_mul_f32 v{vC2P}, s{sE1}, v{vC2P}"]
    for g in g1: emit(g)

    def ffn_epi(c, kstep_sgpr_expr, tmp):
        o = list(kstep_sgpr_expr)
        o += [f"s_mul_i32 s{sE3}, s{sTT}, 144", f"s_add_u32 s{sE3}, s{sE3}, s{sE2}", f"s_lshl_b32 s{sE3}, s{sE3}, 10",
              f"s_add_u32 s{sE3}, s{sE3}, {WS_ACT}"]
        o = [o]
        for h in range(2):
            idx = [4 * h + k for k in range(4)]
            t = [tmp + k for k in range(4)]
            for k, j in enumerate(idx): o.append(f"v_mul_f32 v{t[k]}, v{c+j}, v{c+j}")
            for k, j in enumerate(idx): o.append(f"v_fma_f32 v{t[k]}, v{t[k]}, v{vC2P}, v{vC1P}")
            for k, j in enumerate(idx): o.append(f"v_mul_f32 v{t[k]}, v{t[k]}, v{c+j}")
            for k, j in enumerate(idx): o.append(f"v_exp_f32 v{t[k]}, v{t[k]}")
            for k, j in enumerate(idx): o.append(f"v_mul_f32 v{c+j}, v{c+j}, v{c+8+j}")
            for k, j in enumerate(idx): o.append(f"v_fma_f32 v{t[k]}, v{t[k]}, v{vIF2}, v{vIF2}")
            for k, j in enumerate(idx): o.append(f"v_rcp_f32 v{t[k]}, v{t[k]}")
            for k, j in enumerate(idx): o.append(f"v_mul_f32 v{c+j}, v{c+j}, v{t[k]}")
        for k in range(4): o.append(f"v_cvt_pk_bf16_f32 v{c+8+k}, v{c+2*k}, v{c+2*k+1}")
        o.append(f"buffer_store_dwordx4 v[{c+8}:{c+11}], v{vL16}, s[{S_WS}:{S_WS+3}], s{sE3} offen")
        return o

    def qkv_epi(c, g_expr, tmp):
        o = list(g_expr)
        sWH, sHD = sE0, sE1
        o += [f"s_lshr_b32 s{sWH}, s{sE2}, 4", f"s_and_b32 s{sHD}, s{sE2}, 15",
              f"s_lshl_b32 s{sHD}, s{sHD}, 6", f"s_add_u32 s{sHD}, s{sHD}, s{sTT}", f"s_mul_i32 s{sHD}, s{sHD}, 3",
              f"s_add_u32 s{sHD}, s{sHD}, s{sWH}", f"s_lshl_b32 s{sE3}, s{sHD}, 11",
              f"s_cmp_eq_u32 s{sWH}, 0",
              f"s_cselect_b32 s{sE2}, {f32(QSCALE)}, 1.0",
              f"v_mul_f32 v{tmp}, s{sE2}, v{vF}",
              f"s_cselect_b32 s{sE2}, 0, 0x3f803f80",
              f"v_and_b32 v{tmp+1}, s{sE2}, v{vHI}",
              f"s_cmp_eq_u32 s{sWH}, 2",
              f"s_cselect_b32 s{sE2}, -1, 0",
              f"v_and_b32 v{tmp+2}, s{sE2}, v{vSW0}", f"v_and_b32 v{tmp+3}, s{sE2}, v{vSW1}",
              f"v_xor_b32 v{tmp+2}, v{tmp+2}, v{vL16}", f"v_xor_b32 v{tmp+3}, v{tmp+3}, v{vL16}"]
        o = [o]
        for j in range(16): o.append(f"v_mul_f32 v{c+j}, v{c+j}, v{tmp}")
        for k in range(8): o.append(f"v_cvt_pk_bf16_f32 v{c+k}, v{c+2*k}, v{c+2*k+1}")
        for k in (6, 7): o.append(f"v_and_or_b32 v{c+k}, v{c+k}, v{vKEEP}, v{tmp+1}")
        o.append(f"buffer_store_dwordx4 v[{c}:{c+3}], v{tmp+2}, s[{S_WS}:{S_WS+3}], s{sE3} offen")
        o.append(f"buffer_store_dwordx4 v[{c+4}:{c+7}], v{tmp+3}, s[{S_WS}:{S_WS+3}], s{sE3} offen offset:1024")
        return o

    I(f"s_cmp_eq_u32 s{sCBI}, 3\ns_cbranch_scc1 L_k1_p2B")
    altA, altB = p.cond("type", 2)
    for ty, alt in enumerate((altA, altB)):
        with alt:
            if ty == 1: p.label("L_k1_p2B")
            g2, left = run_pass(7, 2, 2, ACC2, pend, None)
            assert not left
            if ty == 0:
                side = qkv_epi(ACC1, [f"s_add_u32 s{sE2}, s{sG0}, s{sCH}"], T)
                for k in range(2):
                    side += ffn_epi(ACC1 + 16 * (k + 1),
                                    [f"s_lshl_b32 s{sE2}, s{sU1}, 1", f"s_add_u32 s{sE2}, s{sE2}, s{sCH}", f"s_lshl_b32 s{sE2}, s{sE2}, 1",
                                     f"s_add_u32 s{sE2}, s{sE2}, {k}"], T + 4)
            else:
                side = []
                for k in range(3):
                    side += qkv_epi(ACC1 + 16 * k, [f"s_mul_i32 s{sE2}, s{sCH}, 3", f"s_add_u32 s{sE2}, s{sE2}, s{sG0}",
                                                    f"s_add_u32 s{sE2}, s{sE2}, {k}"], T + 4 * (k & 1))
            side_groups = side
            merged = interleave(g2, side_groups, start=2)
            emit(merged)
            if ty == 0: I("s_branch L_k1_fin")
    p.label("L_k1_fin")
    for k in range(2):
        emit(ffn_epi(ACC2 + 16 * k,
                     [f"s_lshl_b32 s{sE2}, s{sU2}, 1", f"s_add_u32 s{sE2}, s{sE2}, s{sCH}", f"s_lshl_b32 s{sE2}, s{sE2}, 1",
                      f"s_add_u32 s{sE2}, s{sE2}, {k}"], T + 4 * k))
    p.label("L_k1_end")
    I("s_endpgm")
    p.finalize()
    return p

if __name__ == "__main__":
    p = gen_k1()
    t = p.text()
    print(t)
```

```python
from asmgen import *
from k1 import f32, srd, WS_QKV, WS_ACT, WS_SIZE

def gen_k2(name="k2_kernel"):
    p = Prog()
    I = p.i
    S_WS = 24
    sW, sHEAD, sQB, sQT, sKH, sTT, sT0, sT1, sST, sM0B, sHB, sCNT, sFLAG, sTHR, sREC = range(28, 43)
    vLANE, vL16, vK, vV0, vV1, vHI, vKEEP, vT0, vT1, vT2, vT3, vM = range(0, 12)
    Q = 12
    KF = 20
    VF = 28
    PF = 44
    SB = 52
    O = 84
    TMP = 100
    FLAGS = 131072
    I("s_cmp_ge_u32 s2, 256\ns_cbranch_scc1 L_k2_end")
    I("s_load_dwordx2 s[22:23], s[0:1], 72")
    I(f"v_lshrrev_b32 v1, 6, v0\nv_readfirstlane_b32 s{sW}, v1\nv_and_b32 v{vLANE}, 63, v0")
    I(f"s_and_b32 s{sT0}, s2, 7\ns_lshr_b32 s{sT1}, s2, 3")
    I(f"s_lshr_b32 s{sHEAD}, s{sT1}, 4\ns_lshl_b32 s{sT0}, s{sT0}, 1\ns_add_u32 s{sHEAD}, s{sHEAD}, s{sT0}\ns_and_b32 s{sQB}, s{sT1}, 15")
    I(f"s_and_b32 s{sQT}, s{sW}, 3\ns_lshr_b32 s{sKH}, s{sW}, 2")
    I(f"s_lshl_b32 s{sTT}, s{sQB}, 2\ns_add_u32 s{sTT}, s{sTT}, s{sQT}")
    I(f"s_mul_i32 s{sHB}, s{sHEAD}, {64*6144}")
    I(f"s_mul_i32 s{sREC}, s{sTT}, 6144\ns_add_u32 s{sREC}, s{sREC}, s{sHB}")
    I(f"v_lshlrev_b32 v{vL16}, 4, v{vLANE}")
    I(f"v_lshrrev_b32 v{vT0}, 5, v{vLANE}\nv_sub_u32 v{vHI}, 0, v{vT0}\nv_not_b32 v{vKEEP}, v{vHI}")
    I(f"s_mov_b32 s{sFLAG}, 0\ns_mov_b32 s{sTHR}, {f32(2.0**30)}")
    I(f"s_lshl_b32 s{sM0B}, s{sW}, 12")
    I("s_waitcnt lgkmcnt(0)")
    srd(p, S_WS, 22, WS_SIZE)
    R = f"s[{S_WS}:{S_WS+3}]"
    I(f"buffer_load_dwordx4 v[{Q}:{Q+3}], v{vL16}, {R}, s{sREC} offen")
    I(f"buffer_load_dwordx4 v[{Q+4}:{Q+7}], v{vL16}, {R}, s{sREC} offen offset:1024")
    I(f"buffer_load_dwordx4 v[{KF}:{KF+3}], v{vL16}, {R}, s{sREC} offen offset:2048")
    I(f"buffer_load_dwordx4 v[{KF+4}:{KF+7}], v{vL16}, {R}, s{sREC} offen offset:3072")

    def dma(tagf, slot_expr):
        o = [(f"s_lshl_b32 s{sT0}, s{sKH}, 3", None), (f"s_add_u32 s{sT0}, s{sT0}, s{sST}", None), (f"s_lshl_b32 s{sT0}, s{sT0}, 2", None),
             (f"s_add_u32 s{sT0}, s{sT0}, s{sQT}", None), (f"s_mul_i32 s{sT0}, s{sT0}, 6144", None), (f"s_add_u32 s{sT0}, s{sT0}, s{sHB}", None),
             (f"s_add_u32 s{sT0}, s{sT0}, 2048", None), (slot_expr, None),
             (f"s_add_u32 s{sST}, s{sST}, 1", None), (f"s_and_b32 s{sST}, s{sST}, 7", None)]
        d = [(f"buffer_load_dwordx4 v{vL16}, {R}, s{sT0} offen offset:{k*1024} lds", tagf) for k in range(4)]
        return o, d

    def emit(items):
        for it in items:
            if isinstance(it, tuple): I(it[0], tag=it[1])
            elif isinstance(it, list): emit(it)
            elif callable(it): it()
            else: I(it)

    def set_pads():
        I(f"v_sub_f32 v{vT0}, 0, v{vM}")
        I(f"v_and_b32 v{vT1}, 0xffff0000, v{vT0}\nv_sub_f32 v{vT0}, v{vT0}, v{vT1}")
        I(f"v_and_b32 v{vT2}, 0xffff0000, v{vT0}\nv_sub_f32 v{vT0}, v{vT0}, v{vT2}")
        I(f"v_lshrrev_b32 v{vT1}, 16, v{vT1}\nv_or_b32 v{vT1}, v{vT1}, v{vT2}\nv_lshrrev_b32 v{vT0}, 16, v{vT0}")
        I(f"v_and_b32 v{vT1}, v{vT1}, v{vHI}\nv_and_b32 v{vT0}, v{vT0}, v{vHI}")
        I(f"v_and_or_b32 v{Q+6}, v{Q+6}, v{vKEEP}, v{vT1}\nv_and_or_b32 v{Q+7}, v{Q+7}, v{vKEEP}, v{vT0}")

    def smfma(sb, half):
        c = SB + 16 * sb
        cin = '0' if half == 0 else f"v[{c}:{c+15}]"
        return f"v_mfma_f32_32x32x16_bf16 v[{c}:{c+15}], v[{KF+4*half}:{KF+4*half+3}], v[{Q+4*half}:{Q+4*half+3}], {cin}"

    def max16(c, first):
        o = []
        if first:
            o.append(f"v_max3_f32 v{vM}, v{c}, v{c+1}, v{c+2}")
            o.append(f"v_max_f32 v{vM}, v{vM}, v{c+15}")
            ks = range(3, 15, 2)
        else:
            ks = range(0, 16, 2)
        for k in ks: o.append(f"v_max3_f32 v{vM}, v{vM}, v{c+k}, v{c+k+1}")
        return o

    def cross_max():
        I(f"v_mov_b32 v{vT0}, v{vM}\nv_permlane32_swap_b32 v{vT0}, v{vM}\nv_max_f32 v{vM}, v{vM}, v{vT0}")

    p.label("L_k2_restart")
    I(f"s_and_b32 s{sST}, s{sQB}, 7")
    for n in range(3):
        o, d = dma(('KV', n), f"s_add_u32 m0, s{sM0B}, {n*32768}")
        emit(o); emit(d)
    I(f"s_lshl_b32 s{sT0}, s{sKH}, 14\nv_add_u32 v{vK}, s{sT0}, v{vL16}")
    I(f"v_bfe_u32 v{vT0}, v{vLANE}, 4, 1")
    I(f"v_and_b32 v{vT1}, 1, v{vLANE}")
    I(f"v_lshrrev_b32 v{vT2}, 5, v{vLANE}\nv_xor_b32 v{vT2}, v{vT2}, v{vT1}")
    I(f"v_mul_u32_u24 v{vV0}, {1024+128}, v{vT0}")
    I(f"v_lshl_add_u32 v{vV0}, v{vT1}, 9, v{vV0}\nv_lshl_add_u32 v{vV0}, v{vT2}, 6, v{vV0}")
    I(f"v_bfe_u32 v{vT1}, v{vLANE}, 2, 2\nv_lshl_add_u32 v{vV0}, v{vT1}, 4, v{vV0}")
    I(f"v_bfe_u32 v{vT1}, v{vLANE}, 1, 1\nv_lshl_add_u32 v{vV0}, v{vT1}, 3, v{vV0}")
    I(f"s_add_u32 s{sT0}, s{sT0}, 2048\nv_add_u32 v{vV0}, s{sT0}, v{vV0}\nv_xor_b32 v{vV1}, 128, v{vV0}")
    for k in range(16): I(f"v_mov_b32 v{O+k}, 0")
    I(f"s_cmp_lg_u32 s{sFLAG}, 0\ns_cbranch_scc1 L_k2_hasmax")
    a0, a1 = p.cond("hasmax", 2)
    with a0:
        I(smfma(0, 0)); I(smfma(0, 1))
        emit(max16(SB, True))
        cross_max()
        set_pads()
    p.label("L_k2_hasmax")

    def kread(i): return [f"ds_read_b128 v[{KF+4*h}:{KF+4*h+3}], v{vK} offset:{i*4096 + h*1024}" for h in range(2)]
    def vread(i, buf):
        b = VF + 8 * buf
        return [f"ds_read_b64_tr_b16 v[{b+4*t+2*jh}:{b+4*t+2*jh+1}], v{(vV0, vV1)[jh]} offset:{i*4096 + t*256}" for t in range(2) for jh in range(2)]
    def pv(buf, t):
        b = VF + 8 * buf
        return f"v_mfma_f32_32x32x16_bf16 v[{O}:{O+15}], v[{b+4*t}:{b+4*t+3}], v[{PF+4*t}:{PF+4*t+3}], v[{O}:{O+15}]"
    adv = lambda r: [f"v_add_u32 v{r}, 32768, v{r}", f"v_and_b32 v{r}, 0x1ffff, v{r}"]

    p.waitvm(lambda tag, env: tag == ('KV', 0))
    I("s_barrier")
    emit(kread(0)); emit(vread(0, 0))
    I(smfma(0, 0)); I(smfma(0, 1))
    emit(kread(1))
    for k in range(8): I(f"v_mov_b32 v{PF+k}, 0")
    for k in range(4): I(f"v_mov_b32 v{VF+12+k}, 0")

    def stage(var, base, with_dma):
        dm = []
        for i in range(4):
            sb = i & 1
            c = SB + 16 * sb
            ex = lambda a, b: [f"v_exp_f32 v{c+k}, v{c+k}" for k in range(a, b)]
            cv = lambda a, b: [f"v_cvt_pk_bf16_f32 v{PF+k}, v{c+2*k}, v{c+2*k+1}" for k in range(a, b)]
            I(pv(sb ^ 1, 1))
            if i == 3: emit(adv(vV0) + adv(vV1))
            emit(vread((i + 1) & 3, sb ^ 1))
            emit(ex(0, 4))
            I(smfma(sb ^ 1, 0))
            emit(ex(4, 8))
            I(smfma(sb ^ 1, 1))
            if i == 2:
                p.waitvm(lambda tag, env: tag[1] <= env[var] + base + 1)
                I("s_barrier")
                emit(adv(vK))
                if with_dma:
                    o, dm = dma(lambda env: ('KV', env[var] + base + 3), f"s_add_u32 m0, s{sM0B}, s{sCNT}")
                    emit(o)
                    I(f"s_add_u32 s{sCNT}, s{sCNT}, 32768\ns_and_b32 s{sCNT}, s{sCNT}, 0x1ffff")
            emit(kread((i + 2) & 3))
            emit(cv(0, 4))
            if dm: emit([dm.pop(0)])
            emit(ex(8, 12))
            I(pv(sb, 0))
            emit(ex(12, 16))
            if dm: emit([dm.pop(0)])
            emit(cv(4, 8))

    I(f"s_mov_b32 s{sCNT}, {3*32768}\ns_mov_b32 s{sT1}, 5")
    p.raw(".p2align 3")
    p.label("L_k2_loop1")
    with p.loop('a', 5):
        stage('a', 0, True)
        I(f"s_sub_u32 s{sT1}, s{sT1}, 1\ns_cmp_lg_u32 s{sT1}, 0\ns_cbranch_scc1 L_k2_loop1")
    I(f"s_mov_b32 s{sT1}, 3")
    p.raw(".p2align 3")
    p.label("L_k2_loop2")
    with p.loop('b', 3):
        stage('b', 5, False)
        I(f"s_sub_u32 s{sT1}, s{sT1}, 1\ns_cmp_lg_u32 s{sT1}, 0\ns_cbranch_scc1 L_k2_loop2")
    I(pv(1, 1))
    I("s_waitcnt lgkmcnt(0)\ns_barrier")
    I(f"v_and_b32 v{vT0}, v{O+12}, v{vHI}")
    I(f"v_cmp_ngt_f32 vcc, s{sTHR}, v{vT0}")
    I(f"s_cmp_lg_u64 vcc, 0\ns_cselect_b32 s{sT0}, 1, 0")
    I(f"v_mov_b32 v{vT1}, s{sT0}\ns_lshl_b32 s{sT0}, s{sW}, 2\ns_add_u32 s{sT0}, s{sT0}, {FLAGS}\nv_mov_b32 v{vT2}, s{sT0}")
    I(f"ds_write_b32 v{vT2}, v{vT1}")
    I(f"s_lshl_b32 s{sT0}, s{sQT}, 12\nv_add_u32 v{vT3}, s{sT0}, v{vL16}")
    I(f"s_cmp_eq_u32 s{sKH}, 0\ns_cbranch_scc1 L_k2_nowr")
    a0, a1 = p.cond("kh", 2)
    with a1:
        for k in range(4): I(f"ds_write_b128 v{vT3}, v[{O+4*k}:{O+4*k+3}] offset:{k*1024}")
    p.label("L_k2_nowr")
    I("s_waitcnt lgkmcnt(0)\ns_barrier")
    I(f"v_and_b32 v{vT1}, 7, v{vLANE}\nv_lshlrev_b32 v{vT1}, 2, v{vT1}\nv_add_u32 v{vT1}, {FLAGS}, v{vT1}")
    I(f"ds_read_b32 v{vT2}, v{vT1}")
    for k in range(4): I(f"ds_read_b128 v[{TMP+4*k}:{TMP+4*k+3}], v{vT3} offset:{k*1024}")
    I(f"v_cmp_ne_u32 vcc, 0, v{vT2}")
    I(f"s_cmp_lg_u64 vcc, 0\ns_cselect_b32 s{sT0}, 1, 0\ns_andn2_b32 s{sT0}, s{sT0}, s{sFLAG}")
    I(f"s_cmp_lg_u32 s{sT0}, 0\ns_cbranch_scc1 L_k2_fallback")
    I(f"s_cmp_lg_u32 s{sKH}, 0\ns_cbranch_scc1 L_k2_end")
    for k in range(16): I(f"v_add_f32 v{O+k}, v{O+k}, v{TMP+k}")
    I(f"v_mov_b32 v{vT0}, v{O+12}\nv_mov_b32 v{vT1}, v{O+12}\nv_permlane32_swap_b32 v{vT0}, v{vT1}")
    I(f"v_rcp_f32 v{vT1}, v{vT1}")
    for k in range(16): I(f"v_mul_f32 v{O+k}, v{O+k}, v{vT1}")
    for k in range(8): I(f"v_cvt_pk_bf16_f32 v{TMP+k}, v{O+2*k}, v{O+2*k+1}")
    for k in (6, 7): I(f"v_and_b32 v{TMP+k}, v{TMP+k}, v{vKEEP}")
    I(f"s_mul_i32 s{sT0}, s{sTT}, 144\ns_lshl_b32 s{sT1}, s{sHEAD}, 1\ns_add_u32 s{sT0}, s{sT0}, s{sT1}\ns_add_u32 s{sT0}, s{sT0}, 112")
    I(f"s_lshl_b32 s{sT0}, s{sT0}, 10\ns_add_u32 s{sT0}, s{sT0}, {WS_ACT}")
    I(f"buffer_store_dwordx4 v[{TMP}:{TMP+3}], v{vL16}, {R}, s{sT0} offen")
    I(f"buffer_store_dwordx4 v[{TMP+4}:{TMP+7}], v{vL16}, {R}, s{sT0} offen offset:1024")
    p.label("L_k2_end")
    I("s_endpgm")
    p.label("L_k2_fallback")
    I("s_waitcnt vmcnt(0) lgkmcnt(0)\ns_nop 15\ns_barrier")
    I(f"s_mov_b32 s{sFLAG}, 1")
    I(f"v_and_b32 v{Q+6}, v{Q+6}, v{vKEEP}\nv_and_b32 v{Q+7}, v{Q+7}, v{vKEEP}")
    I(f"v_mov_b32 v{vM}, 0xff800000")
    I(f"s_add_u32 s{sT0}, s{sHB}, 2048\ns_mov_b32 s{sT1}, 64")
    p.label("L_k2_fbloop")
    with p.loop('f', 2):
        I(f"buffer_load_dwordx4 v[{KF}:{KF+3}], v{vL16}, {R}, s{sT0} offen")
        I(f"buffer_load_dwordx4 v[{KF+4}:{KF+7}], v{vL16}, {R}, s{sT0} offen offset:1024")
        I(smfma(0, 0)); I(smfma(0, 1))
        emit(max16(SB, False))
        I(f"s_add_u32 s{sT0}, s{sT0}, 6144\ns_sub_u32 s{sT1}, s{sT1}, 1\ns_cmp_lg_u32 s{sT1}, 0\ns_cbranch_scc1 L_k2_fbloop")
    cross_max()
    set_pads()
    I("s_nop 7\ns_branch L_k2_restart")
    p.finalize()
    return p

if __name__ == "__main__":
    p = gen_k2()
    print(p.text()); print(p.max_vgpr())
```

```python
from asmgen import *
from k1 import f32, srd, WS_QKV, WS_ACT, WS_SIZE

def gen_k3(name="k3_kernel"):
    p = Prog()
    I = p.i
    S_WS, S_W, S_X, S_O = 24, 28, 32, 36
    sW, sRB, sCB, sT0, sT1, sT2, sST, sM0B, sSLOT, sAB, sCNT, sKH, sCOL = range(40, 53)
    vLANE, vL16, vWO, vA, vB, vXO, vT0, vT1, vT2 = range(0, 9)
    AFR, BFR, ACC, XR, TMP = 12, 28, 44, 60, 68
    NST = 18
    I("s_cmp_ge_u32 s2, 224\ns_cbranch_scc1 L_k3_end")
    I("s_load_dwordx16 s[4:19], s[0:1], 0\ns_load_dwordx2 s[22:23], s[0:1], 72")
    I(f"v_lshrrev_b32 v1, 6, v0\nv_readfirstlane_b32 s{sW}, v1\nv_and_b32 v{vLANE}, 63, v0")
    I(f"s_and_b32 s{sT0}, s2, 7\ns_lshr_b32 s{sT1}, s2, 3\ns_lshl_b32 s{sT0}, s{sT0}, 2\ns_and_b32 s{sRB}, s{sT1}, 3\ns_add_u32 s{sRB}, s{sRB}, s{sT0}")
    I(f"s_lshr_b32 s{sCB}, s{sT1}, 2\ns_lshl_b32 s{sCOL}, s{sCB}, 7")
    I(f"s_and_b32 s{sT0}, s{sT1}, 3\ns_lshl_b32 s{sT0}, s{sT0}, 2\ns_lshl_b32 s{sST}, s{sCB}, 1\ns_add_u32 s{sST}, s{sST}, s{sT0}")
    I(f"s_sub_u32 s{sT0}, s{sST}, 18\ns_cmp_ge_u32 s{sST}, 18\ns_cselect_b32 s{sST}, s{sT0}, s{sST}")
    I(f"s_lshr_b32 s{sKH}, s{sW}, 2\ns_mov_b32 s53, {448*896}")
    I(f"v_lshlrev_b32 v{vL16}, 4, v{vLANE}")
    I(f"v_lshrrev_b32 v{vT0}, 3, v{vLANE}\nv_and_b32 v{vT1}, 7, v{vLANE}")
    I(f"v_lshlrev_b32 v{vT2}, 1, v{vT0}\nv_and_b32 v{vT2}, 4, v{vT2}\nv_xor_b32 v{vT2}, v{vT2}, v{vT1}")
    I(f"v_mul_u32_u24 v{vWO}, 896, v{vT0}\nv_lshl_add_u32 v{vWO}, v{vT2}, 4, v{vWO}")
    I(f"s_lshl_b32 s{sM0B}, s{sW}, 12")
    I(f"s_mul_i32 s{sAB}, s{sRB}, {2*144*1024}\ns_add_u32 s{sAB}, s{sAB}, {WS_ACT}")
    I("s_waitcnt lgkmcnt(0)")
    srd(p, S_WS, 22, WS_SIZE)
    srd(p, S_W, 16, 1792 * 896)
    srd(p, S_X, 4, 2048 * 896)
    srd(p, S_O, 18, 2048 * 896)
    R = f"s[{S_WS}:{S_WS+3}]"
    RW = f"s[{S_W}:{S_W+3}]"

    def dma(tagf, m0expr):
        o = []
        A = lambda t, tag=None: o.append((t, tag))
        A(f"s_lshl_b32 s{sT0}, s{sST}, 3"); A(f"s_add_u32 s{sT0}, s{sT0}, s{sW}")
        A(f"s_lshl_b32 s{sT1}, s{sT0}, 10"); A(f"s_add_u32 s{sT1}, s{sT1}, s{sAB}")
        A(m0expr)
        A(f"s_sub_u32 s{sT2}, s{sT0}, 112")
        A(f"buffer_load_dwordx4 v{vL16}, {R}, s{sT1} offen lds", tagf)
        A(f"s_add_u32 s{sT1}, s{sT1}, {144*1024 - 1024}")
        A(f"buffer_load_dwordx4 v{vL16}, {R}, s{sT1} offen offset:1024 lds", tagf)
        A(f"s_lshr_b32 s{sT1}, s{sT2}, 1"); A(f"s_mul_i32 s{sT1}, s{sT1}, 28"); A(f"s_and_b32 s{sT2}, s{sT2}, 1")
        A(f"s_lshl_b32 s{sT2}, s{sT2}, 4"); A(f"s_add_u32 s{sT1}, s{sT1}, s{sT2}"); A(f"s_lshl_b32 s{sT2}, s{sT0}, 4")
        A(f"s_cmp_lt_u32 s{sT0}, 112")
        A(f"s_cselect_b32 s{sT1}, s{sT2}, s{sT1}")
        A(f"s_cselect_b32 s{S_W}, s16, s8"); A(f"s_cselect_b32 s{S_W+1}, s17, s9")
        A(f"s_cselect_b32 s{S_W+2}, {1792*896}, s53")
        A(f"s_mul_i32 s{sT1}, s{sT1}, 896"); A(f"s_add_u32 s{sT1}, s{sT1}, s{sCOL}")
        A(f"s_add_u32 m0, m0, 2048")
        A(f"s_add_u32 s{sST}, s{sST}, 1")
        A(f"buffer_load_dwordx4 v{vWO}, {RW}, s{sT1} offen lds", tagf)
        A(f"s_add_u32 s{sT1}, s{sT1}, {8*896 - 1024}")
        A(f"buffer_load_dwordx4 v{vWO}, {RW}, s{sT1} offen offset:1024 lds", tagf)
        A(f"s_cmp_eq_u32 s{sST}, {NST}"); A(f"s_cselect_b32 s{sST}, 0, s{sST}")
        return o

    def emit(items):
        for it in items:
            if isinstance(it, tuple): I(it[0], tag=it[1])
            elif isinstance(it, list): emit(it)
            elif callable(it): it()
            else: I(it)

    for n in range(3):
        emit(dma(('S', n), f"s_add_u32 m0, s{sM0B}, {n*32768}"))
    I(f"s_lshl_b32 s{sT0}, s{sRB}, 1\ns_and_b32 s{sT1}, s{sW}, 1\ns_add_u32 s{sT0}, s{sT0}, s{sT1}\ns_mul_i32 s{sT0}, s{sT0}, {32*896}")
    I(f"s_bfe_u32 s{sT2}, s{sW}, 0x10001\ns_lshl_b32 s{sT2}, s{sT2}, 6\ns_add_u32 s{sT0}, s{sT0}, s{sT2}\ns_add_u32 s{sT0}, s{sT0}, s{sCOL}")
    I(f"v_and_b32 v{vT0}, 31, v{vLANE}\nv_mul_u32_u24 v{vXO}, 896, v{vT0}\nv_lshrrev_b32 v{vT1}, 5, v{vLANE}")
    I(f"v_lshl_add_u32 v{vXO}, v{vT1}, 3, v{vXO}\nv_add_u32 v{vXO}, s{sT0}, v{vXO}")
    for a in range(4):
        I(f"buffer_load_dwordx2 v[{XR+2*a}:{XR+2*a+1}], v{vXO}, s[{S_X}:{S_X+3}], 0 offen offset:{16*a}")
    I(f"s_lshl_b32 s{sT0}, s{sKH}, 14\ns_lshl_b32 s{sT1}, s{sT1}, 10\ns_add_u32 s{sT1}, s{sT1}, s{sT0}\nv_add_u32 v{vB}, s{sT1}, v{vL16}")
    I(f"v_and_b32 v{vT0}, 3, v{vLANE}\nv_lshl_add_u32 v{vA}, v{vT0}, 3, s{sT2}")
    I(f"v_bfe_u32 v{vT0}, v{vLANE}, 4, 1\nv_lshl_add_u32 v{vA}, v{vT0}, 5, v{vA}")
    I(f"v_bfe_u32 v{vT0}, v{vLANE}, 3, 1\nv_lshlrev_b32 v{vT0}, 6, v{vT0}\nv_xor_b32 v{vA}, v{vA}, v{vT0}")
    I(f"v_bfe_u32 v{vT0}, v{vLANE}, 2, 2\nv_lshl_add_u32 v{vA}, v{vT0}, 7, v{vA}\nv_lshl_add_u32 v{vA}, v{vT1}, 9, v{vA}")
    I(f"s_add_u32 s{sT0}, s{sT0}, 2048\nv_add_u32 v{vA}, s{sT0}, v{vA}")
    for k in range(16): I(f"v_mov_b32 v{ACC+k}, 0")
    adv = lambda r: [f"v_add_u32 v{r}, 32768, v{r}", f"v_and_b32 v{r}, 0x1ffff, v{r}"]

    def stage(var, base, with_dma):
        p.waitvm(lambda tag, env: tag[1] <= env[var] + base)
        I("s_barrier")
        for i in range(4):
            I(f"ds_read_b128 v[{BFR+4*i}:{BFR+4*i+3}], v{vB} offset:{i*4096}")
            for jh in range(2):
                I(f"ds_read_b64_tr_b16 v[{AFR+4*i+2*jh}:{AFR+4*i+2*jh+1}], v{vA} offset:{i*4096 + jh*1024}")
        emit(adv(vA) + adv(vB))
        if with_dma:
            emit(dma(lambda env: ('S', env[var] + base + 3), f"s_add_u32 m0, s{sM0B}, s{sSLOT}"))
            I(f"s_add_u32 s{sSLOT}, s{sSLOT}, 32768\ns_and_b32 s{sSLOT}, s{sSLOT}, 0x1ffff")
        for i in range(4):
            I(f"v_mfma_f32_32x32x16_bf16 v[{ACC}:{ACC+15}], v[{AFR+4*i}:{AFR+4*i+3}], v[{BFR+4*i}:{BFR+4*i+3}], v[{ACC}:{ACC+15}]")

    I(f"s_mov_b32 s{sSLOT}, {3*32768}\ns_mov_b32 s{sCNT}, {NST-3}")
    p.label("L_k3_loop1")
    with p.loop('a', 4):
        stage('a', 0, True)
        I(f"s_sub_u32 s{sCNT}, s{sCNT}, 1\ns_cmp_lg_u32 s{sCNT}, 0\ns_cbranch_scc1 L_k3_loop1")
    for k in range(3):
        with p.loop('b', 1):
            stage('b', 4 + k, False)
    I("s_barrier")
    I(f"s_and_b32 s{sT0}, s{sW}, 3\ns_lshl_b32 s{sT0}, s{sT0}, 12\nv_add_u32 v{vT0}, s{sT0}, v{vL16}")
    I(f"s_cmp_eq_u32 s{sKH}, 0\ns_cbranch_scc1 L_k3_nowr")
    a0, a1 = p.cond("kh", 2)
    with a1:
        for k in range(4): I(f"ds_write_b128 v{vT0}, v[{ACC+4*k}:{ACC+4*k+3}] offset:{k*1024}")
    p.label("L_k3_nowr")
    I("s_waitcnt lgkmcnt(0)\ns_barrier")
    I(f"s_cmp_lg_u32 s{sKH}, 0\ns_cbranch_scc1 L_k3_end")
    for k in range(4): I(f"ds_read_b128 v[{TMP+4*k}:{TMP+4*k+3}], v{vT0} offset:{k*1024}")
    for k in range(16): I(f"v_add_f32 v{ACC+k}, v{ACC+k}, v{TMP+k}")
    for k in range(8):
        I(f"v_lshlrev_b32 v{TMP}, 16, v{XR+k}\nv_and_b32 v{TMP+1}, 0xffff0000, v{XR+k}")
        I(f"v_add_f32 v{ACC+2*k}, v{ACC+2*k}, v{TMP}\nv_add_f32 v{ACC+2*k+1}, v{ACC+2*k+1}, v{TMP+1}")
        I(f"v_cvt_pk_bf16_f32 v{XR+k}, v{ACC+2*k}, v{ACC+2*k+1}")
    for a in range(4):
        I(f"buffer_store_dwordx2 v[{XR+2*a}:{XR+2*a+1}], v{vXO}, s[{S_O}:{S_O+3}], 0 offen offset:{16*a}")
    p.label("L_k3_end")
    I("s_endpgm")
    p.finalize()
    return p

if __name__ == "__main__":
    p = gen_k3()
    print(p.text()); print(p.max_vgpr())
```

```python
import re, itertools

REG_RE = re.compile(r'^(-|\|)?(?:abs\()?([vsa])(?:(\d+)|\[(\d+):(\d+)\])\)?\|?$')

TRANS = ('v_exp_f32', 'v_log_f32', 'v_rcp_f32', 'v_rsq_f32', 'v_sqrt_f32', 'v_sin_f32', 'v_cos_f32',
         'v_exp_f16', 'v_rcp_f16', 'v_rcp_iflag_f32')


def split_ops(s):
    out, depth, cur = [], 0, ''
    for ch in s:
        if ch in '[(':
            depth += 1
        elif ch in '])':
            depth -= 1
        if ch == ',' and depth == 0:
            out.append(cur.strip()); cur = ''
        else:
            cur += ch
    if cur.strip():
        out.append(cur.strip())
    return out


def regs_of(tok):
    tok = tok.strip()
    if tok in ('vcc',): return {('s', 106), ('s', 107)}
    if tok == 'vcc_lo': return {('s', 106)}
    if tok == 'vcc_hi': return {('s', 107)}
    if tok == 'exec': return {('s', 126), ('s', 127)}
    if tok == 'm0': return {('s', 124)}
    m = REG_RE.match(tok)
    if not m:
        return set()
    k = m.group(2)
    if m.group(3) is not None:
        return {(k, int(m.group(3)))}
    return {(k, i) for i in range(int(m.group(4)), int(m.group(5)) + 1)}


class Ins:
    _n = 0

    def __init__(self, text, tag=None, need=None):
        Ins._n += 1
        self.id = Ins._n
        self.text = text.strip()
        self.tag = tag
        self.need = need
        self.nops = 0
        self.w_lgkm = None
        self.w_vm = None
        self.parse()

    def parse(self):
        t = self.text.split(';')[0].strip()
        parts = t.split(None, 1)
        self.op = op = parts[0]
        rest = parts[1] if len(parts) > 1 else ''
        ops = split_ops(rest)
        mods = ''
        if ops:
            last = ops[-1].split(None, 1)
            ops[-1] = last[0]
            mods = last[1] if len(last) > 1 else ''
        self.ops, self.mods = ops, mods
        R = [regs_of(o) for o in ops]
        allr = set().union(*R) if R else set()
        d, u = set(), set()
        self.kind = 'other'
        self.srcc = set()
        if op == 'WAITVM':
            self.kind = 'waitvm'
        elif op.startswith('v_mfma'):
            self.kind = 'mfma'
            d = R[0]; u = R[1] | R[2] | R[3]
            self.srcc = R[3]; self.srcab = R[1] | R[2]
            self.passes = 8 if '32x32' in op else 4
        elif op.startswith('v_'):
            self.kind = 'valu'
            if op.startswith('v_cmpx'):
                raise ValueError('cmpx unsupported')
            if op.startswith(('v_permlane', 'v_swap')):
                d = allr; u = allr
            elif op.startswith(('v_fmac', 'v_dot2c', 'v_pk_fmac')):
                d = R[0]; u = allr
            elif op.startswith(('v_add_co', 'v_addc_co', 'v_sub_co', 'v_subb_co', 'v_subrev_co', 'v_mad_u64', 'v_div_scale')):
                d = R[0] | R[1]; u = set().union(*R[2:])
            elif op == 'v_nop':
                pass
            else:
                d = R[0]; u = set().union(*R[1:]) if len(R) > 1 else set()
                if 'dpp' in op or 'row_' in mods or 'quad_perm' in mods or 'UNUSED_PRESERVE' in mods or op.startswith('v_writelane'):
                    u = u | R[0]
            self.dpp = ('dpp' in op) or ('row_' in mods) or ('quad_perm' in mods) or ('wave_' in mods)
        elif op.startswith('ds_'):
            self.kind = 'ds'
            if op.startswith(('ds_read', 'ds_bpermute', 'ds_permute', 'ds_swizzle')) or '_rtn' in op:
                d = R[0]; u = set().union(*R[1:])
            else:
                u = allr
        elif op.startswith(('buffer_', 'global_', 'flat_')):
            self.kind = 'vmem'
            self.lds = bool(re.search(r'\blds\b', mods)) or '_lds_' in op
            if op in ('buffer_wbl2', 'buffer_inv'):
                pass
            elif self.lds:
                u = allr | {('s', 124)}
            elif '_load' in op:
                d = R[0]; u = set().union(*R[1:])
            elif 'atomic' in op and re.search(r'\bsc0\b', mods):
                d = R[0]; u = allr
            else:
                u = allr
            self.widestore = ('store' in op and (op.endswith('x4') or op.endswith('x3')))
            if self.widestore:
                self.sdata = R[0] if op.startswith('buffer') else R[1]
        elif op.startswith('s_'):
            self.kind = 'salu'
            if op.startswith(('s_load', 's_buffer_load', 's_memtime', 's_memrealtime')):
                self.kind = 'smem'
                d = R[0]; u = set().union(*R[1:]) if len(R) > 1 else set()
            elif op.startswith(('s_cmp', 's_waitcnt', 's_barrier', 's_branch', 's_cbranch', 's_nop', 's_setprio',
                                's_endpgm', 's_sleep', 's_bitcmp', 's_setreg', 's_sethalt')):
                u = allr
            elif 'saveexec' in op:
                d = R[0] | regs_of('exec'); u = set().union(*R[1:]) | regs_of('exec')
            else:
                d = R[0]; u = set().union(*R[1:]) if len(R) > 1 else set()
                if op.startswith(('s_addk', 's_mulk', 's_cmov', 's_bitset')):
                    u = u | R[0]
        self.defs, self.uses = d, u

    def states(self):
        if self.op == 's_nop':
            return int(self.ops[0], 0) + 1
        if self.kind == 'waitvm':
            return 1 if (self.w_vm is not None or self.w_lgkm is not None) else 0
        return 1


class Label:
    def __init__(self, name): self.name = name


class Fence:
    pass


class Raw:
    def __init__(self, text): self.text = text


class Loop:
    def __init__(self, var, trips): self.var, self.trips, self.body = var, trips, []


class If:
    def __init__(self, name, n): self.name, self.alts = name, [[] for _ in range(n)]


class Prog:
    def __init__(self):
        self.root = []
        self.stack = [self.root]

    def i(self, text, tag=None):
        last = None
        for line in text.strip().split('\n'):
            line = line.strip()
            if not line or line.startswith(';'):
                continue
            last = Ins(line, tag=tag)
            self.stack[-1].append(last)
        return last

    def waitvm(self, need):
        ins = Ins('WAITVM', need=need)
        self.stack[-1].append(ins)

    def waitreg(self, regs):
        ins = Ins('WAITVM', need=lambda tag, env: False)
        ins.uses = regs_of(regs)
        self.stack[-1].append(ins)

    prof = None
    allcyc = False
    def stamp(self, k, cyc=False):
        if self.prof is None: return
        if Prog.allcyc: cyc = True
        self.i(f"{'s_memtime' if cyc else 's_memrealtime'} s[{84+2*k}:{85+2*k}]")
        if k not in (0, 7): self.i("s_waitcnt lgkmcnt(0)")
    def dump_stamps(self, n, wave_sgpr, ws_ptr=22):
        if self.prof is None: return
        self.i("s_waitcnt vmcnt(0) lgkmcnt(0)")
        self.i(f"s_mov_b32 s4, s{ws_ptr}\ns_mov_b32 s5, s{ws_ptr+1}\ns_mov_b32 s6, 0x8000000\ns_mov_b32 s7, 0x00020000")
        self.i(f"s_lshl_b32 s8, s2, 3\ns_add_u32 s8, s8, s{wave_sgpr}\ns_lshl_b32 s8, s8, 6\ns_add_u32 s8, s8, {(64<<20) + (self.prof<<20)}")
        self.i("v_mov_b32 v1, 0")
        for k in range(n):
            self.i(f"v_mov_b32 v2, s{84+2*k}")
            self.i(f"buffer_store_dword v2, v1, s[4:7], s8 offen offset:{4*k}")
        self.i("s_getreg_b32 s9, hwreg(HW_REG_XCC_ID)\nv_mov_b32 v2, s9\nbuffer_store_dword v2, v1, s[4:7], s8 offen offset:56")
        self.i("s_getreg_b32 s9, hwreg(HW_REG_HW_ID)\nv_mov_b32 v2, s9\nbuffer_store_dword v2, v1, s[4:7], s8 offen offset:60")

    def label(self, name): self.stack[-1].append(Label(name))
    def raw(self, text): self.stack[-1].append(Raw(text))

    class _Ctx:
        def __init__(self, p, lst): self.p, self.lst = p, lst
        def __enter__(self): self.p.stack.append(self.lst)
        def __exit__(self, *a): self.p.stack.pop()

    def loop(self, var, trips):
        l = Loop(var, trips); self.stack[-1].append(l)
        return Prog._Ctx(self, l.body)

    def cond(self, name, n):
        c = If(name, n); self.stack[-1].append(c)
        return [Prog._Ctx(self, a) for a in c.alts]

    def _ifs(self, nodes, acc):
        for n in nodes:
            if isinstance(n, Loop): self._ifs(n.body, acc)
            elif isinstance(n, If):
                acc[n.name] = len(n.alts)
                for a in n.alts: self._ifs(a, acc)

    def _trace(self, nodes, env, choice, out):
        for n in nodes:
            if isinstance(n, Ins): out.append((n, dict(env)))
            elif isinstance(n, Loop):
                for it in range(n.trips):
                    e = dict(env); e[n.var] = it
                    self._trace(n.body, e, choice, out)
            elif isinstance(n, If):
                self._trace(n.alts[choice[n.name]], env, choice, out)

    def fence(self, nop=True):
        assert len(self.stack) == 1
        self.i("s_waitcnt vmcnt(0) lgkmcnt(0)")
        if nop: self.i("s_nop 11")
        self.root.append(Fence())

    def traces(self):
        segs, cur = [], []
        for n in self.root:
            if isinstance(n, Fence): segs.append(cur); cur = []
            else: cur.append(n)
        segs.append(cur)
        for seg in segs:
            acc = {}
            self._ifs(seg, acc)
            names = list(acc)
            for combo in itertools.product(*[range(acc[k]) for k in names]):
                out = []
                self._trace(seg, {}, dict(zip(names, combo)), out)
                yield out

    def _waits(self, tr):
        changed = False
        lg, vm = [], []
        smem_out = False
        for ins, env in tr:
            touched = ins.defs | ins.uses
            need_l = None
            for idx in range(len(lg) - 1, -1, -1):
                if lg[idx][1] & touched:
                    need_l = len(lg) - 1 - idx
                    if any(x[0].kind == 'smem' for x in lg):
                        need_l = 0
                    break
            need_v = None
            for idx in range(len(vm) - 1, -1, -1):
                hit = bool(vm[idx][1] & touched)
                if ins.kind == 'waitvm' and vm[idx][2] is not None and ins.need(vm[idx][2], env):
                    hit = True
                if hit:
                    need_v = len(vm) - 1 - idx
                    break
            if need_l is not None:
                need_l = min(need_l, 15)
                if ins.w_lgkm is None or need_l < ins.w_lgkm:
                    ins.w_lgkm = need_l; changed = True
            if need_v is not None:
                need_v = min(need_v, 63)
                if ins.w_vm is None or need_v < ins.w_vm:
                    ins.w_vm = need_v; changed = True
            wl, wv = ins.w_lgkm, ins.w_vm
            if ins.op == 's_waitcnt':
                m = re.search(r'lgkmcnt\((\d+)\)', ins.text)
                if m: wl = int(m.group(1)) if wl is None else min(wl, int(m.group(1)))
                m = re.search(r'vmcnt\((\d+)\)', ins.text)
                if m: wv = int(m.group(1)) if wv is None else min(wv, int(m.group(1)))
            if wl is not None:
                if any(x[0].kind == 'smem' for x in lg) and wl > 0:
                    pass
                else:
                    lg = lg[len(lg) - wl:] if wl < len(lg) else lg
                    if wl == 0: lg = []
            if wv is not None:
                vm = vm[len(vm) - wv:] if 0 < wv < len(vm) else ([] if wv == 0 else vm)
            if ins.kind in ('ds', 'smem'):
                lg.append((ins, ins.defs, None))
            elif ins.kind == 'vmem':
                tag = ins.tag(env) if callable(ins.tag) else ins.tag
                vm.append((ins, ins.defs, tag))
                assert len(vm) <= 63, "vmcnt overflow at " + ins.text
        return changed

    @staticmethod
    def _req(p, c):
        r = 0
        vd = {x for x in p.defs if x[0] in 'va'}
        sd = {x for x in p.defs if x[0] == 's'}
        if p.kind == 'mfma':
            big = p.passes == 8
            if c.kind == 'mfma':
                if vd & c.srcab: r = max(r, 12 if big else 8)
                if vd & c.srcc:
                    if not (c.srcc == vd and c.passes == p.passes): r = max(r, 10 if big else 6)
                elif vd & c.defs:
                    r = max(r, 12 if big else 8)
            elif c.kind in ('valu', 'ds', 'vmem'):
                if vd & (c.uses | c.defs): r = max(r, 12 if big else 8)
                if c.kind == 'valu' and (p.srcc & c.defs): r = max(r, 7 if big else 3)
        elif p.kind == 'valu':
            dot = p.op.startswith('v_dot')
            if c.kind == 'mfma' and vd & c.uses: r = max(r, 3 if dot else 2)
            if c.kind == 'valu':
                if p.op in TRANS and c.op not in TRANS and vd & c.uses: r = max(r, 1)
                if p.op in TRANS and vd & (c.uses | c.defs): r = max(r, 1)
                if sd & c.uses:
                    r = max(r, 4 if c.op.startswith(('v_readlane', 'v_writelane')) else 2)
                if vd & c.uses:
                    if c.op.startswith(('v_readlane', 'v_readfirstlane')): r = max(r, 1)
                    if c.op.startswith('v_permlane') or c.dpp: r = max(r, 2)
                    if 'sdwa' in p.op or 'op_sel' in p.mods: r = max(r, 1)
                if dot and vd & (c.uses | c.defs):
                    same_c = c.op == p.op and len(c.ops) >= 3 and (regs_of(c.ops[-1]) == vd or c.op.startswith('v_dot2c')) \
                        and not (vd & (regs_of(c.ops[1]) | regs_of(c.ops[2])))
                    if not same_c: r = max(r, 3)
            if dot and c.kind in ('ds', 'vmem') and vd & c.uses: r = max(r, 3)
            if c.kind == 'vmem' and sd & c.uses: r = max(r, 5)
            if c.kind in ('salu', 'smem') and sd & c.uses: r = max(r, 1)
        elif p.kind == 'salu':
            if ('s', 124) in sd and c.kind == 'vmem' and c.lds: r = max(r, 1)
            if (('s', 126) in sd or ('s', 127) in sd) and c.kind == 'valu' and c.dpp: r = max(r, 0)
        elif p.kind == 'vmem':
            if p.widestore and (p.sdata & c.defs): r = max(r, 2 if c.kind in ('valu', 'mfma') else 1)
        return r

    def _hazards(self, tr):
        changed = False
        hist = []
        pos = 0
        for ins, env in tr:
            pre = ins.nops + (1 if (ins.kind != 'waitvm' and (ins.w_lgkm is not None or ins.w_vm is not None)) else 0)
            here = pos + pre
            need = 0
            for p, ppos in hist[-24:]:
                r = self._req(p, ins)
                if r:
                    dist = here - ppos - 1
                    if dist < r: need = max(need, r - dist)
            if need:
                ins.nops += need; here += need; changed = True
            hist.append((ins, here + ins.states() - 1 if ins.op == 's_nop' else here))
            pos = here + ins.states()
        return changed

    def finalize(self):
        trs = list(self.traces())
        for _ in range(10):
            ch = False
            for tr in trs: ch |= self._waits(tr)
            if not ch: break
        for _ in range(10):
            ch = False
            for tr in trs: ch |= self._hazards(tr)
            if not ch: break

    def _emit(self, nodes, out):
        for n in nodes:
            if isinstance(n, Ins):
                k = n.nops
                while k > 0:
                    q = min(k, 16); out.append('  s_nop %d' % (q - 1)); k -= q
                w = []
                if n.w_vm is not None: w.append('vmcnt(%d)' % n.w_vm)
                if n.w_lgkm is not None: w.append('lgkmcnt(%d)' % n.w_lgkm)
                if w: out.append('  s_waitcnt ' + ' '.join(w))
                if n.kind != 'waitvm': out.append('  ' + n.text)
            elif isinstance(n, Label): out.append(n.name + ':')
            elif isinstance(n, Raw): out.append(n.text)
            elif isinstance(n, Loop): self._emit(n.body, out)
            elif isinstance(n, If):
                for a in n.alts: self._emit(a, out)

    def text(self):
        out = []
        self._emit(self.root, out)
        return '\n'.join(out) + '\n'

    def max_vgpr(self):
        mx = 0
        for tr in self.traces():
            for ins, _ in tr:
                for k, r in ins.defs | ins.uses:
                    if k == 'v': mx = max(mx, r)
        return mx + 1


def interleave(main, side, every=1, start=0):
    out = []
    n = len(main)
    k = 0
    for gi, g in enumerate(main):
        out.extend(g)
        if gi >= start:
            want = (len(side) * (gi - start + 1)) // max(1, (n - start))
            while k < want:
                out.append(side[k]); k += 1
    out.extend(side[k:])
    return out


def kernel_text(name, body, nvgpr, nsgpr=102, acc=None):
    acc = acc or min(256, (nvgpr + 3) // 4 * 4)
    code = """.text
.globl {n}
.p2align 8
.type {n},@function
{n}:
{body}
""".format(n=name, body=body)
    desc = """.section .rodata,"a"
.p2align 6
.amdhsa_kernel {n}
  .amdhsa_next_free_vgpr {v}
  .amdhsa_next_free_sgpr {s}
  .amdhsa_accum_offset {a}
  .amdhsa_group_segment_fixed_size 0
  .amdhsa_kernarg_size 80
  .amdhsa_user_sgpr_count 2
  .amdhsa_user_sgpr_kernarg_segment_ptr 1
  .amdhsa_system_sgpr_workgroup_id_x 1
.end_amdhsa_kernel
""".format(n=name, v=nvgpr, s=nsgpr, a=acc)
    return code, desc


class SAlloc:
    def __init__(self, lo, hi):
        self.free_ = list(range(lo, hi)); self.m = {}
    def add(self, regs): self.free_ = sorted(set(self.free_) | set(regs))
    def a(self, *names, align=1, n=1):
        out = []
        for nm in names:
            assert nm not in self.m, nm
            for r in self.free_:
                if r % align == 0 and all(r + k in self.free_ for k in range(n)):
                    for k in range(n): self.free_.remove(r + k)
                    self.m[nm] = (r, n); out.append(r); break
            else:
                raise RuntimeError("out of sgprs for " + nm)
        return out[0] if len(out) == 1 else out
    def f(self, *names):
        for nm in names:
            r, n = self.m.pop(nm)
            self.add(range(r, r + n))
```

```python
import math, struct, os
from asmgen import *

EXP = set(os.environ.get('MKEXP', '').split(','))
STN = os.environ.get('MKST', 'ln,barA,p1,p2,astart,aend').split(',')
def P(name, default): return int(os.environ.get('MK_' + name, default))
def f32(x): return struct.unpack('<I', struct.pack('<f', x))[0]

WS_QKV = 0
WS_ACT = 8 << 20
WS_FLAG = 24 << 20
F_QKV, F_H, F_O = WS_FLAG, WS_FLAG + 65536, WS_FLAG + 131072
WS_SIZE = 32 << 20
SPIN_MAX = 1 << 18
QSCALE = (28 ** -0.5) * math.log2(math.e)
GC1 = -2.0 * math.log2(math.e) * math.sqrt(2.0 / math.pi)
GC2 = GC1 * 0.044715


def flat(items):
    out = []
    for it in items:
        if isinstance(it, list): out += flat(it)
        else: out.append(it)
    return out


class Atom(tuple):
    pass


def gen_mk(name, prof=None):
    p = Prog(); p.prof = prof
    I = p.i
    def ST(nm):
        if nm in STN: p.stamp(1 + STN.index(nm))
    SA = SAlloc(24, 84)
    SA.add([3])

    def srd(d, ptr, size):
        I(f"s_mov_b32 s{d}, s{ptr}\ns_mov_b32 s{d+1}, s{ptr+1}\ns_mov_b32 s{d+2}, {size}\ns_mov_b32 s{d+3}, 0x00020000")

    def srd_adv(d, delta):
        return [Atom((f"s_add_u32 s{d}, s{d}, {delta}", f"s_addc_u32 s{d+1}, s{d+1}, 0")), f"s_sub_u32 s{d+2}, s{d+2}, {delta}"]

    def emit(items):
        for it in items:
            if isinstance(it, (Atom, list)): emit(it)
            elif isinstance(it, tuple): I(it[0], tag=it[1])
            elif callable(it): it()
            else: I(it)

    outofline = []

    S_X, S_C0, S_WS, S_G, S_U, S_D = SA.a('X', 'C0', 'WS', 'G', 'U', 'D', align=4, n=4)
    sN0 = SA.a('N', align=2, n=2); sN1 = sN0 + 1
    sM = SA.a('M', align=2, n=2)
    sW, sCH, sTY, sT0, sT1, sT2, sT4, sSPIN, sW1K = SA.a('W', 'CH', 'TY', 'T0', 'T1', 'T2', 'T4', 'SPIN', 'W1K')
    sRQ = SA.a(*[f'RQ{k}' for k in range(7)])
    sRG = SA.a(*[f'RG{k}' for k in range(7)])
    sRB, sIDX, sROT, sTT = SA.a('RB', 'IDX', 'ROT', 'TT')
    R = f"s[{S_WS}:{S_WS+3}]"
    RD_ = f"s[{S_D}:{S_D+3}]"
    vLANE, vXOFF, vQ, vG, vU = 0, 1, 2, 3, 4
    vPH, vPK = 1, 14
    vLQ = [5, 6, 7]; vLF = [[8, 9, 10], [11, 12, 13]]; vL16 = 15
    XN = 16
    ACC1, ACC2, AF, T = 128, 176, 208, 232
    vH, vLH = T, [None, T + 1, T + 2]
    vN, vPD, vSTR, vZ = 240, 244, 246, 247
    vF, vC1P, vC2P, vIF2, vKEEP, vHI, vSW0, vSW1 = 248, 249, 250, 251, 252, 253, 254, 255
    STATS = 0
    SLOT = [[14 + b for b in range(6)] + [b - 5 for b in range(6, 17)] + [b - 16 for b in range(17, 27)] + [12 + k for k in range(8)],
            [14 + b for b in range(6)] + [b - 5 for b in range(6, 18)] + [b - 17 for b in range(18, 28)] + [13 + k for k in range(7)]]

    I("s_cmp_ge_u32 s2, 256\ns_cbranch_scc1 L_end")
    p.stamp(0); p.stamp(7, True)
    I("s_load_dwordx16 s[4:19], s[0:1], 0\ns_load_dwordx4 s[20:23], s[0:1], 64")
    I(f"s_memrealtime s[{sN0}:{sN1}]")
    I(f"v_lshrrev_b32 v1, 6, v0\nv_readfirstlane_b32 s{sW}, v1\nv_and_b32 v{vLANE}, 63, v0")
    I(f"s_and_b32 s{sT0}, s2, 1\ns_lshl_b32 s{sT0}, s{sT0}, 3\ns_bfe_u32 s{sRB}, s2, 0x30003\ns_add_u32 s{sRB}, s{sRB}, s{sT0}")
    I(f"s_lshr_b32 s{sT1}, s2, 6\ns_lshr_b32 s{sTY}, s2, 7")
    I(f"s_lshl_b32 s{sROT}, s{sT1}, 1\ns_add_u32 s{sROT}, s{sROT}, s{sRB}")
    I(f"s_sub_u32 s{sT0}, s{sROT}, 14\ns_cmp_ge_u32 s{sROT}, 14\ns_cselect_b32 s{sROT}, s{sT0}, s{sROT}")
    I(f"s_sub_u32 s{sT0}, s{sROT}, 7\ns_cmp_ge_u32 s{sROT}, 7\ns_cselect_b32 s{sROT}, s{sT0}, s{sROT}")
    I(f"s_and_b32 s{sIDX}, s2, 6\ns_and_b32 s{sT1}, s{sT1}, 1\ns_add_u32 s{sIDX}, s{sIDX}, s{sT1}")
    I(f"v_lshrrev_b32 v{T}, 3, v{vLANE}\nv_and_b32 v{T+1}, 7, v{vLANE}")
    I(f"v_mul_u32_u24 v{vXOFF}, 896, v{T}\nv_lshl_add_u32 v{vXOFF}, v{T+1}, 4, v{vXOFF}")
    I(f"s_lshl_b32 s{sT0}, s{sRB}, 3\ns_add_u32 s{sT0}, s{sT0}, s{sW}\ns_mul_i32 s{sT0}, s{sT0}, {16*896}")
    I(f"v_add_u32 v{vXOFF}, s{sT0}, v{vXOFF}\nv_add_u32 v{T+2}, {8*896}, v{vXOFF}")
    I(f"s_lshl_b32 s{sRG[0]}, s{sROT}, 7")
    for v in range(1, 7):
        I(f"s_add_u32 s{sRG[v]}, s{sRG[v-1]}, 128\ns_cmp_eq_u32 s{sRG[v]}, 896\ns_cselect_b32 s{sRG[v]}, 0, s{sRG[v]}")
    I("s_waitcnt lgkmcnt(0)")
    SA.add([0, 1, 10, 11])
    srd(S_X, 4, 2048 * 896)
    XR = lambda g, v: ACC1 + (g * 7 + v) * 4
    for g in range(2):
        for v in range(7):
            I(f"buffer_load_dwordx4 v[{XR(g,v)}:{XR(g,v)+3}], v{(vXOFF, T+2)[g]}, s[{S_X}:{S_X+3}], s{sRG[v]} offen")
    srd(S_C0, 6, 448 * 2688)
    I(f"s_mul_i32 s{sT0}, s{sIDX}, 112\ns_mul_i32 s{sT1}, s{sTY}, 896\ns_add_u32 s{sT0}, s{sT0}, s{sT1}")
    emit(srd_adv(S_C0, f"s{sT0}"))
    I(f"v_lshlrev_b32 v{T+3}, 1, v{T}\nv_and_b32 v{T+3}, 4, v{T+3}\nv_xor_b32 v{T+3}, v{T+3}, v{T+1}\nv_lshlrev_b32 v{T+3}, 4, v{T+3}")
    I(f"v_mul_u32_u24 v{vQ}, 2688, v{T}\nv_add_u32 v{vQ}, v{vQ}, v{T+3}")
    I(f"s_lshl_b32 s{sW1K}, s{sW}, 10\ns_lshl_b32 s{sT0}, s{sW}, 4")
    for v in range(7):
        I(f"s_add_u32 s{sRG[v]}, s{sRG[v]}, s{sT0}\ns_mul_i32 s{sRQ[v]}, s{sRG[v]}, 1344")

    def dma_block(b, slot, kind, v):
        tag = ('W', b)
        m0 = f"s_add_u32 m0, s{sW1K}, {slot * 8192}"
        if kind == 'Q': return [m0, (f"buffer_load_dwordx4 v{vQ}, s[{S_C0}:{S_C0+3}], s{sRQ[v]} offen lds", tag)]
        if kind == 'G': return [m0, (f"buffer_load_dwordx4 v{vG}, s[{S_G}:{S_G+3}], s{sRG[v]} offen lds", tag)]
        if kind == 'U': return [m0, (f"buffer_load_dwordx4 v{vU}, s[{S_U}:{S_U+3}], s{sRG[v]} offen lds", tag)]
        return [m0,
                Atom((f"s_mov_b64 exec, s[{sM}:{sM+1}]", (f"buffer_load_dwordx4 v{vH}, s[{S_G}:{S_G+3}], s{sRG[v]} offen lds", tag), "s_mov_b64 exec, -1")),
                Atom((f"s_not_b64 exec, s[{sM}:{sM+1}]", (f"buffer_load_dwordx4 v{vH}, s[{S_U}:{S_U+3}], s{sRG[v]} offen lds", tag), "s_mov_b64 exec, -1"))]

    for b in range(6): emit(dma_block(b, 14 + b, 'Q', b))
    I(f"v_lshlrev_b32 v{vL16}, 4, v{vLANE}")
    if 'nopf' not in EXP:
        I(f"s_getpc_b64 s[{S_D}:{S_D+1}]")
        p.label("L_pcbase")
        I(f"s_mov_b32 s{S_D+2}, L_code_end-L_pcbase\ns_mov_b32 s{S_D+3}, 0x00020000")
        I(f"s_and_b32 s{sT0}, s2, 0x38\ns_add_u32 s{sT0}, s{sT0}, s{sW}\ns_lshl_b32 s{sT0}, s{sT0}, 10")
        I(f"buffer_load_dwordx4 v[204:207], v{vL16}, s[{S_D}:{S_D+3}], s{sT0} offen")
    srd(S_D, 20, 256)
    I(f"s_or_b32 s{sT0}, s2, s{sW}\ns_min_u32 s{sT0}, s{sT0}, 1\ns_lshl_b32 s{sT0}, s{sT0}, 12\ns_or_b32 s{sN0}, s{sN0}, 1")
    I(f"v_mov_b32 v{vN}, s{sN0}\nv_mov_b32 v{vN+1}, s{sN1}\nv_mov_b32 v{vZ}, 0")
    I(f"buffer_store_dwordx2 v[{vN}:{vN+1}], v{vZ}, {RD_}, s{sT0} offen sc1")
    for v in range(7): I(f"s_mul_i32 s{sRG[v]}, s{sRG[v]}, 1792")
    srd(S_G, 12, 448 * 3584); srd(S_U, 14, 448 * 3584); srd(S_WS, 22, WS_SIZE)
    SA.add([4, 5, 6, 7, 12, 13, 14, 15, 20, 21, 22, 23])
    I(f"s_lshr_b32 s{sCH}, s{sW}, 2\ns_and_b32 s{sTT}, s{sW}, 3")
    sKS1, sKS2, sDC = SA.a('KS1', 'KS2', 'DC')
    I(f"s_lshl_b32 s{sT0}, s{sIDX}, 7\ns_lshl_b32 s{sT1}, s{sTY}, 10\ns_add_u32 s{sT1}, s{sT1}, s{sT0}\ns_lshl_b32 s{sT2}, s{sCH}, 1")
    emit(srd_adv(S_G, f"s{sT1}")); emit(srd_adv(S_U, f"s{sT1}"))
    I(f"s_lshr_b32 s{sKS1}, s{sT1}, 5\ns_add_u32 s{sKS1}, s{sKS1}, s{sT2}")
    I(f"s_add_u32 s{sT0}, s{sT0}, 2048\ns_lshl_b32 s{sT4}, s{sIDX}, 6\ns_add_u32 s{sT4}, s{sT4}, 3072")
    I(f"s_cmp_eq_u32 s{sTY}, 0\ns_cselect_b32 s{sT0}, s{sT0}, s{sT4}\ns_cselect_b32 s{sT2}, s{sT2}, s{sCH}")
    I(f"s_sub_u32 s{sDC}, s{sT0}, s{sT1}\ns_lshr_b32 s{sKS2}, s{sT0}, 5\ns_add_u32 s{sKS2}, s{sKS2}, s{sT2}")
    I(f"v_mul_u32_u24 v{vG}, 3584, v{T}\nv_add_u32 v{vG}, v{vG}, v{T+3}\nv_xor_b32 v{vU}, 32, v{vG}")
    vHH, vMH, vR4, vC4, vRS, tA, tB = range(AF, AF + 7)
    I(f"v_lshrrev_b32 v{vHH}, 5, v{vLANE}\nv_bfe_u32 v{vMH}, v{vLANE}, 4, 1\nv_bfe_u32 v{vR4}, v{vLANE}, 2, 2\nv_and_b32 v{vC4}, 3, v{vLANE}")
    I(f"v_bfe_u32 v{vRS}, v{vLANE}, 3, 1\nv_lshlrev_b32 v{vRS}, 6, v{vRS}")
    I(f"s_mul_i32 s{sT0}, s{sCH}, 56")
    I(f"v_lshl_add_u32 v{tA}, v{vC4}, 3, s{sT0}\nv_lshl_add_u32 v{tA}, v{vMH}, 5, v{tA}\nv_xor_b32 v{tA}, v{tA}, v{vRS}")
    I(f"v_lshl_add_u32 v{tA}, v{vR4}, 7, v{tA}\nv_lshl_add_u32 v{vLQ[0]}, v{vHH}, 10, v{tA}")
    I(f"s_lshl_b32 s{sT0}, s{sCH}, 6")
    I(f"v_lshl_add_u32 v{tA}, v{vC4}, 3, s{sT0}\nv_lshl_add_u32 v{tB}, v{vMH}, 5, v{vRS}\nv_xor_b32 v{tA}, v{tA}, v{tB}")
    I(f"v_lshl_add_u32 v{tA}, v{vR4}, 7, v{tA}\nv_lshl_add_u32 v{tA}, v{vHH}, 10, v{tA}\nv_lshl_add_u32 v{vLF[0][0]}, v{vMH}, 13, v{tA}")
    I(f"v_xor_b32 v{vLF[1][0]}, 32, v{vLF[0][0]}")
    for base in (vLQ, vLF[0], vLF[1]):
        I(f"v_add_u32 v{base[1]}, 0x10000, v{base[0]}\nv_add_u32 v{base[2]}, 0x20000, v{base[0]}")
    I(f"v_sub_u32 v{vHI}, 0, v{vHH}\nv_not_b32 v{vKEEP}, v{vHI}")
    I(f"v_lshlrev_b32 v{vSW0}, 6, v{vHH}\nv_xor_b32 v{vSW0}, v{vSW0}, v{vL16}\nv_xor_b32 v{vSW1}, 128, v{vSW0}")
    vWB = [[XN, XN + 1], [XN + 2, XN + 3]]
    I(f"s_lshl_b32 s{sT0}, s{sW}, 11")
    I(f"v_lshrrev_b32 v{tA}, 1, v{T}\nv_xor_b32 v{tA}, v{tA}, v{T+1}")
    I(f"v_lshl_add_u32 v{tB}, v{T}, 7, s{sT0}\nv_lshl_add_u32 v{vWB[0][0]}, v{tA}, 4, v{tB}")
    I(f"v_xor_b32 v{vWB[1][0]}, 64, v{vWB[0][0]}\nv_add_u32 v{vWB[1][0]}, 1024, v{vWB[1][0]}")
    I(f"v_add_u32 v{vWB[0][1]}, 65536, v{vWB[0][0]}\nv_add_u32 v{vWB[1][1]}, 65536, v{vWB[1][0]}")
    fa = T + 4
    vSTW, vVAR = T + 2, [T + 3, vPD]
    I(f"v_and_b32 v{tA}, 31, v{vLANE}\nv_bfe_u32 v{tB}, v{vLANE}, 1, 3\nv_xor_b32 v{tB}, v{tB}, v{vHH}")
    I(f"s_lshl_b32 s{sT0}, s{sTT}, 12")
    I(f"v_lshl_add_u32 v{fa}, v{tA}, 7, s{sT0}\nv_lshl_add_u32 v{fa}, v{tB}, 4, v{fa}")
    for k in range(1, 4): I(f"v_xor_b32 v{fa+k}, {k*32}, v{fa}")
    I(f"s_lshl_b32 s{sT0}, s{sW}, 6\nv_lshl_add_u32 v{vSTW}, v{T}, 2, s{sT0}")
    I(f"s_lshl_b32 s{sT0}, s{sTT}, 7\nv_lshl_add_u32 v{vSTR}, v{tA}, 2, s{sT0}")
    I(f"v_and_b32 v{tA}, 2, v{T}\nv_and_b32 v{tB}, 3, v{T+1}\nv_xor_b32 v{tA}, v{tA}, v{tB}")
    I(f"v_mul_u32_u24 v{vH}, 3584, v{T}\nv_lshl_add_u32 v{vH}, v{tA}, 4, v{vH}")
    I(f"s_lshl_b32 s{sT0}, s{sCH}, 5")
    I(f"v_lshl_add_u32 v{tA}, v{vC4}, 3, s{sT0}\nv_lshrrev_b32 v{tB}, 1, v{vRS}\nv_xor_b32 v{tA}, v{tA}, v{tB}\nv_lshl_add_u32 v{tA}, v{vMH}, 6, v{tA}")
    I(f"v_lshl_add_u32 v{tA}, v{vR4}, 7, v{tA}\nv_lshl_add_u32 v{tA}, v{vHH}, 10, v{tA}\nv_add_u32 v{vLH[1]}, 0x10000, v{tA}")
    I(f"s_mov_b32 s{sM}, 0x0f0f0f0f\ns_mov_b32 s{sM+1}, 0x0f0f0f0f")
    sQT = SA.a('QT')
    I(f"s_mov_b32 s{sQT}, s{sTT}\ns_lshl_b32 s{sT0}, s{sRB}, 2\ns_add_u32 s{sTT}, s{sTT}, s{sT0}")
    sQS, sQF, sH1, sH2, sHF1, sHF2 = SA.a('QS', 'QF', 'H1', 'H2', 'HF1', 'HF2')
    I(f"s_lshl_b32 s{sT0}, s{sIDX}, 1\ns_add_u32 s{sT0}, s{sT0}, s{sCH}")
    I(f"s_lshl_b32 s{sQS}, s{sT0}, 6\ns_add_u32 s{sQS}, s{sQS}, s{sTT}\ns_mul_i32 s{sQS}, s{sQS}, 3\ns_add_u32 s{sQS}, s{sQS}, s{sTY}\ns_lshl_b32 s{sQS}, s{sQS}, 11")
    I(f"s_mul_i32 s{sQF}, s{sT0}, 3\ns_add_u32 s{sQF}, s{sQF}, s{sTY}\ns_lshl_b32 s{sQF}, s{sQF}, 6\ns_add_u32 s{sQF}, s{sQF}, s{sTT}\ns_lshl_b32 s{sQF}, s{sQF}, 3\ns_add_u32 s{sQF}, s{sQF}, {F_QKV}")
    I(f"s_mul_i32 s{sT0}, s{sTT}, 144\ns_mul_i32 s{sT1}, s{sTT}, 112")
    for sh, sf, sk in ((sH1, sHF1, sKS1), (sH2, sHF2, sKS2)):
        I(f"s_add_u32 s{sh}, s{sT0}, s{sk}\ns_lshl_b32 s{sh}, s{sh}, 10\ns_add_u32 s{sh}, s{sh}, {WS_ACT}")
        I(f"s_add_u32 s{sf}, s{sT1}, s{sk}\ns_lshl_b32 s{sf}, s{sf}, 3\ns_add_u32 s{sf}, s{sf}, {F_H}")
    SA.f('KS1', 'KS2', 'RB', 'IDX', 'ROT', 'TT')
    sKH = sCH
    sTK, sPOS, sHB2, sKB, sLQ, sREC, sOS, sOF, sRB3, sCOL = SA.a('TK', 'POS', 'HB2', 'KB', 'LQ', 'REC', 'OS', 'OF', 'RB3', 'COL')
    sHEAD, sT3 = sT1, sT2
    I(f"s_and_b32 s{sT0}, s2, 7\ns_lshl_b32 s{sHEAD}, s{sT0}, 1\ns_add_u32 s{sHEAD}, s{sHEAD}, s{sTY}")
    I(f"s_bfe_u32 s{sT3}, s2, 0x40003\ns_lshl_b32 s{sT3}, s{sT3}, 2\ns_add_u32 s{sT3}, s{sT3}, s{sQT}")
    I(f"s_lshl_b32 s{sRB3}, s{sT0}, 2\ns_bfe_u32 s{sT0}, s2, 0x20003\ns_add_u32 s{sRB3}, s{sRB3}, s{sT0}")
    I(f"s_lshr_b32 s{sCOL}, s2, 5\ns_lshl_b32 s{sCOL}, s{sCOL}, 7")
    I(f"s_mul_i32 s{sHB2}, s{sHEAD}, {64*6144}\ns_mul_i32 s{sREC}, s{sT3}, 6144\ns_add_u32 s{sREC}, s{sREC}, s{sHB2}")
    I(f"s_mul_i32 s{sT0}, s{sKH}, {32*6144}\ns_add_u32 s{sHB2}, s{sHB2}, s{sT0}\ns_add_u32 s{sHB2}, s{sHB2}, 2048")
    I(f"s_sub_u32 s{sLQ}, s{sQT}, s{sKH}\ns_add_u32 s{sLQ}, s{sLQ}, 1\ns_mul_i32 s{sKB}, s{sKH}, 49152")
    I(f"s_mul_i32 s{sOS}, s{sT3}, 144\ns_lshl_b32 s{sT0}, s{sHEAD}, 1\ns_add_u32 s{sOS}, s{sOS}, s{sT0}\ns_lshl_b32 s{sOS}, s{sOS}, 10\ns_add_u32 s{sOS}, s{sOS}, {WS_ACT + 112*1024}")
    I(f"s_lshl_b32 s{sOF}, s{sT3}, 4\ns_add_u32 s{sOF}, s{sOF}, s{sHEAD}\ns_lshl_b32 s{sOF}, s{sOF}, 3\ns_add_u32 s{sOF}, s{sOF}, {F_O}")

    def kv_init():
        return [f"s_bfe_u32 s{sTK}, s2, 0x40003", f"s_lshl_b32 s{sTK}, s{sTK}, 2", f"s_add_u32 s{sTK}, s{sTK}, s{sLQ}",
                f"s_add_u32 s{sTK}, s{sTK}, 31", f"s_and_b32 s{sTK}, s{sTK}, 31",
                f"s_sub_u32 s{sPOS}, s{sLQ}, 1", f"s_cmp_eq_u32 s{sLQ}, 0", f"s_cselect_b32 s{sPOS}, 11, s{sPOS}",
                f"s_lshl_b32 s{sPOS}, s{sPOS}, 12", f"s_add_u32 s{sPOS}, s{sPOS}, s{sKB}"]
    emit(kv_init())
    I(f"s_lshl_b32 s{sT0}, s{sKH}, 5\ns_add_u32 s{sT0}, s{sT0}, 64\ns_add_u32 s{sT4}, s{sLQ}, 3")
    I(f"v_bfe_u32 v{tB}, v{vLANE}, 3, 1\nv_sub_u32 v{vPK}, s{sT4}, v{tB}\nv_and_b32 v{vPK}, 3, v{vPK}")
    I(f"v_and_b32 v{tA}, 7, v{vLANE}\nv_lshl_add_u32 v{tA}, v{tA}, 2, s{sT0}\nv_add_u32 v{tA}, v{tA}, v{vPK}\nv_lshl_add_u32 v{tA}, v{tB}, 6, v{tA}")
    I(f"v_and_b32 v{tB}, 1, v{vLANE}\nv_lshl_add_u32 v{tB}, v{tB}, 6, s{sT3}")
    I(f"v_bfe_i32 v{vPK}, v{vLANE}, 4, 1\nv_bfi_b32 v{vPK}, v{vPK}, v{tB}, v{tA}")
    I(f"s_mul_i32 s{sT0}, s{sHEAD}, {192*8}\ns_add_u32 s{sT0}, s{sT0}, {F_QKV}\nv_lshl_add_u32 v{vPK}, v{vPK}, 3, s{sT0}")
    I(f"v_lshrrev_b32 v{tA}, 1, v{vLANE}\nv_min_u32 v{tA}, 13, v{tA}\nv_and_b32 v{tB}, 1, v{vLANE}\nv_mul_u32_u24 v{tB}, 14, v{tB}\nv_add_u32 v{tA}, v{tA}, v{tB}")
    I(f"s_mul_i32 s{sT0}, s{sRB3}, 224\ns_add_u32 s{sT0}, s{sT0}, s{sW}\ns_lshl_b32 s{sT0}, s{sT0}, 3\ns_add_u32 s{sT0}, s{sT0}, {F_H}")
    I(f"v_lshl_add_u32 v{vPH}, v{tA}, 6, s{sT0}")
    I(f"s_mov_b32 s{sSPIN}, {SPIN_MAX}")
    I(f"s_cmp_lg_u32 s{sKH}, 0\ns_cselect_b64 vcc, -1, 0")

    sONES, sSELLO, sSELHI = sT0, sT1, sT2
    I(f"s_mov_b32 s{sONES}, 0x3f803f80\ns_mov_b32 s{sSELLO}, 0x00003f80\ns_mov_b32 s{sSELHI}, 0x3f800000")
    a0, a1, lo, hi, nmu = XN + 4, XN + 5, XN + 8, XN + 12, XN + 6
    def red8(rs):
        for mod in ("quad_perm:[1,0,3,2]", "quad_perm:[2,3,0,1]", "row_half_mirror"):
            for r in rs: I(f"v_add_f32_dpp v{r}, v{r}, v{r} {mod} row_mask:0xf bank_mask:0xf")
    for g in range(2):
        for k in range(28):
            r = XR(g, 0) + k
            I(f"v_dot2_f32_bf16 v{a0}, v{r}, s{sONES}, {'0' if k == 0 else 'v%d' % a0}")
            I(f"v_dot2_f32_bf16 v{a1}, v{r}, v{r}, {'0' if k == 0 else 'v%d' % a1}")
        red8([a0, a1])
        I(f"v_mul_f32 v{nmu}, {f32(-1.0/448)}, v{a0}")
        I(f"v_mul_f32 v{a1}, {f32(1.0/448)}, v{a1}\nv_fma_f32 v{a1}, -v{nmu}, v{nmu}, v{a1}\nv_max_f32 v{a1}, 0, v{a1}\nv_add_f32 v{vVAR[g]}, {f32(1e-5)}, v{a1}")
        for v in range(7):
            b = XR(g, v)
            for k in range(4):
                I(f"v_dot2_f32_bf16 v{lo+k}, v{b+k}, s{sSELLO}, v{nmu}")
                I(f"v_dot2_f32_bf16 v{hi+k}, v{b+k}, s{sSELHI}, v{nmu}")
            for k in range(4):
                I(f"v_cvt_pk_bf16_f32 v{b+k}, v{lo+k}, v{hi+k}")
            I(f"ds_write_b128 v{vWB[g][v >> 2]}, v[{b}:{b+3}] offset:{(v & 3) * 16384}")
    if 'nopf2' not in EXP:
        I(f"s_add_u32 s{sT0}, s{sRG[0]}, s{sDC}\ns_mul_i32 s{sT1}, s{sTY}, 896\ns_add_u32 s{sT1}, s{sT1}, s{sRQ[0]}")
        I(f"buffer_load_dword v200, v{vQ}, s[{S_C0}:{S_C0+3}], s{sT1} offen")
        I(f"buffer_load_dword v201, v{vG}, s[{S_G}:{S_G+3}], s{sRG[0]} offen\nbuffer_load_dword v202, v{vG}, s[{S_U}:{S_U+3}], s{sRG[0]} offen")
        I(f"buffer_load_dword v203, v{vG}, s[{S_G}:{S_G+3}], s{sT0} offen\nbuffer_load_dword v199, v{vG}, s[{S_U}:{S_U+3}], s{sT0} offen")
    ST('ln')

    def xread(s): return f"ds_read_b128 v[{XN+4*s}:{XN+4*s+3}], v{fa + (s & 3)} offset:{((s >> 2) & 3) * 16384}"

    def spin_check(lbl, cmp_items, reload_items):
        p.label(lbl + "_chk")
        emit(cmp_items)
        I(f"s_cbranch_scc0 {lbl}_spin")
        p.label(lbl + "_ok")
        def ool():
            p.label(lbl + "_spin")
            I(f"s_sub_u32 s{sSPIN}, s{sSPIN}, 1\ns_cmp_lt_i32 s{sSPIN}, 1\ns_cbranch_scc1 {lbl}_ok")
            I("s_sleep 4")
            emit(reload_items)
            I(f"s_waitcnt vmcnt(0)\ns_branch {lbl}_chk")
        outofline.append(ool)

    nonce_load = f"buffer_load_dwordx2 v[{vN}:{vN+1}], v{vZ}, {RD_}, 0 offen sc1"
    def nonce_check(lbl):
        spin_check(lbl, [f"v_readfirstlane_b32 s{sN0}, v{vN}", f"s_cmp_lg_u32 s{sN0}, 0"], [nonce_load])
        I(f"v_mov_b32 v{vN+2}, v{vN}\nv_mov_b32 v{vN+3}, v{vN+1}")

    def flag_store(soff, tag, off=0, two=False):
        st = f"buffer_store_dwordx4 v[{vN}:{vN+3}]" if two else f"buffer_store_dwordx2 v[{vN}:{vN+1}]"
        return Atom((lambda: p.waitvm(lambda tg, env: tg == tag), "s_mov_b64 exec, 1",
                     f"{st}, v{vZ}, {R}, s{soff} offen offset:{off} sc1", "s_mov_b64 exec, -1"))

    def poll_load(va): return f"buffer_load_dwordx2 v[{vPD}:{vPD+1}], v{va}, {R}, 0 offen sc1"
    def poll_check(lbl, va, mask=None):
        c = [f"v_cmp_ne_u64 s[{sN0}:{sN1}], v[{vPD}:{vPD+1}], v[{vN}:{vN+1}]"]
        if mask is None: c += [f"s_cmp_eq_u64 s[{sN0}:{sN1}], 0"]
        else: c += [f"s_and_b32 s{sN0}, s{sN0}, {mask}", f"s_cmp_eq_u32 s{sN0}, 0"]
        spin_check(lbl, c, [poll_load(va)])

    G, SB, O, VF, PF, Q, KF, GB, TMP, GA = 16, 80, 96, 112, 120, 128, 136, 144, 176, 208

    def kv_group(st):
        tag = ('KV', st)
        pre = [f"s_mul_i32 s{sT0}, s{sTK}, 6144", f"s_add_u32 s{sT4}, s{sTK}, 31", f"s_add_u32 s{sT0}, s{sT0}, s{sHB2}",
               f"s_and_b32 s{sT4}, s{sT4}, 31", f"s_mul_i32 s{sT4}, s{sT4}, 6144", f"s_add_u32 s{sT4}, s{sT4}, s{sHB2}",
               f"s_add_u32 s{sTK}, s{sTK}, 4", f"s_and_b32 s{sTK}, s{sTK}, 31"]
        BIG = 0x7f000000
        if st == -3:
            pre += [Atom((f"s_cmp_eq_u32 s{sLQ}, 0", f"s_cselect_b32 s{sT0}, {BIG}, s{sT0}")), Atom((f"s_cmp_lt_u32 s{sLQ}, 2", f"s_cselect_b32 s{sT4}, {BIG}, s{sT4}"))]
        if st == 5:
            pre += [Atom((f"s_cmp_lg_u32 s{sLQ}, 0", f"s_cselect_b32 s{sT0}, {BIG}, s{sT0}")), Atom((f"s_cmp_ge_u32 s{sLQ}, 2", f"s_cselect_b32 s{sT4}, {BIG}, s{sT4}"))]
        d = [Atom((f"s_mov_b32 m0, s{sPOS}",
                   (f"buffer_load_dwordx4 v{vL16}, {R}, s{(sT0, sT4)[k >> 1]} offen offset:{k*1024} sc1 lds", tag))) for k in range(4)]
        post = [f"s_add_u32 s{sPOS}, s{sPOS}, 16384", f"s_sub_u32 s{sT0}, s{sPOS}, 49152",
                Atom((f"s_cmp_ge_i32 s{sT0}, s{sKB}", f"s_cselect_b32 s{sPOS}, s{sT0}, s{sPOS}"))]
        return pre, d, post

    def gelu(c, soff, off, tag, tmp=T + 4):
        o = []
        for h in range(2):
            idx = [4 * h + k for k in range(4)]
            t = [tmp + k for k in range(4)]
            for k, j in enumerate(idx): o.append(f"v_mul_f32 v{t[k]}, v{c+j}, v{c+j}")
            for k, j in enumerate(idx): o.append(f"v_fma_f32 v{t[k]}, v{t[k]}, v{vC2P}, v{vC1P}")
            for k, j in enumerate(idx): o.append(f"v_mul_f32 v{t[k]}, v{t[k]}, v{c+j}")
            for k, j in enumerate(idx): o.append(f"v_exp_f32 v{t[k]}, v{t[k]}")
            for k, j in enumerate(idx): o.append(f"v_mul_f32 v{c+j}, v{c+j}, v{c+8+j}")
            for k, j in enumerate(idx): o.append(f"v_fma_f32 v{t[k]}, v{t[k]}, v{vIF2}, v{vIF2}")
            for k, j in enumerate(idx): o.append(f"v_rcp_f32 v{t[k]}, v{t[k]}")
            for k, j in enumerate(idx): o.append(f"v_mul_f32 v{c+j}, v{c+j}, v{t[k]}")
        for k in range(4): o.append(f"v_cvt_pk_bf16_f32 v{c+8+k}, v{c+2*k}, v{c+2*k+1}")
        o.append((f"buffer_store_dwordx4 v[{c+8}:{c+11}], v{vL16}, {R}, s{soff} offen offset:{off} sc1", tag))
        return o

    def qkv_epi(c, which, tag):
        o = []
        fm = vF
        if which == 0:
            fm = T + 3
            o.append(f"v_mul_f32 v{fm}, {f32(QSCALE)}, v{vF}")
        else:
            o.append(f"v_and_b32 v{T+3}, 0x3f803f80, v{vHI}")
        for k in range(8):
            o += [f"v_mul_f32 v{c+2*k}, v{c+2*k}, v{fm}", f"v_mul_f32 v{c+2*k+1}, v{c+2*k+1}, v{fm}",
                  f"v_cvt_pk_bf16_f32 v{c+k}, v{c+2*k}, v{c+2*k+1}"]
            if k == 3:
                o.append((f"buffer_store_dwordx4 v[{c}:{c+3}], v{vSW0 if which == 2 else vL16}, {R}, s{sQS} offen offset:{2048 if which == 2 else 0} sc1", tag))
        for k in (6, 7):
            o.append(f"v_and_b32 v{c+k}, v{c+k}, v{vKEEP}" if which == 0 else f"v_and_or_b32 v{c+k}, v{c+k}, v{vKEEP}, v{T+3}")
        o.append((f"buffer_store_dwordx4 v[{c+4}:{c+7}], v{vSW1 if which == 2 else vL16}, {R}, s{sQS} offen offset:{3072 if which == 2 else 1024} sc1", tag))
        return o

    def qloads():
        return [f"buffer_load_dwordx4 v[{Q+4*k}:{Q+4*k+3}], v{vL16}, {R}, s{sREC} offen offset:{1024*k} sc1" for k in range(4)]

    nbar = [0]
    def cbar(for_lag, need=None):
        nbar[0] += 1
        l = f"L_sk{nbar[0]}"
        I(f"s_cbranch_vcc{'z' if for_lag else 'nz'} {l}")
        alts = p.cond("kh", 2)
        with alts[1 if for_lag else 0]:
            if need: p.waitvm(need)
            I("s_waitcnt lgkmcnt(0)\ns_barrier")
        p.label(l)

    STAGES_T = [[0, 3, 6, 9, 13, 17, 21, 25, 29, 35], [0, 3, 6, 10, 14, 18, 22, 26, 30, 35]]
    D, NB = 4, 6
    LA = P('LA', 36)
    PM = 116

    S_W, S_O = S_C0, S_G
    RW = f"s[{S_W}:{S_W+3}]"
    sFLAG, sAB, sGN, sGW, sWM0, sGEMM, sR8 = sRQ
    sE0 = sRG[0]
    WLDS = 98304
    need0 = lambda tag, env: tag == ('KV', -3)
    sc = [f"s_mov_b32 s{S_W}, s16", f"s_mov_b32 s{S_W+1}, s17", f"s_mov_b32 s{S_W+2}, {1792*896}", f"s_mov_b32 s{S_W+3}, 0x00020000",
          f"s_mov_b32 s{S_O}, s18", f"s_mov_b32 s{S_O+1}, s19", f"s_mov_b32 s{S_O+2}, {2048*896}", f"s_mov_b32 s{S_O+3}, 0x00020000",
          f"s_cmp_lt_u32 s2, 224", f"s_cselect_b32 s{sGEMM}, 1, 0",
          f"s_bfe_u32 s{sT1}, s2, 0x20003", f"s_lshr_b32 s{sT2}, s2, 5", f"s_lshl_b32 s{sR8}, s{sT1}, 1", f"s_add_u32 s{sR8}, s{sR8}, s{sT2}",
          f"s_add_u32 s{sGN}, s{sT1}, s{sT2}", f"s_and_b32 s{sGN}, s{sGN}, 3",
          f"s_sub_u32 s{sT2}, s{sR8}, 10", f"s_cmp_ge_u32 s{sR8}, 10", f"s_cselect_b32 s{sR8}, s{sT2}, s{sR8}", f"s_add_u32 s{sR8}, s{sR8}, 4",
          f"s_lshl_b32 s{sGW}, s{sGN}, 3", f"s_add_u32 s{sGW}, s{sGW}, s{sW}", f"s_mul_i32 s{sGW}, s{sGW}, {16*896}", f"s_add_u32 s{sGW}, s{sGW}, s{sCOL}",
          f"s_lshl_b32 s{sGN}, s{sGN}, 13",
          f"s_mul_i32 s{sAB}, s{sRB3}, {2*144*1024}", f"s_add_u32 s{sAB}, s{sAB}, {WS_ACT}", f"s_lshl_b32 s{sT1}, s{sW}, 10", f"s_add_u32 s{sAB}, s{sAB}, s{sT1}",
          f"s_add_u32 s{sGN}, s{sGN}, s{sAB}",
          f"s_lshl_b32 s{sWM0}, s{sW}, 13", f"s_add_u32 s{sWM0}, s{sWM0}, {WLDS}", f"s_mov_b32 s{sFLAG}, 0"]

    wd_prefetch = [] if 'pf3' not in EXP else [
        f"v_lshrrev_b32 v{T+4}, 4, v{vLANE}", f"v_and_b32 v{T+5}, 15, v{vLANE}", f"v_lshl_add_u32 v{T+4}, v{T+4}, 9, v{T+5}",
        f"v_mul_u32_u24 v{T+4}, 896, v{T+4}",
        f"s_bfe_u32 s{sT1}, s2, 0x20003", f"s_lshl_b32 s{sT1}, s{sT1}, 3", f"s_add_u32 s{sT1}, s{sT1}, s{sW}",
        f"s_mul_i32 s{sT1}, s{sT1}, {16*896}", f"s_add_u32 s{sT1}, s{sT1}, s{sCOL}",
        f"s_mov_b32 s{S_D}, s16", f"s_mov_b32 s{S_D+1}, s17", f"s_mov_b32 s{S_D+2}, {1792*896}",
        f"buffer_load_dword v{vSTR}, v{T+4}, {RD_}, s{sT1} offen",
        f"v_mul_u32_u24 v{T+5}, 896, v{T+5}", f"s_bfe_u32 s{sT1}, s2, 0x20003", f"s_lshl_b32 s{sT1}, s{sT1}, 3", f"s_add_u32 s{sT1}, s{sT1}, s{sW}",
        f"s_mul_i32 s{sT1}, s{sT1}, {14*896}", f"s_add_u32 s{sT1}, s{sT1}, s{sCOL}",
        f"s_mov_b32 s{S_D}, s8", f"s_mov_b32 s{S_D+1}, s9", f"s_mov_b32 s{S_D+2}, {448*896}",
        f"buffer_load_dword v{vPD+1}, v{T+5}, {RD_}, s{sT1} offen"]

    def phase1(ty):
        if ty == 0: blocks = [('Q', 0)] * 7 + [('G', 1), ('U', 1)] * 7 + [('G', 2), ('U', 2)] * 7
        else: blocks = [('Q', 0)] * 7 + [('Q', 1)] * 7 + [('G', 2), ('U', 2)] * 7 + [('H', 1)] * 7
        STAGES = STAGES_T[ty]
        slot_of = lambda b: SLOT[ty][b]
        vidx = []; cnt = {}
        for kb in blocks:
            vidx.append(cnt.get(kb, 0)); cnt[kb] = vidx[-1] + 1
        M = []
        b = 0
        while b < 35:
            kind, arg = blocks[b]
            off = slot_of(b) * 8192
            for s_ in range(4):
                ks = 4 * vidx[b] + s_
                im = (off & 0xffff) + s_ * 2048
                if kind == 'Q': M.append((b, b, vLQ[off >> 16], im, ACC1 + 16 * arg, ks))
                elif kind == 'H': M.append((b, b, vLH[off >> 16], im, ACC1 + 32, ks))
                else:
                    acc = ACC1 + 16 if arg == 1 else ACC2
                    for t in range(2): M.append((b, b + 1, vLF[t][off >> 16], im, acc + 16 * t, ks))
            b += 2 if kind == 'G' else 1
        assert len(M) == 140
        first_m, last_m = {}, {}
        for m, e in enumerate(M):
            for bb in (e[0], e[1]):
                first_m.setdefault(bb, m); last_m[bb] = m
        stage_first = {first_m[sb]: i for i, sb in enumerate(STAGES[:-1])}
        owner = {sl: ('X', sl // 2) for sl in range(14)}
        for bb in range(6): owner[slot_of(bb)] = ('W', bb)
        xfree = set(); nxt = [6]
        dmaq, fillq = [], []
        done = [-1]
        def release(m_done): done[0] = m_done
        def pace(m):
            while nxt[0] < 35:
                bb = nxt[0]
                o = owner[slot_of(bb)]
                if not ((o[1] in xfree) if o[0] == 'X' else last_m[o[1]] <= done[0]): break
                if first_m[bb] - m > LA: break
                owner[slot_of(bb)] = ('W', bb)
                kind, arg = blocks[bb]
                if ty == 1 and bb == 7: dmaq.extend(srd_adv(S_C0, 896))
                if bb == (21, 28)[ty]: dmaq.extend(srd_adv(S_G, f"s{sDC}") + srd_adv(S_U, f"s{sDC}"))
                dmaq.extend(dma_block(bb, slot_of(bb), kind, vidx[bb]))
                nxt[0] += 1
        def rd(r):
            e = M[r]; d = AF + 4 * (r % NB)
            return [f"ds_read_b64_tr_b16 v[{d+2*jh}:{d+2*jh+1}], v{e[2]} offset:{e[3] + jh*512}" for jh in range(2)]
        side = {}
        def at(m, items): side.setdefault(m, []).extend(items)
        at(4, [f"ds_write_b32 v{vSTW}, v{vVAR[0]}", f"ds_write_b32 v{vSTW}, v{vVAR[1]} offset:32"])
        at(12, [nonce_load, f"ds_read_b32 v{vIF2}, v{vSTR}", f"v_add_u32 v{vLH[2]}, 0x10000, v{vLH[1]}"])
        at(20, [f"v_rsq_f32 v{vF}, v{vIF2}", f"v_mul_f32 v{vC1P}, {f32(GC1)}, v{vF}", f"v_mul_f32 v{vC2P}, v{vF}, v{vF}",
                f"v_mul_f32 v{vC2P}, v{vC2P}, v{vF}", f"v_mul_f32 v{vC2P}, {f32(GC2)}, v{vC2P}"])
        at(29, qkv_epi(ACC1, ty, 'QS'))
        at(48, [lambda: nonce_check(f"L_non{ty}")])
        at(56, [flag_store(sQF, 'QS')])
        burst = {}
        if ty == 0:
            at(85, gelu(ACC1 + 16, sH1, 0, 'HS1') + gelu(ACC1 + 32, sH1, 1024, 'HS1'))
            at(P('HF1', 130), [flag_store(sHF1, 'HS1', two=True)])
        else:
            at(57, qkv_epi(ACC1 + 16, 2, 'QS2'))
            at(84, [flag_store(sQF, 'QS2', off=512)])
            at(113, gelu(ACC2, sH1, 0, 'HS2'))
        at(60, wd_prefetch)
        xq = list(range(8, 28))
        I(xread(0)); emit(rd(0))
        for k in range(1, D): I(xread(k)); emit(rd(k))
        for k in range(D, 8): I(xread(k))
        bars = sorted([(x if x in burst else x - D) for x in stage_first if x > 0])
        bar_m = 0
        rd_next = D
        for m in range(140):
            def stage_sync(r, staggered):
                i = stage_first[r]; hi = STAGES[i + 1]
                assert nxt[0] >= hi and not any(f"('W', {bb})" in str(x) for x in dmaq for bb in range(hi)), (ty, m, hi, nxt[0])
                if len(xfree) < 7:
                    k = (28 - len(xq)) // 4
                    p.waitreg(f"v[{XN+16*k-4}:{XN+16*k-1}]")
                    xfree.update(range(k))
                need = lambda tag, env, hi=hi: tag[0] == 'W' and tag[1] < hi
                if staggered: return need
                p.waitvm(need)
                I("s_barrier")
            if m == 3:
                p.waitreg(f"v[{XN+28}:{XN+31}]")
                I("s_barrier")
                xfree.update((0, 1)); release(-1)
            if m in burst:
                bl = burst[m]
                need = stage_sync(m, True)
                cbar(True, need)
                I(f"s_setprio {P('BPRIO', 0)}")
                emit(bl[:-P('BTAIL', 21)])
                cbar(False, need)
                while rd_next < m + D: emit(rd(rd_next)); rd_next += 1
                emit(bl[-P('BTAIL', 21):])
                release(m - 1); bar_m = m
            elif (m + D) in stage_first and (m + D) not in burst:
                stage_sync(m + D, False)
                release(m - 1); bar_m = m
            nb_ = min([x for x in bars if x > m] + [140])
            lv = lambda mm: (4 * (mm - bar_m)) // (nb_ - bar_m)
            LS = (112, 116)[ty]
            if m >= LS:
                if m == LS:
                    I(f"s_setprio 1\ns_cbranch_vccnz L_lp{ty}\ns_setprio 3")
                    p.label(f"L_lp{ty}")
            elif m == bar_m or lv(m) != lv(m - 1): I(f"s_setprio {3 - lv(m)}")
            if m == PM:
                ST('pa0'); poll_check(f"L_pa{ty}", vPK); ST('pa1')
                dmaq += qloads()
                for st in (-3, -2, -1):
                    a_, b_, c_ = kv_group(st); dmaq += a_ + b_ + c_
            lim = min([x for x in burst if x > m] + [140])
            if rd_next <= m + D and rd_next < lim: emit(rd(rd_next)); rd_next += 1
            budget = 2 if (m & 1) == 0 else 3
            if len(fillq) + len(dmaq) > 12: budget += P('XB', 2)
            if m >= 3:
                for _ in range(3):
                    if xq:
                        k = xq.pop(0)
                        if k == 16: emit([f"v_add_u32 v{fa+j}, 65536, v{fa+j}" for j in range(4)])
                        I(xread(k))
            e = M[m]; a_ = AF + 4 * (m % NB); c = e[4]; ks = e[5]
            if (m & 1) == 0 and m + 1 < rd_next and m >= 28:
                a2 = AF + 4 * ((m + 1) % NB)
                p.waitreg(f"v[{a2}:{a2+3}]")
            cin = '0' if ks == 0 else f"v[{c}:{c+15}]"
            I(f"v_mfma_f32_32x32x16_bf16 v[{c}:{c+15}], v[{a_}:{a_+3}], v[{XN+4*ks}:{XN+4*ks+3}], {cin}")
            fillq += side.get(m, [])
            pace(m)
            if m == PM - 12: dmaq.append(poll_load(vPK))
            nv = False
            while budget > 0:
                it = None
                for q in (dmaq, fillq):
                    if q and not (nv and 'buffer_' in str(q[0])):
                        it = q.pop(0); break
                if it is None: break
                nv = nv or 'buffer_' in str(it)
                emit([it]); budget -= len(it) if isinstance(it, Atom) else 1
            if m == 83: ST('p1')
            ST(f'm{m}')
        assert nxt[0] == 35
        emit(fillq); emit(dmaq)
        ST('p2')
        cbar(True, need0)
        if ty == 0: ge = gelu(ACC2, sH2, 0, 'HS2') + gelu(ACC2 + 16, sH2, 1024, 'HS2')
        else: ge = gelu(ACC2 + 16, sH1, 1024, 'HS2') + gelu(ACC1 + 32, sH2, 0, 'HS2')
        emit(interleave([[x] for x in ge], sc))

    p.waitvm(lambda tag, env: tag[0] == 'W' and tag[1] < 3)
    I("s_waitcnt lgkmcnt(0)\ns_barrier")
    ST('barA')
    I(f"s_cmp_lg_u32 s{sTY}, 0\ns_cbranch_scc1 L_p1C")
    altA, altC = p.cond("type", 2)
    with altA:
        phase1(0)
        I("s_branch L_fin")
    with altC:
        p.label("L_p1C")
        phase1(1)
    p.label("L_fin")
    vK, vV0, vV1, vT0, vT1, vT2, vT3, vM, vWO, vGA, vGA1, vXO, vL16B = 14, 2, 3, 4, 5, 6, 7, 8, 9, 10, 11, 12, 13
    XRS = 224

    def smfma(half):
        cin = '0' if half == 0 else f"v[{SB}:{SB+15}]"
        return f"v_mfma_f32_32x32x16_bf16 v[{SB}:{SB+15}], v[{KF+4*half}:{KF+4*half+3}], v[{Q+4*half}:{Q+4*half+3}], {cin}"

    ST('gelu')
    I(smfma(0)); I(smfma(1))
    I(f"v_lshrrev_b32 v{vT0}, 3, v{vLANE}\nv_and_b32 v{vT1}, 7, v{vLANE}")
    I(f"v_lshlrev_b32 v{vT2}, 1, v{vT0}\nv_and_b32 v{vT2}, 4, v{vT2}\nv_xor_b32 v{vT2}, v{vT2}, v{vT1}")
    I(f"v_mul_u32_u24 v{vWO}, 896, v{vT0}\nv_lshl_add_u32 v{vWO}, v{vT2}, 4, v{vWO}")
    vWO2 = T
    I(f"v_add_u32 v{vWO2}, {8*896 - 1024}, v{vWO}")
    I(f"v_add_u32 v{vL16B}, {144*1024}, v{vL16}")
    I(f"v_and_b32 v{vT0}, 3, v{vLANE}\nv_lshlrev_b32 v{vGA}, 3, v{vT0}")
    I(f"v_bfe_u32 v{vT0}, v{vLANE}, 4, 1\nv_lshl_add_u32 v{vGA}, v{vT0}, 5, v{vGA}")
    I(f"v_bfe_u32 v{vT1}, v{vLANE}, 3, 1\nv_lshl_add_u32 v{vGA}, v{vT1}, 6, v{vGA}")
    I(f"v_bfe_u32 v{vT3}, v{vLANE}, 2, 2\nv_lshl_add_u32 v{vGA}, v{vT3}, 7, v{vGA}")
    I(f"v_lshrrev_b32 v{vT2}, 5, v{vLANE}\nv_lshl_add_u32 v{vGA}, v{vT2}, 9, v{vGA}")
    I(f"v_add_u32 v{vGA}, s{sWM0}, v{vGA}\nv_xor_b32 v{vGA1}, 64, v{vGA}")
    I(f"v_add_u32 v{vK}, s{sKB}, v{vL16}")
    I(f"v_and_b32 v{vT1}, 1, v{vLANE}\nv_xor_b32 v{vT2}, v{vT2}, v{vT1}")
    I(f"v_mul_u32_u24 v{vV0}, {1024+128}, v{vT0}")
    I(f"v_lshl_add_u32 v{vV0}, v{vT1}, 9, v{vV0}\nv_lshl_add_u32 v{vV0}, v{vT2}, 6, v{vV0}\nv_lshl_add_u32 v{vV0}, v{vT3}, 4, v{vV0}")
    I(f"v_bfe_u32 v{vT1}, v{vLANE}, 1, 1\nv_lshl_add_u32 v{vV0}, v{vT1}, 3, v{vV0}")
    I(f"v_add_u32 v{vV0}, s{sKB}, v{vV0}\nv_add_u32 v{vV0}, 2048, v{vV0}\nv_xor_b32 v{vV1}, 128, v{vV0}")

    def set_pads():
        I(f"v_sub_f32 v{vT0}, 0, v{vM}")
        I(f"v_and_b32 v{vT1}, 0xffff0000, v{vT0}\nv_sub_f32 v{vT0}, v{vT0}, v{vT1}")
        I(f"v_and_b32 v{vT2}, 0xffff0000, v{vT0}\nv_sub_f32 v{vT0}, v{vT0}, v{vT2}")
        I(f"v_lshrrev_b32 v{vT1}, 16, v{vT1}\nv_or_b32 v{vT1}, v{vT1}, v{vT2}\nv_lshrrev_b32 v{vT0}, 16, v{vT0}")
        I(f"v_and_b32 v{vT1}, v{vT1}, v{vHI}\nv_and_b32 v{vT0}, v{vT0}, v{vHI}")
        I(f"v_and_or_b32 v{Q+6}, v{Q+6}, v{vKEEP}, v{vT1}\nv_and_or_b32 v{Q+7}, v{Q+7}, v{vKEEP}, v{vT0}")

    def max16(c, first):
        o = []
        if first:
            o += [f"v_max3_f32 v{vM}, v{c}, v{c+1}, v{c+2}", f"v_max_f32 v{vM}, v{vM}, v{c+15}"]
            ks = range(3, 15, 2)
        else:
            ks = range(0, 16, 2)
        return o + [f"v_max3_f32 v{vM}, v{vM}, v{c+k}, v{c+k+1}" for k in ks]

    def cross_max():
        I(f"v_mov_b32 v{vT0}, v{vM}\nv_permlane32_swap_b32 v{vT0}, v{vM}\nv_max_f32 v{vM}, v{vM}, v{vT0}")

    emit(max16(SB, True)); cross_max(); set_pads()

    def gw_issue(n):
        slot, tag = n & 3, ('GW', n)
        lo_, hi_ = (0, 4) if n < 4 else (4, 14)
        m0 = f"s_add_u32 m0, s{sWM0}, {slot*2048}"
        d = [Atom((m0, (f"buffer_load_dwordx4 v{vWO}, {RW}, s{sGW} offen lds", tag))),
             Atom((m0, (f"buffer_load_dwordx4 v{vWO2}, {RW}, s{sGW} offen offset:1024 lds", tag)))]
        post = []
        if n == 3:
            post = [f"s_lshl_b32 s{sGW}, s{sR8}, 3", f"s_add_u32 s{sGW}, s{sGW}, s{sW}", f"s_mul_i32 s{sGW}, s{sGW}, {16*896}", f"s_add_u32 s{sGW}, s{sGW}, s{sCOL}"]
        elif n < 13:
            post = [f"s_add_u32 s{sGW}, s{sGW}, {128*896}", f"s_sub_u32 s{sT2}, s{sGW}, {(hi_-lo_)*128*896}",
                    Atom((f"s_cmp_ge_u32 s{sGW}, {hi_*128*896}", f"s_cselect_b32 s{sGW}, s{sT2}, s{sGW}"))]
        return d + post

    def gb_issue(n):
        b = GB + 8 * (n & 3)
        lo_, hi_ = (0, 4) if n < 4 else (4, 14)
        d = [f"buffer_load_dwordx4 v[{b}:{b+3}], v{vL16}, {R}, s{sGN} offen sc1", f"buffer_load_dwordx4 v[{b+4}:{b+7}], v{vL16B}, {R}, s{sGN} offen sc1"]
        post = []
        if n == 3: post = [f"s_lshl_b32 s{sGN}, s{sR8}, 13", f"s_add_u32 s{sGN}, s{sGN}, s{sAB}"]
        elif n < 13:
            post = [f"s_add_u32 s{sGN}, s{sGN}, 8192", f"s_sub_u32 s{sT1}, s{sGN}, s{sAB}", f"s_sub_u32 s{sE0}, s{sGN}, {(hi_-lo_)*8192}",
                    Atom((f"s_cmp_eq_u32 s{sT1}, {hi_*8192}", f"s_cselect_b32 s{sGN}, s{sE0}, s{sGN}"))]
        return d + post

    def wo_issue(i, m0val):
        tag = ('GW', 14 + i)
        return [f"s_add_u32 s{sT2}, s{sGW}, {112*896*i}", m0val,
                (f"buffer_load_dwordx4 v{vWO}, {RW}, s{sT2} offen lds", tag),
                (f"buffer_load_dwordx4 v{vWO2}, {RW}, s{sT2} offen offset:1024 lds", tag)]

    def g_reads(off, ga, a0_=None, a1_=None):
        return [f"ds_read_b64_tr_b16 v[{ga+4*ct+2*jh}:{ga+4*ct+2*jh+1}], v{(a0_ or vGA, a1_ or vGA1)[ct]} offset:{off + jh*1024}"
                for ct in range(2) for jh in range(2)]

    def g_mfma(ga, gb, ct, tt, first=False):
        c = G + 16 * (2 * ct + tt)
        cin = '0' if first else f"v[{c}:{c+15}]"
        return f"v_mfma_f32_32x32x16_bf16 v[{c}:{c+15}], v[{ga+4*ct}:{ga+4*ct+3}], v[{gb+4*tt}:{gb+4*tt+3}], {cin}"

    def kread(t): return [f"ds_read_b128 v[{KF+4*h}:{KF+4*h+3}], v{vK} offset:{(t % 12)*4096 + h*1024}" for h in range(2)]
    def vread(t, u):
        return [f"ds_read_b64_tr_b16 v[{VF+4*u+2*jh}:{VF+4*u+2*jh+1}], v{(vV0, vV1)[jh]} offset:{((t + 1) % 12)*4096 + u*256}" for jh in range(2)]
    def pv(t, first=False):
        cin = '0' if first else f"v[{O}:{O+15}]"
        return f"v_mfma_f32_32x32x16_bf16 v[{O}:{O+15}], v[{VF+4*t}:{VF+4*t+3}], v[{PF+4*t}:{PF+4*t+3}], {cin}"

    def vphase():
        emit([f"v_exp_f32 v{SB+k}, v{SB+k}" for k in range(16)])
        emit([f"v_cvt_pk_bf16_f32 v{PF+k}, v{SB+2*k}, v{SB+2*k+1}" for k in range(8)])

    T0 = P('T0', 6)
    NIN = (32 - T0) // 2

    def grd(n):
        p.waitvm(lambda tag, env: tag[0] == 'GW' and tag[1] <= n)
        emit(g_reads((n & 3) * 2048, GA + 8 * (n & 1)))

    def late_flags():
        return [Atom((f"s_cmp_eq_u32 s{sTY}, 0", f"s_cselect_b32 s{sHF1}, s{sHF2}, s{sHF1}")),
                flag_store(sHF1, 'HS2', two=True), flag_store(sHF2, 'HS2')]

    def attention(gemm):
        rel = [[] for _ in range(34)]
        vpre = [[] for _ in range(34)]
        for st in range(0, 6):
            a_, b_, c_ = kv_group(st)
            rel[4 * st + 3] += a_ + b_ + c_
        if gemm:
            rel[0] += [poll_load(vPH)]
            for n in range(4): rel[0] += gw_issue(n)
            vpre[1] += [lambda: ST('pb0'), lambda: poll_check("L_pb", vPH, 0xff), lambda: ST('pb1')]
            for n in range(4): rel[2] += gb_issue(n)
            rel[2] = late_flags() + rel[2]
            for n in range(4, 14):
                tf = T0 + 2 * (n - 4)
                rel[tf + 1] += gw_issue(n)
                rel[tf + 2] += gb_issue(n)
            tl = T0 + 2
            rel[tl - 3].insert(0, poll_load(vPH))
            vpre[tl - 1] += [lambda: ST('pc0'), lambda: poll_check("L_pc", vPH), lambda: ST('pc1')]
        cbar(False, need0)
        emit(kread(0))
        if gemm: ST('astart')
        q = []
        for t in range(32):
            st, i = t >> 2, t & 3
            n = (t - T0) >> 1
            g_on = gemm and t >= T0
            q += rel[t]
            def gap(budget, vm_ok):
                while q and budget > 0:
                    it = q[0]
                    if 'buffer_' in str(it):
                        if not vm_ok: break
                        vm_ok = False
                    q.pop(0); emit([it]); budget -= len(it) if isinstance(it, Atom) else 1
            busy = len([x for x in q if 'buffer_' in str(x)]) > 2
            needkv = lambda tag, env, st=st: tag[0] == 'KV' and tag[1] <= st - 2
            if i == 2: cbar(True, needkv)
            I(f"s_setprio {3 - ((i - 2) & 3)}")
            I(smfma(0)); gap(5, True)
            I(smfma(1))
            if t < 31: emit(kread(t + 1))
            gap(2, not g_on)
            if t > 0: I(pv(0, t == 1))
            emit(vread(t, 0)); gap(3, busy or not g_on)
            if t > 0: I(pv(1))
            emit(vread(t, 1))
            if g_on:
                gap(2, False)
                ga, gb = GA + 8 * (n & 1), GB + 8 * (n & 3)
                I(g_mfma(ga, gb, t & 1, 0, n == 0))
                gap(4, True)
                I(g_mfma(ga, gb, t & 1, 1, n == 0))
            if gemm and t >= T0 - 1 and ((t - T0) & 1) == 1 and n + 1 < 14: grd(n + 1)
            if i == 2: cbar(False, needkv)
            emit(vpre[t])
            vphase()
            if gemm: ST(f"t{t}")
        emit(q + rel[32] + rel[33])

    I(f"s_cmp_eq_u32 s{sGEMM}, 0\ns_cbranch_scc1 L_plain0")
    ag, an = p.cond("gemm", 2)
    with ag:
        attention(True)
        I("s_branch L_attn_done")
    with an:
        p.label("L_plain0")
        emit(late_flags())
        p.label("L_plain")
        attention(False)
    p.label("L_attn_done")
    I(pv(0)); I(pv(1))
    I("s_setprio 0")
    ST('aend')
    FLAGS = 16384
    I(f"s_lshl_b32 s{sT0}, s{sW}, 2\ns_add_u32 s{sT0}, s{sT0}, {FLAGS}\nv_mov_b32 v{vT2}, s{sT0}")
    I(f"s_lshl_b32 s{sT0}, s{sQT}, 12\nv_add_u32 v{vT3}, s{sT0}, v{vL16}")
    I("s_waitcnt lgkmcnt(0)\ns_barrier")
    I(f"v_and_b32 v{vT0}, v{O+12}, v{vHI}")
    I(f"v_cmp_ngt_f32 vcc, {f32(2.0**30)}, v{vT0}")
    I(f"s_cmp_lg_u64 vcc, 0\ns_cselect_b32 s{sT0}, 1, 0\nv_mov_b32 v{vT1}, s{sT0}")
    I(f"ds_write_b32 v{vT2}, v{vT1}")
    I(f"s_cmp_eq_u32 s{sKH}, 0\ns_cbranch_scc1 L_nowr")
    a0_, a1_ = p.cond("kh", 2)
    with a1_:
        for k in range(4): I(f"ds_write_b128 v{vT3}, v[{O+4*k}:{O+4*k+3}] offset:{k*1024}")
    p.label("L_nowr")
    I(f"v_and_b32 v{vT1}, 7, v{vLANE}\nv_lshlrev_b32 v{vT1}, 2, v{vT1}")
    I("s_waitcnt lgkmcnt(0)\ns_barrier")
    I(f"ds_read_b32 v{vT2}, v{vT1} offset:{FLAGS}")
    for k in range(4): I(f"ds_read_b128 v[{TMP+4*k}:{TMP+4*k+3}], v{vT3} offset:{k*1024}")
    I(f"v_cmp_ne_u32 vcc, 0, v{vT2}")
    I(f"s_cmp_lg_u64 vcc, 0\ns_cselect_b32 s{sT0}, 1, 0\ns_andn2_b32 s{sT0}, s{sT0}, s{sFLAG}")
    I(f"s_cmp_lg_u32 s{sT0}, 0\ns_cbranch_scc1 L_fallback")
    I(f"s_cmp_lg_u32 s{sKH}, 0\ns_cbranch_scc1 L_nostore")
    a0_, a1_ = p.cond("kh", 2)
    with a0_:
        for k in range(16): I(f"v_add_f32 v{O+k}, v{O+k}, v{TMP+k}")
        I(f"v_mov_b32 v{vT0}, v{O+12}\nv_mov_b32 v{vT1}, v{O+12}\nv_permlane32_swap_b32 v{vT0}, v{vT1}")
        I(f"v_rcp_f32 v{vT1}, v{vT1}")
        for k in range(16): I(f"v_mul_f32 v{O+k}, v{O+k}, v{vT1}")
        for k in range(8): I(f"v_cvt_pk_bf16_f32 v{TMP+k}, v{O+2*k}, v{O+2*k+1}")
        for k in (6, 7): I(f"v_and_b32 v{TMP+k}, v{TMP+k}, v{vKEEP}")
        I(f"buffer_store_dwordx4 v[{TMP}:{TMP+3}], v{vL16}, {R}, s{sOS} offen sc1", tag='OS')
        I(f"buffer_store_dwordx4 v[{TMP+4}:{TMP+7}], v{vL16}, {R}, s{sOS} offen offset:1024 sc1", tag='OS')
        emit([flag_store(sOF, 'OS')])
    p.label("L_nostore")
    ST('opub')
    I(f"s_cmp_eq_u32 s{sGEMM}, 0\ns_cbranch_scc1 L_end")
    I(f"s_mov_b32 s{S_W}, s8\ns_mov_b32 s{S_W+1}, s9\ns_mov_b32 s{S_W+2}, {448*896}")
    I(f"s_lshr_b32 s{sT1}, s{sW}, 1\ns_mul_i32 s{sGW}, s{sT1}, 28\ns_and_b32 s{sT0}, s{sW}, 1\ns_lshl_b32 s{sT0}, s{sT0}, 4\ns_add_u32 s{sGW}, s{sGW}, s{sT0}")
    I(f"s_mul_i32 s{sGW}, s{sGW}, 896\ns_add_u32 s{sGW}, s{sGW}, s{sCOL}\ns_sub_u32 s{sE0}, s{sWM0}, 65536")
    for i in range(4): emit(wo_issue(i, f"s_add_u32 m0, s{sE0}, {i*2048}"))
    I(f"s_lshl_b32 s{sT0}, s{sRB3}, 5\ns_add_u32 s{sT0}, s{sT0}, s{sT1}\ns_lshl_b32 s{sT0}, s{sT0}, 3\ns_add_u32 s{sT0}, s{sT0}, {F_O}")
    I(f"v_and_b32 v{vT0}, 1, v{vLANE}\nv_bfe_u32 v{vT1}, v{vLANE}, 1, 2\nv_lshl_add_u32 v{vT0}, v{vT0}, 2, v{vT1}\nv_lshl_add_u32 v{vPH}, v{vT0}, 5, s{sT0}")
    I(f"s_bfe_u32 s{sT0}, s{sW}, 0x10001\ns_lshl_b32 s{sT1}, s{sRB3}, 1\ns_add_u32 s{sT0}, s{sT0}, s{sT1}\ns_mul_i32 s{sT0}, s{sT0}, {32*896}")
    I(f"s_lshl_b32 s{sT1}, s{sKH}, 6\ns_add_u32 s{sT0}, s{sT0}, s{sT1}\ns_and_b32 s{sT1}, s{sW}, 1\ns_lshl_b32 s{sT1}, s{sT1}, 5")
    I(f"s_add_u32 s{sT0}, s{sT0}, s{sT1}\ns_add_u32 s{sT0}, s{sT0}, s{sCOL}")
    I(f"v_and_b32 v{vT0}, 31, v{vLANE}\nv_mul_u32_u24 v{vXO}, 896, v{vT0}\nv_lshrrev_b32 v{vT1}, 5, v{vLANE}")
    I(f"v_lshl_add_u32 v{vXO}, v{vT1}, 4, v{vXO}\nv_add_u32 v{vXO}, s{sT0}, v{vXO}")
    I(f"buffer_load_dwordx4 v[{XRS}:{XRS+3}], v{vXO}, s[{S_X}:{S_X+3}], 0 offen")
    for n in range(NIN, 14):
        if n > NIN: grd(n)
        for tt in range(2):
            for ct in range(2): I(g_mfma(GA + 8 * (n & 1), GB + 8 * (n & 3), ct, tt))
    I(poll_load(vPH))
    AR = [GA, GA + 8, SB, SB + 8]
    I(f"v_subrev_u32 v{vT2}, 65536, v{vGA}\nv_subrev_u32 v{vT3}, 65536, v{vGA1}")
    p.waitvm(lambda tag, env: tag[0] == 'GW')
    for i in range(4): emit(g_reads(i * 2048, AR[i], vT2, vT3))
    I(f"s_add_u32 s{sT1}, s{sAB}, {112*1024}")
    poll_check("L_pd", vPH)
    ST('opoll')
    for i in range(4):
        b = GB + 8 * i
        I(f"buffer_load_dwordx4 v[{b}:{b+3}], v{vL16}, {R}, s{sT1} offen sc1")
        I(f"buffer_load_dwordx4 v[{b+4}:{b+7}], v{vL16B}, {R}, s{sT1} offen sc1")
        if i < 3: I(f"s_add_u32 s{sT1}, s{sT1}, 8192")
    I(f"s_lshl_b32 s{sT0}, s{sW}, 14\nv_add_u32 v{vT0}, s{sT0}, v{vL16}")
    I(f"s_lshl_b32 s{sT0}, s{sW}, 11\nv_and_b32 v{vT1}, 31, v{vLANE}\nv_lshlrev_b32 v{vT1}, 4, v{vT1}\nv_lshrrev_b32 v{vM}, 5, v{vLANE}")
    I(f"v_lshl_add_u32 v{vT1}, v{vM}, 10, v{vT1}\nv_add_u32 v{vT1}, s{sT0}, v{vT1}\nv_add_u32 v{vM}, 65536, v{vT1}")
    I("s_waitcnt lgkmcnt(0)\ns_barrier")
    for i in range(4):
        for tt in range(2):
            for ct in range(2): I(g_mfma(AR[i], GB + 8 * i, ct, tt))
    ST('womfma')
    for k in range(16): I(f"ds_write_b128 v{vT0}, v[{G+4*k}:{G+4*k+3}] offset:{k*1024}")
    ACC = 96
    for k in range(4):
        I(f"v_lshlrev_b32 v{ACC+2*k}, 16, v{XRS+k}\nv_and_b32 v{ACC+2*k+1}, 0xffff0000, v{XRS+k}")
    I("s_waitcnt lgkmcnt(0)\ns_barrier")
    ST('redw')
    RDB = 128
    for sw in range(8):
        for h in range(2):
            d = RDB + sw * 8 + h * 4
            I(f"ds_read_b128 v[{d}:{d+3}], v{(vT1, vM)[sw >> 2]} offset:{(sw & 3) * 16384 + h * 512}")
    for sw in range(8):
        for k in range(8): I(f"v_add_f32 v{ACC+k}, v{ACC+k}, v{RDB+sw*8+k}")
    for k in range(4): I(f"v_cvt_pk_bf16_f32 v{XRS+k}, v{ACC+2*k}, v{ACC+2*k+1}")
    I(f"buffer_store_dwordx4 v[{XRS}:{XRS+3}], v{vXO}, s[{S_O}:{S_O+3}], 0 offen")
    if prof is not None: I("s_waitcnt vmcnt(0)")
    p.stamp(8)
    if prof is not None: I(f"s_mov_b32 s{sT0}, s{sW}")
    p.dump_stamps(9, sT0, S_WS)
    p.label("L_end")
    I("s_endpgm")
    p.root.append(Fence())
    p.label("L_fallback")
    I("s_waitcnt vmcnt(0) lgkmcnt(0)\ns_nop 15\ns_barrier")
    I(f"s_mov_b32 s{sFLAG}, 1")
    emit(kv_init())
    for n in (-3, -2, -1):
        a_, b_, c_ = kv_group(n); emit(a_ + b_ + c_)
    I(f"v_and_b32 v{Q+6}, v{Q+6}, v{vKEEP}\nv_and_b32 v{Q+7}, v{Q+7}, v{vKEEP}")
    I(f"v_mov_b32 v{vM}, 0xff800000")
    I(f"s_mul_i32 s{sT1}, s{sKH}, {32*6144}\ns_sub_u32 s{sT0}, s{sHB2}, s{sT1}\ns_mov_b32 s{sT1}, 64")
    p.label("L_fbloop")
    with p.loop('f', 2):
        I(f"buffer_load_dwordx4 v[{KF}:{KF+3}], v{vL16}, {R}, s{sT0} offen sc1")
        I(f"buffer_load_dwordx4 v[{KF+4}:{KF+7}], v{vL16}, {R}, s{sT0} offen offset:1024 sc1")
        I(smfma(0)); I(smfma(1))
        emit(max16(SB, False))
        I(f"s_add_u32 s{sT0}, s{sT0}, 6144\ns_sub_u32 s{sT1}, s{sT1}, 1\ns_cmp_lg_u32 s{sT1}, 0\ns_cbranch_scc1 L_fbloop")
    cross_max()
    set_pads()
    I(f"s_cmp_lg_u32 s{sKH}, 0\ns_cselect_b64 vcc, -1, 0")
    I("s_waitcnt vmcnt(0) lgkmcnt(0)\ns_nop 7")
    cbar(True)
    I("s_branch L_plain")
    for fn in outofline:
        p.root.append(Fence())
        fn()
    p.label("L_code_end")
    I("s_endpgm")
    p.finalize()
    return p


if __name__ == "__main__":
    p = gen_mk("x")
    print(p.text()); print(p.max_vgpr())
```

```python
import sys, os
from asmgen import *
import mk2 as mk
NAME = "parallel_sum__mha_block__glu_gated_geglu__prompt_kernel"
_r = "parallel_sum__mha_block__glu_gated_geglu__prompt.s.ref"
HDR = open(_r).read().split("; Override launch")[0] if os.path.exists(_r) else ""
def build_all(prof=False, aslist=False):
    p = mk.gen_mk(NAME, prof=0 if prof else None)
    c, d = kernel_text(NAME, p.text(), 256)
    head = f"; @launch kernel={NAME} grid=(256,1,1) block=(512,1,1) lds=163840\n" if aslist else "; @launch grid=(256,1,1) block=(512,1,1) lds=163840\n"
    return head + '.amdgcn_target "amdgcn-amd-amdhsa--gfx950"\n' + c + d
if __name__ == "__main__":
    out = sys.argv[1] if len(sys.argv) > 1 else "parallel_sum__mha_block__glu_gated_geglu__prompt.s"
    open(out, "w").write(HDR + build_all(prof=bool(os.environ.get("PROF"))))
    print("wrote", out)
```

```python
import math, struct, os
from asmgen import *

EXP = set(os.environ.get('MKEXP', '').split(','))
STN = os.environ.get('MKST', 'ln,barA,p1,p2,astart,aend').split(',')
def P(name, default): return int(os.environ.get('MK_' + name, default))
def f32(x): return struct.unpack('<I', struct.pack('<f', x))[0]

WS_QKV = 0
WS_ACT = 8 << 20
WS_FLAG = 24 << 20
F_QKV, F_H, F_O = WS_FLAG, WS_FLAG + 65536, WS_FLAG + 131072
WS_SIZE = 32 << 20
SPIN_MAX = 1 << 18
QSCALE = (28 ** -0.5) * math.log2(math.e)
GC1 = -2.0 * math.log2(math.e) * math.sqrt(2.0 / math.pi)
GC2 = GC1 * 0.044715


def flat(items):
    out = []
    for it in items:
        if isinstance(it, list): out += flat(it)
        else: out.append(it)
    return out


class Atom(tuple):
    pass


def gen_mk(name, prof=None):
    p = Prog(); p.prof = prof
    I = p.i
    def ST(nm):
        if nm in STN: p.stamp(1 + STN.index(nm))
    SA = SAlloc(24, 84)
    SA.add([3])

    def srd(d, ptr, size):
        I(f"s_mov_b32 s{d}, s{ptr}\ns_mov_b32 s{d+1}, s{ptr+1}\ns_mov_b32 s{d+2}, {size}\ns_mov_b32 s{d+3}, 0x00020000")

    def srd_adv(d, delta):
        return [Atom((f"s_add_u32 s{d}, s{d}, {delta}", f"s_addc_u32 s{d+1}, s{d+1}, 0")), f"s_sub_u32 s{d+2}, s{d+2}, {delta}"]

    def emit(items):
        for it in items:
            if isinstance(it, (Atom, list)): emit(it)
            elif isinstance(it, tuple): I(it[0], tag=it[1])
            elif callable(it): it()
            else: I(it)

    outofline = []

    def L(text):
        out = []
        for line in flat([t.split('\n') for t in ([text] if isinstance(text, str) else text)]):
            if line.startswith('s_cselect'):
                prev = out.pop()
                out.append(Atom((tuple(prev) if isinstance(prev, Atom) else (prev,)) + (line,)))
            else: out.append(line)
        return out

    S_X, S_C0, S_WS, S_G, S_U, S_D = SA.a('X', 'C0', 'WS', 'G', 'U', 'D', align=4, n=4)
    sN0 = SA.a('N', align=2, n=2); sN1 = sN0 + 1
    sM = SA.a('M', align=2, n=2)
    sW, sCH, sTY, sT0, sT1, sT2, sT4, sSPIN, sW1K = SA.a('W', 'CH', 'TY', 'T0', 'T1', 'T2', 'T4', 'SPIN', 'W1K')
    sRQ = SA.a(*[f'RQ{k}' for k in range(7)])
    sRG = SA.a(*[f'RG{k}' for k in range(7)])
    sRB, sIDX, sROT, sTT = SA.a('RB', 'IDX', 'ROT', 'TT')
    R = f"s[{S_WS}:{S_WS+3}]"
    RD_ = f"s[{S_D}:{S_D+3}]"
    vLANE, vXOFF, vQ, vG, vU = 0, 1, 2, 3, 4
    vPH, vPK = 1, 14
    vLQ = [5, 6, 7]; vLF = [[8, 9, 10], [11, 12, 13]]; vL16 = 15
    XN = 16
    ACC1, ACC2, AF, T = 128, 176, 208, 232
    vH, vLH = T, [None, T + 1, T + 2]
    vN, vPD, vSTR, vZ = 240, 244, 246, 247
    vF, vC1P, vC2P, vIF2, vKEEP, vHI, vSW0, vSW1 = 248, 249, 250, 251, 252, 253, 254, 255
    STATS = 0
    SLOT = [[14 + b for b in range(6)] + [b - 5 for b in range(6, 17)] + [b - 16 for b in range(17, 27)] + [12 + k for k in range(8)],
            [14 + b for b in range(6)] + [b - 5 for b in range(6, 18)] + [b - 17 for b in range(18, 28)] + [13 + k for k in range(7)]]

    I("s_cmp_ge_u32 s2, 256\ns_cbranch_scc1 L_end")
    p.stamp(0); p.stamp(7, True)
    I("s_load_dwordx16 s[4:19], s[0:1], 0\ns_load_dwordx4 s[20:23], s[0:1], 64")
    I(f"s_memrealtime s[{sN0}:{sN1}]")
    I(f"v_lshrrev_b32 v1, 6, v0\nv_readfirstlane_b32 s{sW}, v1\nv_and_b32 v{vLANE}, 63, v0")
    I(f"v_lshlrev_b32 v{vL16}, 4, v{vLANE}")
    if 'nopf' not in EXP:
        I(f"s_getpc_b64 s[{S_D}:{S_D+1}]")
        p.label("L_pcbase")
        I(f"s_mov_b32 s{S_D+2}, L_code_end-L_pcbase\ns_mov_b32 s{S_D+3}, 0x00020000")
        I(f"s_and_b32 s{sT4}, s2, 0x38\ns_add_u32 s{sT4}, s{sT4}, s{sW}\ns_lshl_b32 s{sT4}, s{sT4}, 10")
        I(f"buffer_load_dwordx4 v[204:207], v{vL16}, s[{S_D}:{S_D+3}], s{sT4} offen")
    I(f"s_and_b32 s{sT0}, s2, 1\ns_lshl_b32 s{sT0}, s{sT0}, 3\ns_bfe_u32 s{sRB}, s2, 0x30003\ns_add_u32 s{sRB}, s{sRB}, s{sT0}")
    I(f"s_lshr_b32 s{sT1}, s2, 6\ns_lshr_b32 s{sTY}, s2, 7")
    I(f"s_lshl_b32 s{sROT}, s{sT1}, 1\ns_add_u32 s{sROT}, s{sROT}, s{sRB}")
    I(f"s_sub_u32 s{sT0}, s{sROT}, 14\ns_cmp_ge_u32 s{sROT}, 14\ns_cselect_b32 s{sROT}, s{sT0}, s{sROT}")
    I(f"s_sub_u32 s{sT0}, s{sROT}, 7\ns_cmp_ge_u32 s{sROT}, 7\ns_cselect_b32 s{sROT}, s{sT0}, s{sROT}")
    I(f"s_and_b32 s{sIDX}, s2, 6\ns_and_b32 s{sT1}, s{sT1}, 1\ns_add_u32 s{sIDX}, s{sIDX}, s{sT1}")
    I(f"v_lshrrev_b32 v{T}, 3, v{vLANE}\nv_and_b32 v{T+1}, 7, v{vLANE}")
    I(f"v_mul_u32_u24 v{vXOFF}, 896, v{T}\nv_lshl_add_u32 v{vXOFF}, v{T+1}, 4, v{vXOFF}")
    I(f"s_lshl_b32 s{sT0}, s{sRB}, 3\ns_add_u32 s{sT0}, s{sT0}, s{sW}\ns_mul_i32 s{sT0}, s{sT0}, {16*896}")
    I(f"v_add_u32 v{vXOFF}, s{sT0}, v{vXOFF}\nv_add_u32 v199, {8*896}, v{vXOFF}")
    I(f"s_lshl_b32 s{sRG[0]}, s{sROT}, 7")
    for v in range(1, 7):
        I(f"s_add_u32 s{sRG[v]}, s{sRG[v-1]}, 128\ns_cmp_eq_u32 s{sRG[v]}, 896\ns_cselect_b32 s{sRG[v]}, 0, s{sRG[v]}")
    I("s_waitcnt lgkmcnt(0)")
    SA.add([0, 1, 10, 11])
    srd(S_X, 4, 2048 * 896)
    XR = lambda g, v: ACC1 + (g * 7 + v) * 4
    ST('karg')
    def xload(g, offs):
        for v in range(7):
            I(f"buffer_load_dwordx4 v[{XR(g,v)}:{XR(g,v)+3}], v{(vXOFF, 199)[g]}, s[{S_X}:{S_X+3}], s{offs[v]} offen")
    xload(0, sRG)
    if 'noxsplit' in EXP: xload(1, sRG)
    srd(S_C0, 6, 448 * 2688)
    I(f"s_mul_i32 s{sT0}, s{sIDX}, 112\ns_mul_i32 s{sT1}, s{sTY}, 896\ns_add_u32 s{sT0}, s{sT0}, s{sT1}")
    emit(srd_adv(S_C0, f"s{sT0}"))
    I(f"v_lshlrev_b32 v{T+3}, 1, v{T}\nv_and_b32 v{T+3}, 4, v{T+3}\nv_xor_b32 v{T+3}, v{T+3}, v{T+1}\nv_lshlrev_b32 v{T+3}, 4, v{T+3}")
    I(f"v_mul_u32_u24 v{vQ}, 2688, v{T}\nv_add_u32 v{vQ}, v{vQ}, v{T+3}")
    I(f"s_lshl_b32 s{sW1K}, s{sW}, 10\ns_lshl_b32 s{sT0}, s{sW}, 4")
    for v in range(7):
        I(f"s_add_u32 s{sRG[v]}, s{sRG[v]}, s{sT0}\ns_mul_i32 s{sRQ[v]}, s{sRG[v]}, 1344")

    def dma_block(b, slot, kind, v):
        tag = ('W', b)
        m0 = f"s_add_u32 m0, s{sW1K}, {slot * 8192}"
        if kind == 'Q': return [m0, (f"buffer_load_dwordx4 v{vQ}, s[{S_C0}:{S_C0+3}], s{sRQ[v]} offen lds", tag)]
        if kind == 'G': return [m0, (f"buffer_load_dwordx4 v{vG}, s[{S_G}:{S_G+3}], s{sRG[v]} offen lds", tag)]
        if kind == 'U': return [m0, (f"buffer_load_dwordx4 v{vU}, s[{S_U}:{S_U+3}], s{sRG[v]} offen lds", tag)]
        return [m0,
                Atom((f"s_mov_b64 exec, s[{sM}:{sM+1}]", (f"buffer_load_dwordx4 v{vH}, s[{S_G}:{S_G+3}], s{sRG[v]} offen lds", tag), "s_mov_b64 exec, -1")),
                Atom((f"s_not_b64 exec, s[{sM}:{sM+1}]", (f"buffer_load_dwordx4 v{vH}, s[{S_U}:{S_U+3}], s{sRG[v]} offen lds", tag), "s_mov_b64 exec, -1"))]

    early = [Atom(dma_block(b, 14 + b, 'Q', b)) for b in range(6)]
    sDP = SA.a('DP', align=2, n=2)
    I(f"s_mov_b64 s[{sDP}:{sDP+1}], s[20:21]")
    def nonce_pub():
        srd(S_D, sDP, 256)
        I(f"s_or_b32 s{sT4}, s2, s{sW}\ns_min_u32 s{sT4}, s{sT4}, 1\ns_lshl_b32 s{sT4}, s{sT4}, 12")
        I(f"buffer_store_dwordx2 v[{vN}:{vN+1}], v{vZ}, {RD_}, s{sT4} offen sc1")
    I(f"s_or_b32 s{sN0}, s{sN0}, 1\nv_mov_b32 v{vN}, s{sN0}\nv_mov_b32 v{vN+1}, s{sN1}\nv_mov_b32 v{vZ}, 0")
    early = [nonce_pub] + early
    srd(S_G, 12, 448 * 3584); srd(S_U, 14, 448 * 3584); srd(S_WS, 22, WS_SIZE)
    SA.add([4, 5, 6, 7, 12, 13, 14, 15, 20, 21, 22, 23])
    I(f"s_lshr_b32 s{sCH}, s{sW}, 2\ns_and_b32 s{sTT}, s{sW}, 3")
    sKS1, sKS2, sDC = SA.a('KS1', 'KS2', 'DC')
    I(f"s_lshl_b32 s{sT0}, s{sIDX}, 7\ns_lshl_b32 s{sT1}, s{sTY}, 10\ns_add_u32 s{sT1}, s{sT1}, s{sT0}\ns_lshl_b32 s{sT2}, s{sCH}, 1")
    emit(srd_adv(S_G, f"s{sT1}")); emit(srd_adv(S_U, f"s{sT1}"))
    I(f"s_lshr_b32 s{sKS1}, s{sT1}, 5\ns_add_u32 s{sKS1}, s{sKS1}, s{sT2}")
    I(f"s_add_u32 s{sT0}, s{sT0}, 2048\ns_lshl_b32 s{sT4}, s{sIDX}, 6\ns_add_u32 s{sT4}, s{sT4}, 3072")
    I(f"s_cmp_eq_u32 s{sTY}, 0\ns_cselect_b32 s{sT0}, s{sT0}, s{sT4}\ns_cselect_b32 s{sT2}, s{sT2}, s{sCH}")
    I(f"s_sub_u32 s{sDC}, s{sT0}, s{sT1}\ns_lshr_b32 s{sKS2}, s{sT0}, 5\ns_add_u32 s{sKS2}, s{sKS2}, s{sT2}")
    I(f"v_mul_u32_u24 v{vG}, 3584, v{T}\nv_add_u32 v{vG}, v{vG}, v{T+3}\nv_xor_b32 v{vU}, 32, v{vG}")
    vHH, vMH, vR4, vC4, vRS, tA, tB = range(AF, AF + 7)
    I(f"v_lshrrev_b32 v{vHH}, 5, v{vLANE}\nv_bfe_u32 v{vMH}, v{vLANE}, 4, 1\nv_bfe_u32 v{vR4}, v{vLANE}, 2, 2\nv_and_b32 v{vC4}, 3, v{vLANE}")
    I(f"v_bfe_u32 v{vRS}, v{vLANE}, 3, 1\nv_lshlrev_b32 v{vRS}, 6, v{vRS}")
    I(f"s_mul_i32 s{sT0}, s{sCH}, 56")
    I(f"v_lshl_add_u32 v{tA}, v{vC4}, 3, s{sT0}\nv_lshl_add_u32 v{tA}, v{vMH}, 5, v{tA}\nv_xor_b32 v{tA}, v{tA}, v{vRS}")
    I(f"v_lshl_add_u32 v{tA}, v{vR4}, 7, v{tA}\nv_lshl_add_u32 v{vLQ[0]}, v{vHH}, 10, v{tA}")
    I(f"s_lshl_b32 s{sT0}, s{sCH}, 6")
    I(f"v_lshl_add_u32 v{tA}, v{vC4}, 3, s{sT0}\nv_lshl_add_u32 v{tB}, v{vMH}, 5, v{vRS}\nv_xor_b32 v{tA}, v{tA}, v{tB}")
    I(f"v_lshl_add_u32 v{tA}, v{vR4}, 7, v{tA}\nv_lshl_add_u32 v{tA}, v{vHH}, 10, v{tA}\nv_lshl_add_u32 v{vLF[0][0]}, v{vMH}, 13, v{tA}")
    I(f"v_xor_b32 v{vLF[1][0]}, 32, v{vLF[0][0]}")
    for base in (vLQ, vLF[0], vLF[1]):
        I(f"v_add_u32 v{base[1]}, 0x10000, v{base[0]}\nv_add_u32 v{base[2]}, 0x20000, v{base[0]}")
    I(f"v_sub_u32 v{vHI}, 0, v{vHH}\nv_not_b32 v{vKEEP}, v{vHI}")
    I(f"v_lshlrev_b32 v{vSW0}, 6, v{vHH}\nv_xor_b32 v{vSW0}, v{vSW0}, v{vL16}\nv_xor_b32 v{vSW1}, 128, v{vSW0}")
    if 'noxsplit' not in EXP:
        I(f"s_lshl_b32 s{sT0}, s{sW}, 4\nv_subrev_u32 v199, s{sT0}, v199")
        xload(1, sRG)
    for v in range(7): I(f"s_mul_i32 s{sRG[v]}, s{sRG[v]}, 1792")
    vWB = [[XN, XN + 1], [XN + 2, XN + 3]]
    I(f"s_lshl_b32 s{sT0}, s{sW}, 11")
    I(f"v_lshrrev_b32 v{tA}, 1, v{T}\nv_xor_b32 v{tA}, v{tA}, v{T+1}")
    I(f"v_lshl_add_u32 v{tB}, v{T}, 7, s{sT0}\nv_lshl_add_u32 v{vWB[0][0]}, v{tA}, 4, v{tB}")
    I(f"v_xor_b32 v{vWB[1][0]}, 64, v{vWB[0][0]}\nv_add_u32 v{vWB[1][0]}, 1024, v{vWB[1][0]}")
    I(f"v_add_u32 v{vWB[0][1]}, 65536, v{vWB[0][0]}\nv_add_u32 v{vWB[1][1]}, 65536, v{vWB[1][0]}")
    fa = T + 4
    vSTW, vVAR = T + 2, [T + 3, vPD]
    I(f"v_and_b32 v{tA}, 31, v{vLANE}\nv_bfe_u32 v{tB}, v{vLANE}, 1, 3\nv_xor_b32 v{tB}, v{tB}, v{vHH}")
    I(f"s_lshl_b32 s{sT0}, s{sTT}, 12")
    I(f"v_lshl_add_u32 v{fa}, v{tA}, 7, s{sT0}\nv_lshl_add_u32 v{fa}, v{tB}, 4, v{fa}")
    for k in range(1, 4): I(f"v_xor_b32 v{fa+k}, {k*32}, v{fa}")
    I(f"s_lshl_b32 s{sT0}, s{sW}, 6\nv_lshl_add_u32 v{vSTW}, v{T}, 2, s{sT0}")
    I(f"s_lshl_b32 s{sT0}, s{sTT}, 7\nv_lshl_add_u32 v{vSTR}, v{tA}, 2, s{sT0}")
    u0, u1, u2 = T + 4, T + 5, T + 6
    FH = L([f"v_and_b32 v{u0}, 2, v{T}\nv_and_b32 v{u1}, 3, v{T+1}\nv_xor_b32 v{u0}, v{u0}, v{u1}",
            f"v_mul_u32_u24 v{vH}, 3584, v{T}\nv_lshl_add_u32 v{vH}, v{u0}, 4, v{vH}",
            f"s_lshl_b32 s{sT0}, s{sCH}, 5\nv_lshl_add_u32 v{u0}, v{u1}, 3, s{sT0}\nv_and_b32 v{u1}, 8, v{vLANE}\nv_lshlrev_b32 v{u1}, 2, v{u1}\nv_xor_b32 v{u0}, v{u0}, v{u1}",
            f"v_bfe_u32 v{u1}, v{vLANE}, 4, 1\nv_lshl_add_u32 v{u0}, v{u1}, 6, v{u0}\nv_bfe_u32 v{u1}, v{vLANE}, 2, 2\nv_lshl_add_u32 v{u0}, v{u1}, 7, v{u0}",
            f"v_lshrrev_b32 v{u1}, 5, v{vLANE}\nv_lshl_add_u32 v{u0}, v{u1}, 10, v{u0}\nv_add_u32 v{vLH[1]}, 0x10000, v{u0}\nv_add_u32 v{vLH[2]}, 0x20000, v{u0}",
            f"s_mov_b32 s{sM}, 0x0f0f0f0f\ns_mov_b32 s{sM+1}, 0x0f0f0f0f"])
    F2, F3 = [], []
    sQT = SA.a('QT')
    F2 += L(f"s_mov_b32 s{sQT}, s{sTT}\ns_lshl_b32 s{sT0}, s{sRB}, 2\ns_add_u32 s{sTT}, s{sTT}, s{sT0}")
    sQS, sQF, sH1, sH2, sHF1, sHF2 = SA.a('QS', 'QF', 'H1', 'H2', 'HF1', 'HF2')
    F2 += L(f"s_lshl_b32 s{sT0}, s{sIDX}, 1\ns_add_u32 s{sT0}, s{sT0}, s{sCH}")
    F2 += L(f"s_lshl_b32 s{sQS}, s{sT0}, 6\ns_add_u32 s{sQS}, s{sQS}, s{sTT}\ns_mul_i32 s{sQS}, s{sQS}, 3\ns_add_u32 s{sQS}, s{sQS}, s{sTY}\ns_lshl_b32 s{sQS}, s{sQS}, 11")
    F2 += L(f"s_mul_i32 s{sQF}, s{sT0}, 3\ns_add_u32 s{sQF}, s{sQF}, s{sTY}\ns_lshl_b32 s{sQF}, s{sQF}, 6\ns_add_u32 s{sQF}, s{sQF}, s{sTT}\ns_lshl_b32 s{sQF}, s{sQF}, 3\ns_add_u32 s{sQF}, s{sQF}, {F_QKV}")
    F2 += L(f"s_mul_i32 s{sT0}, s{sTT}, 144\ns_mul_i32 s{sT1}, s{sTT}, 112")
    for sh, sf, sk in ((sH1, sHF1, sKS1), (sH2, sHF2, sKS2)):
        F2 += L(f"s_add_u32 s{sh}, s{sT0}, s{sk}\ns_lshl_b32 s{sh}, s{sh}, 10\ns_add_u32 s{sh}, s{sh}, {WS_ACT}")
        F2 += L(f"s_add_u32 s{sf}, s{sT1}, s{sk}\ns_lshl_b32 s{sf}, s{sf}, 3\ns_add_u32 s{sf}, s{sf}, {F_H}")
    SA.f('KS1', 'KS2', 'RB', 'IDX', 'ROT', 'TT')
    F2 += L(f"s_mov_b32 s{sSPIN}, {SPIN_MAX}")
    sKH = sCH
    sTK, sPOS, sHB2, sKB, sLQ, sREC, sOS, sOF, sRB3, sCOL = SA.a('TK', 'POS', 'HB2', 'KB', 'LQ', 'REC', 'OS', 'OF', 'RB3', 'COL')
    sHEAD, sT3 = sT1, sT2
    F3 += L(f"s_and_b32 s{sT0}, s2, 7\ns_lshl_b32 s{sHEAD}, s{sT0}, 1\ns_add_u32 s{sHEAD}, s{sHEAD}, s{sTY}")
    F3 += L(f"s_bfe_u32 s{sT3}, s2, 0x40003\ns_lshl_b32 s{sT3}, s{sT3}, 2\ns_add_u32 s{sT3}, s{sT3}, s{sQT}")
    F3 += L(f"s_lshl_b32 s{sRB3}, s{sT0}, 2\ns_bfe_u32 s{sT0}, s2, 0x20003\ns_add_u32 s{sRB3}, s{sRB3}, s{sT0}")
    F3 += L(f"s_lshr_b32 s{sCOL}, s2, 5\ns_lshl_b32 s{sCOL}, s{sCOL}, 7")
    F3 += L(f"s_mul_i32 s{sHB2}, s{sHEAD}, {64*6144}\ns_mul_i32 s{sREC}, s{sT3}, 6144\ns_add_u32 s{sREC}, s{sREC}, s{sHB2}")
    F3 += L(f"s_mul_i32 s{sT0}, s{sKH}, {32*6144}\ns_add_u32 s{sHB2}, s{sHB2}, s{sT0}\ns_add_u32 s{sHB2}, s{sHB2}, 2048")
    F3 += L(f"s_sub_u32 s{sLQ}, s{sQT}, s{sKH}\ns_add_u32 s{sLQ}, s{sLQ}, 1\ns_mul_i32 s{sKB}, s{sKH}, 49152")
    F3 += L(f"s_mul_i32 s{sOS}, s{sT3}, 144\ns_lshl_b32 s{sT0}, s{sHEAD}, 1\ns_add_u32 s{sOS}, s{sOS}, s{sT0}\ns_lshl_b32 s{sOS}, s{sOS}, 10\ns_add_u32 s{sOS}, s{sOS}, {WS_ACT + 112*1024}")
    F3 += L(f"s_lshl_b32 s{sOF}, s{sT3}, 4\ns_add_u32 s{sOF}, s{sOF}, s{sHEAD}\ns_lshl_b32 s{sOF}, s{sOF}, 3\ns_add_u32 s{sOF}, s{sOF}, {F_O}")

    def kv_init():
        return [f"s_bfe_u32 s{sTK}, s2, 0x40003", f"s_lshl_b32 s{sTK}, s{sTK}, 2", f"s_add_u32 s{sTK}, s{sTK}, s{sLQ}",
                f"s_add_u32 s{sTK}, s{sTK}, 31", f"s_and_b32 s{sTK}, s{sTK}, 31",
                f"s_sub_u32 s{sPOS}, s{sLQ}, 1", f"s_cmp_eq_u32 s{sLQ}, 0", f"s_cselect_b32 s{sPOS}, 11, s{sPOS}",
                f"s_lshl_b32 s{sPOS}, s{sPOS}, 12", f"s_add_u32 s{sPOS}, s{sPOS}, s{sKB}"]
    F3 += L(kv_init())
    F3 += L(f"s_lshl_b32 s{sT0}, s{sKH}, 5\ns_add_u32 s{sT0}, s{sT0}, 64\ns_add_u32 s{sT4}, s{sLQ}, 3")
    F3 += L(f"v_bfe_u32 v{u1}, v{vLANE}, 3, 1\nv_sub_u32 v{vPK}, s{sT4}, v{u1}\nv_and_b32 v{vPK}, 3, v{vPK}")
    F3 += L(f"v_and_b32 v{u0}, 7, v{vLANE}\nv_lshl_add_u32 v{u0}, v{u0}, 2, s{sT0}\nv_add_u32 v{u0}, v{u0}, v{vPK}\nv_lshl_add_u32 v{u0}, v{u1}, 6, v{u0}")
    F3 += L(f"v_and_b32 v{u1}, 1, v{vLANE}\nv_lshl_add_u32 v{u1}, v{u1}, 6, s{sT3}")
    F3 += L(f"v_bfe_i32 v{vPK}, v{vLANE}, 4, 1\nv_bfi_b32 v{vPK}, v{vPK}, v{u1}, v{u0}")
    F3 += L(f"s_mul_i32 s{sT0}, s{sHEAD}, {192*8}\ns_add_u32 s{sT0}, s{sT0}, {F_QKV}\nv_lshl_add_u32 v{vPK}, v{vPK}, 3, s{sT0}")
    F3 += L(f"v_lshrrev_b32 v{u0}, 1, v{vLANE}\nv_min_u32 v{u0}, 13, v{u0}\nv_and_b32 v{u1}, 1, v{vLANE}\nv_mul_u32_u24 v{u1}, 14, v{u1}\nv_add_u32 v{u0}, v{u0}, v{u1}")
    F3 += L(f"s_mul_i32 s{sT0}, s{sRB3}, 224\ns_add_u32 s{sT0}, s{sT0}, s{sW}\ns_lshl_b32 s{sT0}, s{sT0}, 3\ns_add_u32 s{sT0}, s{sT0}, {F_H}")
    F3 += L(f"v_lshl_add_u32 v{vPH}, v{u0}, 6, s{sT0}")
    F3 += L(f"s_cmp_lg_u32 s{sKH}, 0\ns_cselect_b64 vcc, -1, 0")

    sONES, sSELLO, sSELHI = sT0, sT1, sT2
    I(f"s_mov_b32 s{sONES}, 0x3f803f80\ns_mov_b32 s{sSELLO}, 0x00003f80\ns_mov_b32 s{sSELHI}, 0x3f800000")
    a0, a1, lo, hi, nmu = XN + 4, XN + 5, XN + 8, XN + 12, XN + 6
    def red8(rs):
        for mod in ("quad_perm:[1,0,3,2]", "quad_perm:[2,3,0,1]", "row_half_mirror"):
            for r in rs: I(f"v_add_f32_dpp v{r}, v{r}, v{r} {mod} row_mask:0xf bank_mask:0xf")
    ST('setup')
    emit(early[:P('E0', 1)]); early = early[P('E0', 1):]
    for g in range(2):
        for k in range(28):
            r = XR(g, 0) + k
            if k == 1: ST(f'xa{g}')
            if k == 27: ST(f'xb{g}')
            I(f"v_dot2_f32_bf16 v{a0}, v{r}, s{sONES}, {'0' if k == 0 else 'v%d' % a0}")
            I(f"v_dot2_f32_bf16 v{a1}, v{r}, v{r}, {'0' if k == 0 else 'v%d' % a1}")
        red8([a0, a1])
        I(f"v_mul_f32 v{nmu}, {f32(-1.0/448)}, v{a0}")
        I(f"v_mul_f32 v{a1}, {f32(1.0/448)}, v{a1}\nv_fma_f32 v{a1}, -v{nmu}, v{nmu}, v{a1}\nv_max_f32 v{a1}, 0, v{a1}\nv_add_f32 v{vVAR[g]}, {f32(1e-5)}, v{a1}")
        for v in range(7):
            b = XR(g, v)
            for k in range(4):
                I(f"v_dot2_f32_bf16 v{lo+k}, v{b+k}, s{sSELLO}, v{nmu}")
                I(f"v_dot2_f32_bf16 v{hi+k}, v{b+k}, s{sSELHI}, v{nmu}")
            for k in range(4):
                I(f"v_cvt_pk_bf16_f32 v{b+k}, v{lo+k}, v{hi+k}")
            I(f"ds_write_b128 v{vWB[g][v >> 2]}, v[{b}:{b+3}] offset:{(v & 3) * 16384}")
            if early: emit([early.pop(0)])
    if 'pf2' in EXP:
        I(f"s_add_u32 s{sT0}, s{sRG[0]}, s{sDC}\ns_mul_i32 s{sT1}, s{sTY}, 896\ns_add_u32 s{sT1}, s{sT1}, s{sRQ[0]}")
        I(f"buffer_load_dword v200, v{vQ}, s[{S_C0}:{S_C0+3}], s{sT1} offen")
        I(f"buffer_load_dword v201, v{vG}, s[{S_G}:{S_G+3}], s{sRG[0]} offen\nbuffer_load_dword v202, v{vG}, s[{S_U}:{S_U+3}], s{sRG[0]} offen")
        I(f"buffer_load_dword v203, v{vG}, s[{S_G}:{S_G+3}], s{sT0} offen\nbuffer_load_dword v199, v{vG}, s[{S_U}:{S_U+3}], s{sT0} offen")
    ST('ln')

    def xread(s): return f"ds_read_b128 v[{XN+4*s}:{XN+4*s+3}], v{fa + (s & 3)} offset:{((s >> 2) & 3) * 16384}"

    def spin_check(lbl, cmp_items, reload_items):
        p.label(lbl + "_chk")
        emit(cmp_items)
        I(f"s_cbranch_scc0 {lbl}_spin")
        p.label(lbl + "_ok")
        def ool():
            p.label(lbl + "_spin")
            I(f"s_sub_u32 s{sSPIN}, s{sSPIN}, 1\ns_cmp_lt_i32 s{sSPIN}, 1\ns_cbranch_scc1 {lbl}_ok")
            I("s_sleep 4")
            emit(reload_items)
            I(f"s_waitcnt vmcnt(0)\ns_branch {lbl}_chk")
        outofline.append(ool)

    nonce_load = f"buffer_load_dwordx2 v[{vN}:{vN+1}], v{vZ}, {RD_}, 0 offen sc1"
    def nonce_check(lbl):
        spin_check(lbl, [f"v_readfirstlane_b32 s{sN0}, v{vN}", f"s_cmp_lg_u32 s{sN0}, 0"], [nonce_load])
        I(f"v_mov_b32 v{vN+2}, v{vN}\nv_mov_b32 v{vN+3}, v{vN+1}")

    def flag_store(soff, tag, off=0, two=False):
        st = f"buffer_store_dwordx4 v[{vN}:{vN+3}]" if two else f"buffer_store_dwordx2 v[{vN}:{vN+1}]"
        return Atom((lambda: None if 'nofw' in EXP else p.waitvm(lambda tg, env: tg == tag), "s_mov_b64 exec, 1",
                     f"{st}, v{vZ}, {R}, s{soff} offen offset:{off} sc1", "s_mov_b64 exec, -1"))

    def poll_load(va): return f"buffer_load_dwordx2 v[{vPD}:{vPD+1}], v{va}, {R}, 0 offen sc1"
    def poll_check(lbl, va, mask=None):
        if 'no' + lbl[2:4] in EXP: return
        c = [f"v_cmp_ne_u64 s[{sN0}:{sN1}], v[{vPD}:{vPD+1}], v[{vN}:{vN+1}]"]
        if mask is None: c += [f"s_cmp_eq_u64 s[{sN0}:{sN1}], 0"]
        else: c += [f"s_and_b32 s{sN0}, s{sN0}, {mask}", f"s_cmp_eq_u32 s{sN0}, 0"]
        spin_check(lbl, c, [poll_load(va)])

    G, SB, O, VF, PF, Q, KF, GB, TMP, GA = 16, 80, 96, 112, 120, 128, 136, 144, 176, 208

    def kv_group(st):
        tag = ('KV', st)
        pre = [f"s_mul_i32 s{sT0}, s{sTK}, 6144", f"s_add_u32 s{sT4}, s{sTK}, 31", f"s_add_u32 s{sT0}, s{sT0}, s{sHB2}",
               f"s_and_b32 s{sT4}, s{sT4}, 31", f"s_mul_i32 s{sT4}, s{sT4}, 6144", f"s_add_u32 s{sT4}, s{sT4}, s{sHB2}",
               f"s_add_u32 s{sTK}, s{sTK}, 4", f"s_and_b32 s{sTK}, s{sTK}, 31"]
        BIG = 0x7f000000
        if st == -3:
            pre += [Atom((f"s_cmp_eq_u32 s{sLQ}, 0", f"s_cselect_b32 s{sT0}, {BIG}, s{sT0}")), Atom((f"s_cmp_lt_u32 s{sLQ}, 2", f"s_cselect_b32 s{sT4}, {BIG}, s{sT4}"))]
        if st == 5:
            pre += [Atom((f"s_cmp_lg_u32 s{sLQ}, 0", f"s_cselect_b32 s{sT0}, {BIG}, s{sT0}")), Atom((f"s_cmp_ge_u32 s{sLQ}, 2", f"s_cselect_b32 s{sT4}, {BIG}, s{sT4}"))]
        d = [Atom((f"s_mov_b32 m0, s{sPOS}",
                   (f"buffer_load_dwordx4 v{vL16}, {R}, s{(sT0, sT4)[k >> 1]} offen offset:{k*1024} sc1 lds", tag))) for k in range(4)]
        post = [f"s_add_u32 s{sPOS}, s{sPOS}, 16384", f"s_sub_u32 s{sT0}, s{sPOS}, 49152",
                Atom((f"s_cmp_ge_i32 s{sT0}, s{sKB}", f"s_cselect_b32 s{sPOS}, s{sT0}, s{sPOS}"))]
        return pre, d, post

    def gelu(c, soff, off, tag, tmp=T + 4):
        o = []
        for h in range(2):
            idx = [4 * h + k for k in range(4)]
            t = [tmp + k for k in range(4)]
            for k, j in enumerate(idx): o.append(f"v_mul_f32 v{t[k]}, v{c+j}, v{c+j}")
            for k, j in enumerate(idx): o.append(f"v_fma_f32 v{t[k]}, v{t[k]}, v{vC2P}, v{vC1P}")
            for k, j in enumerate(idx): o.append(f"v_mul_f32 v{t[k]}, v{t[k]}, v{c+j}")
            for k, j in enumerate(idx): o.append(f"v_exp_f32 v{t[k]}, v{t[k]}")
            for k, j in enumerate(idx): o.append(f"v_mul_f32 v{c+j}, v{c+j}, v{c+8+j}")
            for k, j in enumerate(idx): o.append(f"v_fma_f32 v{t[k]}, v{t[k]}, v{vIF2}, v{vIF2}")
            for k, j in enumerate(idx): o.append(f"v_rcp_f32 v{t[k]}, v{t[k]}")
            for k, j in enumerate(idx): o.append(f"v_mul_f32 v{c+j}, v{c+j}, v{t[k]}")
        for k in range(4): o.append(f"v_cvt_pk_bf16_f32 v{c+8+k}, v{c+2*k}, v{c+2*k+1}")
        o.append((f"buffer_store_dwordx4 v[{c+8}:{c+11}], v{vL16}, {R}, s{soff} offen offset:{off} sc1", tag))
        return o

    def qkv_epi(c, which, tag):
        o = []
        fm = vF
        if which == 0:
            fm = T + 3
            o.append(f"v_mul_f32 v{fm}, {f32(QSCALE)}, v{vF}")
        else:
            o.append(f"v_and_b32 v{T+3}, 0x3f803f80, v{vHI}")
        for k in range(8):
            o += [f"v_mul_f32 v{c+2*k}, v{c+2*k}, v{fm}", f"v_mul_f32 v{c+2*k+1}, v{c+2*k+1}, v{fm}",
                  f"v_cvt_pk_bf16_f32 v{c+k}, v{c+2*k}, v{c+2*k+1}"]
            if k == 3:
                o.append((f"buffer_store_dwordx4 v[{c}:{c+3}], v{vSW0 if which == 2 else vL16}, {R}, s{sQS} offen offset:{2048 if which == 2 else 0} sc1", tag))
        for k in (6, 7):
            o.append(f"v_and_b32 v{c+k}, v{c+k}, v{vKEEP}" if which == 0 else f"v_and_or_b32 v{c+k}, v{c+k}, v{vKEEP}, v{T+3}")
        o.append((f"buffer_store_dwordx4 v[{c+4}:{c+7}], v{vSW1 if which == 2 else vL16}, {R}, s{sQS} offen offset:{3072 if which == 2 else 1024} sc1", tag))
        return o

    def qloads():
        return [f"buffer_load_dwordx4 v[{Q+4*k}:{Q+4*k+3}], v{vL16}, {R}, s{sREC} offen offset:{1024*k} sc1" for k in range(4)]

    nbar = [0]
    def cbar(for_lag, need=None):
        nbar[0] += 1
        l = f"L_sk{nbar[0]}"
        I(f"s_cbranch_vcc{'z' if for_lag else 'nz'} {l}")
        alts = p.cond("kh", 2)
        with alts[1 if for_lag else 0]:
            if need: p.waitvm(need)
            I("s_waitcnt lgkmcnt(0)\ns_barrier")
        p.label(l)

    STAGES_T = [[0, 3, 6, 9, 13, 17, 21, 25, 29, 35], [0, 3, 6, 10, 14, 18, 22, 26, 30, 35]]
    D, NB = 4, 6
    LA = P('LA', 36)
    PM = 116

    S_W, S_O = S_C0, S_G
    RW = f"s[{S_W}:{S_W+3}]"
    sFLAG, sAB, sGN, sGW, sWM0, sGEMM, sR8 = sRQ
    sE0 = sRG[0]
    WLDS = 98304
    need0 = lambda tag, env: tag == ('KV', -3)
    sc = [f"s_mov_b32 s{S_W}, s16", f"s_mov_b32 s{S_W+1}, s17", f"s_mov_b32 s{S_W+2}, {1792*896}", f"s_mov_b32 s{S_W+3}, 0x00020000",
          f"s_mov_b32 s{S_O}, s18", f"s_mov_b32 s{S_O+1}, s19", f"s_mov_b32 s{S_O+2}, {2048*896}", f"s_mov_b32 s{S_O+3}, 0x00020000",
          f"s_cmp_lt_u32 s2, 224", f"s_cselect_b32 s{sGEMM}, 1, 0",
          f"s_bfe_u32 s{sT1}, s2, 0x20003", f"s_lshr_b32 s{sT2}, s2, 5", f"s_lshl_b32 s{sR8}, s{sT1}, 1", f"s_add_u32 s{sR8}, s{sR8}, s{sT2}",
          f"s_add_u32 s{sGN}, s{sT1}, s{sT2}", f"s_and_b32 s{sGN}, s{sGN}, 3",
          f"s_sub_u32 s{sT2}, s{sR8}, 10", f"s_cmp_ge_u32 s{sR8}, 10", f"s_cselect_b32 s{sR8}, s{sT2}, s{sR8}", f"s_add_u32 s{sR8}, s{sR8}, 4",
          f"s_lshl_b32 s{sGW}, s{sGN}, 3", f"s_add_u32 s{sGW}, s{sGW}, s{sW}", f"s_mul_i32 s{sGW}, s{sGW}, {16*896}", f"s_add_u32 s{sGW}, s{sGW}, s{sCOL}",
          f"s_lshl_b32 s{sGN}, s{sGN}, 13",
          f"s_mul_i32 s{sAB}, s{sRB3}, {2*144*1024}", f"s_add_u32 s{sAB}, s{sAB}, {WS_ACT}", f"s_lshl_b32 s{sT1}, s{sW}, 10", f"s_add_u32 s{sAB}, s{sAB}, s{sT1}",
          f"s_add_u32 s{sGN}, s{sGN}, s{sAB}",
          f"s_lshl_b32 s{sWM0}, s{sW}, 13", f"s_add_u32 s{sWM0}, s{sWM0}, {WLDS}", f"s_mov_b32 s{sFLAG}, 0"]

    wd_prefetch = [] if 'pf3' not in EXP else [
        f"v_lshrrev_b32 v{T+4}, 4, v{vLANE}", f"v_and_b32 v{T+5}, 15, v{vLANE}", f"v_lshl_add_u32 v{T+4}, v{T+4}, 9, v{T+5}",
        f"v_mul_u32_u24 v{T+4}, 896, v{T+4}",
        f"s_bfe_u32 s{sT1}, s2, 0x20003", f"s_lshl_b32 s{sT1}, s{sT1}, 3", f"s_add_u32 s{sT1}, s{sT1}, s{sW}",
        f"s_mul_i32 s{sT1}, s{sT1}, {16*896}", f"s_add_u32 s{sT1}, s{sT1}, s{sCOL}",
        f"s_mov_b32 s{S_D}, s16", f"s_mov_b32 s{S_D+1}, s17", f"s_mov_b32 s{S_D+2}, {1792*896}",
        f"buffer_load_dword v{vSTR}, v{T+4}, {RD_}, s{sT1} offen",
        f"v_mul_u32_u24 v{T+5}, 896, v{T+5}", f"s_bfe_u32 s{sT1}, s2, 0x20003", f"s_lshl_b32 s{sT1}, s{sT1}, 3", f"s_add_u32 s{sT1}, s{sT1}, s{sW}",
        f"s_mul_i32 s{sT1}, s{sT1}, {14*896}", f"s_add_u32 s{sT1}, s{sT1}, s{sCOL}",
        f"s_mov_b32 s{S_D}, s8", f"s_mov_b32 s{S_D+1}, s9", f"s_mov_b32 s{S_D+2}, {448*896}",
        f"buffer_load_dword v{vPD+1}, v{T+5}, {RD_}, s{sT1} offen"]

    def phase1(ty):
        if ty == 0: blocks = [('Q', 0)] * 7 + [('G', 1), ('U', 1)] * 7 + [('G', 2), ('U', 2)] * 7
        else: blocks = [('Q', 0)] * 7 + [('Q', 1)] * 7 + [('G', 2), ('U', 2)] * 7 + [('H', 1)] * 7
        STAGES = STAGES_T[ty]
        slot_of = lambda b: SLOT[ty][b]
        vidx = []; cnt = {}
        for kb in blocks:
            vidx.append(cnt.get(kb, 0)); cnt[kb] = vidx[-1] + 1
        M = []
        b = 0
        while b < 35:
            kind, arg = blocks[b]
            off = slot_of(b) * 8192
            for s_ in range(4):
                ks = 4 * vidx[b] + s_
                im = (off & 0xffff) + s_ * 2048
                if kind == 'Q': M.append((b, b, vLQ[off >> 16], im, ACC1 + 16 * arg, ks))
                elif kind == 'H': M.append((b, b, vLH[off >> 16], im, ACC1 + 32, ks))
                else:
                    acc = ACC1 + 16 if arg == 1 else ACC2
                    for t in range(2): M.append((b, b + 1, vLF[t][off >> 16], im, acc + 16 * t, ks))
            b += 2 if kind == 'G' else 1
        assert len(M) == 140
        first_m, last_m = {}, {}
        for m, e in enumerate(M):
            for bb in (e[0], e[1]):
                first_m.setdefault(bb, m); last_m[bb] = m
        stage_first = {first_m[sb]: i for i, sb in enumerate(STAGES[:-1])}
        owner = {sl: ('X', sl // 2) for sl in range(14)}
        for bb in range(6): owner[slot_of(bb)] = ('W', bb)
        xfree = set(); nxt = [6]
        dmaq, fillq = [], []
        done = [-1]
        def release(m_done): done[0] = m_done
        def pace(m):
            while nxt[0] < 35:
                bb = nxt[0]
                o = owner[slot_of(bb)]
                if not ((o[1] in xfree) if o[0] == 'X' else last_m[o[1]] <= done[0]): break
                if first_m[bb] - m > LA: break
                owner[slot_of(bb)] = ('W', bb)
                kind, arg = blocks[bb]
                if kind == 'H': assert m > 58 and FH[-1] not in fillq
                if ty == 1 and bb == 7: dmaq.extend(srd_adv(S_C0, 896))
                if bb == (21, 28)[ty]: dmaq.extend(srd_adv(S_G, f"s{sDC}") + srd_adv(S_U, f"s{sDC}"))
                dmaq.extend(dma_block(bb, slot_of(bb), kind, vidx[bb]))
                nxt[0] += 1
        def rd(r):
            e = M[r]; d = AF + 4 * (r % NB)
            return [f"ds_read_b64_tr_b16 v[{d+2*jh}:{d+2*jh+1}], v{e[2]} offset:{e[3] + jh*512}" for jh in range(2)]
        side = {}
        def at(m, items): side.setdefault(m, []).extend(items)
        urg = {}
        def atu(m, items): urg.setdefault(m, []).extend(items)
        at(4, [f"ds_write_b32 v{vSTW}, v{vVAR[0]}", f"ds_write_b32 v{vSTW}, v{vVAR[1]} offset:32"])
        at(12, [nonce_load, f"ds_read_b32 v{vIF2}, v{vSTR}"])
        at(5, F2)
        at(20, [f"v_rsq_f32 v{vF}, v{vIF2}", f"v_mul_f32 v{vC1P}, {f32(GC1)}, v{vF}", f"v_mul_f32 v{vC2P}, v{vF}, v{vF}",
                f"v_mul_f32 v{vC2P}, v{vC2P}, v{vF}", f"v_mul_f32 v{vC2P}, {f32(GC2)}, v{vC2P}"])
        at(29, qkv_epi(ACC1, ty, 'QS'))
        atu(48, [lambda: nonce_check(f"L_non{ty}")])
        atu(P('QF1', 52), [flag_store(sQF, 'QS')])
        burst = {}
        if ty == 0:
            at(85, gelu(ACC1 + 16, sH1, 0, 'HS1') + gelu(ACC1 + 32, sH1, 1024, 'HS1'))
            atu(P('HF1', 130), [flag_store(sHF1, 'HS1', two=True)])
        else:
            at(57, qkv_epi(ACC1 + 16, 2, 'QS2'))
            atu(P('QF2', 80), [flag_store(sQF, 'QS2', off=512)])
            at(113, gelu(ACC2, sH1, 0, 'HS2'))
        at(30, F3)
        at(58, FH if ty else [])
        xq = list(range(8, 28))
        I(xread(0)); emit(rd(0))
        for k in range(1, D): I(xread(k)); emit(rd(k))
        for k in range(D, 8): I(xread(k))
        bars = sorted([(x if x in burst else x - D) for x in stage_first if x > 0])
        bar_m = 0
        rd_next = D
        for m in range(140):
            def stage_sync(r, staggered):
                i = stage_first[r]; hi = STAGES[i + 1]
                assert nxt[0] >= hi and not any(f"('W', {bb})" in str(x) for x in dmaq for bb in range(hi)), (ty, m, hi, nxt[0])
                if len(xfree) < 7:
                    k = (28 - len(xq)) // 4
                    p.waitreg(f"v[{XN+16*k-4}:{XN+16*k-1}]")
                    xfree.update(range(k))
                need = lambda tag, env, hi=hi: tag[0] == 'W' and tag[1] < hi
                if staggered: return need
                p.waitvm(need)
                I("s_barrier")
            if m == 3:
                p.waitreg(f"v[{XN+28}:{XN+31}]")
                I("s_barrier")
                xfree.update((0, 1)); release(-1)
            if m in burst:
                bl = burst[m]
                need = stage_sync(m, True)
                cbar(True, need)
                I(f"s_setprio {P('BPRIO', 0)}")
                emit(bl[:-P('BTAIL', 21)])
                cbar(False, need)
                while rd_next < m + D: emit(rd(rd_next)); rd_next += 1
                emit(bl[-P('BTAIL', 21):])
                release(m - 1); bar_m = m
            elif (m + D) in stage_first and (m + D) not in burst:
                stage_sync(m + D, False)
                release(m - 1); bar_m = m
            nb_ = min([x for x in bars if x > m] + [140])
            lv = lambda mm: (4 * (mm - bar_m)) // (nb_ - bar_m)
            if m == bar_m or lv(m) != lv(m - 1): I(f"s_setprio {3 - lv(m)}")
            if m == PM:
                ST('pa0'); poll_check(f"L_pa{ty}", vPK); ST('pa1')
                a_, b_, c_ = kv_group(-3); dmaq += a_ + b_ + c_
                dmaq += qloads()
            lim = min([x for x in burst if x > m] + [140])
            if rd_next <= m + D and rd_next < lim: emit(rd(rd_next)); rd_next += 1
            budget = 2 if (m & 1) == 0 else 3
            if len(fillq) + len(dmaq) > 12: budget += P('XB', 4)
            if m >= 3:
                for _ in range(3):
                    if xq:
                        k = xq.pop(0)
                        if k == 16: emit([f"v_add_u32 v{fa+j}, 65536, v{fa+j}" for j in range(4)])
                        I(xread(k))
            e = M[m]; a_ = AF + 4 * (m % NB); c = e[4]; ks = e[5]
            if (m & 1) == 0 and m + 1 < rd_next and m >= 28:
                a2 = AF + 4 * ((m + 1) % NB)
                p.waitreg(f"v[{a2}:{a2+3}]")
            cin = '0' if ks == 0 else f"v[{c}:{c+15}]"
            I(f"v_mfma_f32_32x32x16_bf16 v[{c}:{c+15}], v[{a_}:{a_+3}], v[{XN+4*ks}:{XN+4*ks+3}], {cin}")
            fillq += side.get(m, [])
            for it in urg.get(m, []):
                assert not any('buffer_store' in str(x) for x in fillq), ("stores still queued", ty, m)
                emit([it]); budget -= 2
            pace(m)
            if m == PM - 12:
                assert F3[-1] not in fillq
                dmaq.append(poll_load(vPK))
            nv = False
            while budget > 0:
                it = None
                for q in (dmaq, fillq):
                    if q and not (nv and 'buffer_' in str(q[0])):
                        it = q.pop(0); break
                if it is None: break
                nv = nv or 'buffer_' in str(it)
                emit([it]); budget -= len(it) if isinstance(it, Atom) else 1
            if m == 83: ST('p1')
            ST(f'm{m}')
        assert nxt[0] == 35
        emit(fillq); emit(dmaq)
        ST('p2')
        if ty == 0: ge = gelu(ACC2, sH2, 0, 'HS2') + gelu(ACC2 + 16, sH2, 1024, 'HS2')
        else: ge = gelu(ACC2 + 16, sH1, 1024, 'HS2') + gelu(ACC1 + 32, sH2, 0, 'HS2')
        kv = []
        for st in (-2, -1):
            a_, b_, c_ = kv_group(st); kv += a_ + b_ + c_
        k0 = P('KV0', 60)
        emit(interleave([[x] for x in ge[:k0]], kv) + interleave([[x] for x in ge[k0:]], sc))

    p.waitvm(lambda tag, env: tag[0] == 'W' and tag[1] < 3)
    I("s_waitcnt lgkmcnt(0)\ns_barrier")
    ST('barA')
    I(f"s_cmp_lg_u32 s{sTY}, 0\ns_cbranch_scc1 L_p1C")
    altA, altC = p.cond("type", 2)
    with altA:
        phase1(0)
        I("s_branch L_fin")
    with altC:
        p.label("L_p1C")
        phase1(1)
    p.label("L_fin")
    vK, vV0, vV1, vT0, vT1, vT2, vT3, vM, vWO, vGA, vGA1, vXO, vL16B = 14, 2, 3, 4, 5, 6, 7, 8, 9, 10, 11, 12, 13
    XRS = 224

    def smfma(half):
        cin = '0' if half == 0 else f"v[{SB}:{SB+15}]"
        return f"v_mfma_f32_32x32x16_bf16 v[{SB}:{SB+15}], v[{KF+4*half}:{KF+4*half+3}], v[{Q+4*half}:{Q+4*half+3}], {cin}"

    ST('gelu')
    I(smfma(0)); I(smfma(1))
    I(f"v_lshrrev_b32 v{vT0}, 3, v{vLANE}\nv_and_b32 v{vT1}, 7, v{vLANE}")
    I(f"v_lshlrev_b32 v{vT2}, 1, v{vT0}\nv_and_b32 v{vT2}, 4, v{vT2}\nv_xor_b32 v{vT2}, v{vT2}, v{vT1}")
    I(f"v_mul_u32_u24 v{vWO}, 896, v{vT0}\nv_lshl_add_u32 v{vWO}, v{vT2}, 4, v{vWO}")
    vWO2 = T
    I(f"v_add_u32 v{vWO2}, {8*896 - 1024}, v{vWO}")
    I(f"v_add_u32 v{vL16B}, {144*1024}, v{vL16}")
    I(f"v_and_b32 v{vT0}, 3, v{vLANE}\nv_lshlrev_b32 v{vGA}, 3, v{vT0}")
    I(f"v_bfe_u32 v{vT0}, v{vLANE}, 4, 1\nv_lshl_add_u32 v{vGA}, v{vT0}, 5, v{vGA}")
    I(f"v_bfe_u32 v{vT1}, v{vLANE}, 3, 1\nv_lshl_add_u32 v{vGA}, v{vT1}, 6, v{vGA}")
    I(f"v_bfe_u32 v{vT3}, v{vLANE}, 2, 2\nv_lshl_add_u32 v{vGA}, v{vT3}, 7, v{vGA}")
    I(f"v_lshrrev_b32 v{vT2}, 5, v{vLANE}\nv_lshl_add_u32 v{vGA}, v{vT2}, 9, v{vGA}")
    I(f"v_add_u32 v{vGA}, s{sWM0}, v{vGA}\nv_xor_b32 v{vGA1}, 64, v{vGA}")
    I(f"v_add_u32 v{vK}, s{sKB}, v{vL16}")
    I(f"v_and_b32 v{vT1}, 1, v{vLANE}\nv_xor_b32 v{vT2}, v{vT2}, v{vT1}")
    I(f"v_mul_u32_u24 v{vV0}, {1024+128}, v{vT0}")
    I(f"v_lshl_add_u32 v{vV0}, v{vT1}, 9, v{vV0}\nv_lshl_add_u32 v{vV0}, v{vT2}, 6, v{vV0}\nv_lshl_add_u32 v{vV0}, v{vT3}, 4, v{vV0}")
    I(f"v_bfe_u32 v{vT1}, v{vLANE}, 1, 1\nv_lshl_add_u32 v{vV0}, v{vT1}, 3, v{vV0}")
    I(f"v_add_u32 v{vV0}, s{sKB}, v{vV0}\nv_add_u32 v{vV0}, 2048, v{vV0}\nv_xor_b32 v{vV1}, 128, v{vV0}")

    def set_pads():
        I(f"v_sub_f32 v{vT0}, 0, v{vM}")
        I(f"v_and_b32 v{vT1}, 0xffff0000, v{vT0}\nv_sub_f32 v{vT0}, v{vT0}, v{vT1}")
        I(f"v_and_b32 v{vT2}, 0xffff0000, v{vT0}\nv_sub_f32 v{vT0}, v{vT0}, v{vT2}")
        I(f"v_lshrrev_b32 v{vT1}, 16, v{vT1}\nv_or_b32 v{vT1}, v{vT1}, v{vT2}\nv_lshrrev_b32 v{vT0}, 16, v{vT0}")
        I(f"v_and_b32 v{vT1}, v{vT1}, v{vHI}\nv_and_b32 v{vT0}, v{vT0}, v{vHI}")
        I(f"v_and_or_b32 v{Q+6}, v{Q+6}, v{vKEEP}, v{vT1}\nv_and_or_b32 v{Q+7}, v{Q+7}, v{vKEEP}, v{vT0}")

    def max16(c, first):
        o = []
        if first:
            o += [f"v_max3_f32 v{vM}, v{c}, v{c+1}, v{c+2}", f"v_max_f32 v{vM}, v{vM}, v{c+15}"]
            ks = range(3, 15, 2)
        else:
            ks = range(0, 16, 2)
        return o + [f"v_max3_f32 v{vM}, v{vM}, v{c+k}, v{c+k+1}" for k in ks]

    def cross_max():
        I(f"v_mov_b32 v{vT0}, v{vM}\nv_permlane32_swap_b32 v{vT0}, v{vM}\nv_max_f32 v{vM}, v{vM}, v{vT0}")

    emit(max16(SB, True)); cross_max(); set_pads()

    def gw_issue(n):
        slot, tag = n & 3, ('GW', n)
        lo_, hi_ = (0, 4) if n < 4 else (4, 14)
        m0 = f"s_add_u32 m0, s{sWM0}, {slot*2048}"
        d = [Atom((m0, (f"buffer_load_dwordx4 v{vWO}, {RW}, s{sGW} offen lds", tag))),
             Atom((m0, (f"buffer_load_dwordx4 v{vWO2}, {RW}, s{sGW} offen offset:1024 lds", tag)))]
        post = []
        if n == 3:
            post = [f"s_lshl_b32 s{sGW}, s{sR8}, 3", f"s_add_u32 s{sGW}, s{sGW}, s{sW}", f"s_mul_i32 s{sGW}, s{sGW}, {16*896}", f"s_add_u32 s{sGW}, s{sGW}, s{sCOL}"]
        elif n < 13:
            post = [f"s_add_u32 s{sGW}, s{sGW}, {128*896}", f"s_sub_u32 s{sT2}, s{sGW}, {(hi_-lo_)*128*896}",
                    Atom((f"s_cmp_ge_u32 s{sGW}, {hi_*128*896}", f"s_cselect_b32 s{sGW}, s{sT2}, s{sGW}"))]
        return d + post

    def gb_issue(n):
        b = GB + 8 * (n & 3)
        lo_, hi_ = (0, 4) if n < 4 else (4, 14)
        d = [f"buffer_load_dwordx4 v[{b}:{b+3}], v{vL16}, {R}, s{sGN} offen sc1", f"buffer_load_dwordx4 v[{b+4}:{b+7}], v{vL16B}, {R}, s{sGN} offen sc1"]
        post = []
        if n == 3: post = [f"s_lshl_b32 s{sGN}, s{sR8}, 13", f"s_add_u32 s{sGN}, s{sGN}, s{sAB}"]
        elif n < 13:
            post = [f"s_add_u32 s{sGN}, s{sGN}, 8192", f"s_sub_u32 s{sT1}, s{sGN}, s{sAB}", f"s_sub_u32 s{sE0}, s{sGN}, {(hi_-lo_)*8192}",
                    Atom((f"s_cmp_eq_u32 s{sT1}, {hi_*8192}", f"s_cselect_b32 s{sGN}, s{sE0}, s{sGN}"))]
        return d + post

    def wo_issue(i, m0val):
        tag = ('GW', 14 + i)
        return [f"s_add_u32 s{sT2}, s{sGW}, {112*896*i}", m0val,
                (f"buffer_load_dwordx4 v{vWO}, {RW}, s{sT2} offen lds", tag),
                (f"buffer_load_dwordx4 v{vWO2}, {RW}, s{sT2} offen offset:1024 lds", tag)]

    def g_reads(off, ga, a0_=None, a1_=None):
        return [f"ds_read_b64_tr_b16 v[{ga+4*ct+2*jh}:{ga+4*ct+2*jh+1}], v{(a0_ or vGA, a1_ or vGA1)[ct]} offset:{off + jh*1024}"
                for ct in range(2) for jh in range(2)]

    def g_mfma(ga, gb, ct, tt, first=False):
        c = G + 16 * (2 * ct + tt)
        cin = '0' if first else f"v[{c}:{c+15}]"
        return f"v_mfma_f32_32x32x16_bf16 v[{c}:{c+15}], v[{ga+4*ct}:{ga+4*ct+3}], v[{gb+4*tt}:{gb+4*tt+3}], {cin}"

    def kread(t): return [f"ds_read_b128 v[{KF+4*h}:{KF+4*h+3}], v{vK} offset:{(t % 12)*4096 + h*1024}" for h in range(2)]
    def vread(t, u):
        return [f"ds_read_b64_tr_b16 v[{VF+4*u+2*jh}:{VF+4*u+2*jh+1}], v{(vV0, vV1)[jh]} offset:{((t + 1) % 12)*4096 + u*256}" for jh in range(2)]
    def pv(t, first=False):
        cin = '0' if first else f"v[{O}:{O+15}]"
        return f"v_mfma_f32_32x32x16_bf16 v[{O}:{O+15}], v[{VF+4*t}:{VF+4*t+3}], v[{PF+4*t}:{PF+4*t+3}], {cin}"

    def vphase():
        emit([f"v_exp_f32 v{SB+k}, v{SB+k}" for k in range(16)])
        emit([f"v_cvt_pk_bf16_f32 v{PF+k}, v{SB+2*k}, v{SB+2*k+1}" for k in range(8)])

    T0 = P('T0', 10)
    NIN = (32 - T0) // 2

    def grd(n):
        p.waitvm(lambda tag, env: tag[0] == 'GW' and tag[1] <= n)
        emit(g_reads((n & 3) * 2048, GA + 8 * (n & 1)))

    def late_flags():
        return [Atom((f"s_cmp_eq_u32 s{sTY}, 0", f"s_cselect_b32 s{sHF1}, s{sHF2}, s{sHF1}")),
                flag_store(sHF1, 'HS2', two=True), flag_store(sHF2, 'HS2')]

    def attention(gemm):
        S = {k: [] for k in ('kv', 'gw', 'gb', 'misc')}
        def add(stream, e, d, key, items):
            for it in items: S[stream].append((e, d, key, it))
        vpre = [[] for _ in range(34)]
        for st in range(0, 6):
            a_, b_, c_ = kv_group(st)
            add('kv', 4 * st + 3, 4 * st + 10, ('KV', st), a_ + b_ + c_)
        if gemm:
            PB, LF = T0 - P('PBD', 5), P('LF', 4)
            for n in range(14):
                use = T0 + 2 * n
                ew = (0, 3, 4, 5)[n] if n < 4 else use - 7
                eb = PB + (1, 3, 4, 5)[n] if n < 4 else use - 6
                add('gw', ew, use - 1, ('GW', n), gw_issue(n))
                add('gb', eb, use, ('GB', n), gb_issue(n))
            tl = T0 + 2
            ms = sorted([(PB - 2, [poll_load(vPH)], 'P1'), (LF, late_flags(), 'LF'), (tl - 3, [poll_load(vPH)], 'P2')], key=lambda x: x[0])
            for e, items, key in ms: add('misc', e, e, key, items)
            assert tl - 3 > PB
            vpre[PB] += [lambda: chk('P1'), lambda: ST('pb0'), lambda: poll_check("L_pb", vPH, 0xff), lambda: ST('pb1')]
            vpre[tl - 1] += [lambda: chk('P2'), lambda: ST('pc0'), lambda: poll_check("L_pc", vPH), lambda: ST('pc1')]
        isvm = lambda it: 'buffer_' in str(it)
        def chk(key):
            assert not any(x[2] == key and isvm(x[3]) for q in S.values() for x in q), ("not issued in time", key)
        p.waitvm(need0)
        I("s_waitcnt lgkmcnt(0)\ns_barrier")
        emit(kread(0))
        if gemm: ST('astart')
        for t in range(32):
            st, i = t >> 2, t & 3
            n = (t - T0) >> 1
            g_on = gemm and t >= T0
            def gap(budget, vm_ok):
                while budget > 0:
                    cand = [q for q in S.values() if q and q[0][0] <= t and (vm_ok or not isvm(q[0][3]))]
                    if not cand: break
                    q = min(cand, key=lambda q: (q[0][1], not isvm(q[0][3])))
                    it = q.pop(0)[3]
                    if isvm(it): vm_ok = False
                    emit([it]); budget -= len(it) if isinstance(it, Atom) else 1
            busy = len([x for q in S.values() for x in q if x[0] <= t and isvm(x[3])]) > 2
            needkv = lambda tag, env, st=st: tag[0] == 'KV' and tag[1] <= st - 2
            if i == 2:
                chk(('KV', st - 2)); cbar(True, needkv)
            I(f"s_setprio {3 - ((i - 2) & 3)}")
            I(smfma(0)); gap(5, True)
            I(smfma(1))
            if t < 31: emit(kread(t + 1))
            gap(3, not g_on)
            if t > 0: I(pv(0, t == 1))
            emit(vread(t, 0)); gap(3, busy or not g_on)
            if t > 0: I(pv(1))
            emit(vread(t, 1))
            if g_on:
                gap(3, False)
                chk(('GB', n))
                ga, gb = GA + 8 * (n & 1), GB + 8 * (n & 3)
                I(g_mfma(ga, gb, t & 1, 0, n == 0))
                gap(5, True)
                I(g_mfma(ga, gb, t & 1, 1, n == 0))
            if gemm and t >= T0 - 1 and ((t - T0) & 1) == 1 and n + 1 < 14:
                chk(('GW', n + 1)); grd(n + 1)
            if i == 2: cbar(False, needkv)
            emit(vpre[t])
            vphase()
            if gemm: ST(f"t{t}")
        for q in S.values(): emit([x[3] for x in q])

    I(f"s_cmp_eq_u32 s{sGEMM}, 0\ns_cbranch_scc1 L_plain0")
    ag, an = p.cond("gemm", 2)
    with ag:
        attention(True)
        I("s_branch L_attn_done")
    with an:
        p.label("L_plain0")
        emit(late_flags())
        p.label("L_plain")
        attention(False)
    p.label("L_attn_done")
    I(pv(0)); I(pv(1))
    I("s_setprio 0")
    ST('aend')
    FLAGS = 16384
    I(f"s_lshl_b32 s{sT0}, s{sW}, 2\ns_add_u32 s{sT0}, s{sT0}, {FLAGS}\nv_mov_b32 v{vT2}, s{sT0}")
    I(f"s_lshl_b32 s{sT0}, s{sQT}, 12\nv_add_u32 v{vT3}, s{sT0}, v{vL16}")
    I("s_waitcnt lgkmcnt(0)\ns_barrier")
    I(f"v_and_b32 v{vT0}, v{O+12}, v{vHI}")
    I(f"v_cmp_ngt_f32 vcc, {f32(2.0**30)}, v{vT0}")
    I(f"s_cmp_lg_u64 vcc, 0\ns_cselect_b32 s{sT0}, 1, 0\nv_mov_b32 v{vT1}, s{sT0}")
    I(f"ds_write_b32 v{vT2}, v{vT1}")
    I(f"s_cmp_eq_u32 s{sKH}, 0\ns_cbranch_scc1 L_nowr")
    a0_, a1_ = p.cond("kh", 2)
    with a1_:
        for k in range(4): I(f"ds_write_b128 v{vT3}, v[{O+4*k}:{O+4*k+3}] offset:{k*1024}")
    p.label("L_nowr")
    I(f"v_and_b32 v{vT1}, 7, v{vLANE}\nv_lshlrev_b32 v{vT1}, 2, v{vT1}")
    I("s_waitcnt lgkmcnt(0)\ns_barrier")
    I(f"ds_read_b32 v{vT2}, v{vT1} offset:{FLAGS}")
    for k in range(4): I(f"ds_read_b128 v[{TMP+4*k}:{TMP+4*k+3}], v{vT3} offset:{k*1024}")
    I(f"v_cmp_ne_u32 vcc, 0, v{vT2}")
    I(f"s_cmp_lg_u64 vcc, 0\ns_cselect_b32 s{sT0}, 1, 0\ns_andn2_b32 s{sT0}, s{sT0}, s{sFLAG}")
    I(f"s_cmp_lg_u32 s{sT0}, 0\ns_cbranch_scc1 L_fallback")
    I(f"s_cmp_lg_u32 s{sKH}, 0\ns_cbranch_scc1 L_nostore")
    a0_, a1_ = p.cond("kh", 2)
    with a0_:
        for k in range(16): I(f"v_add_f32 v{O+k}, v{O+k}, v{TMP+k}")
        I(f"v_mov_b32 v{vT0}, v{O+12}\nv_mov_b32 v{vT1}, v{O+12}\nv_permlane32_swap_b32 v{vT0}, v{vT1}")
        I(f"v_rcp_f32 v{vT1}, v{vT1}")
        for k in range(16): I(f"v_mul_f32 v{O+k}, v{O+k}, v{vT1}")
        for k in range(8): I(f"v_cvt_pk_bf16_f32 v{TMP+k}, v{O+2*k}, v{O+2*k+1}")
        for k in (6, 7): I(f"v_and_b32 v{TMP+k}, v{TMP+k}, v{vKEEP}")
        I(f"buffer_store_dwordx4 v[{TMP}:{TMP+3}], v{vL16}, {R}, s{sOS} offen sc1", tag='OS')
        I(f"buffer_store_dwordx4 v[{TMP+4}:{TMP+7}], v{vL16}, {R}, s{sOS} offen offset:1024 sc1", tag='OS')
        emit([flag_store(sOF, 'OS')])
    p.label("L_nostore")
    ST('opub')
    I(f"s_cmp_eq_u32 s{sGEMM}, 0\ns_cbranch_scc1 L_end")
    I(f"s_mov_b32 s{S_W}, s8\ns_mov_b32 s{S_W+1}, s9\ns_mov_b32 s{S_W+2}, {448*896}")
    I(f"s_lshr_b32 s{sT1}, s{sW}, 1\ns_mul_i32 s{sGW}, s{sT1}, 28\ns_and_b32 s{sT0}, s{sW}, 1\ns_lshl_b32 s{sT0}, s{sT0}, 4\ns_add_u32 s{sGW}, s{sGW}, s{sT0}")
    I(f"s_mul_i32 s{sGW}, s{sGW}, 896\ns_add_u32 s{sGW}, s{sGW}, s{sCOL}\ns_sub_u32 s{sE0}, s{sWM0}, 65536")
    for i in range(4): emit(wo_issue(i, f"s_add_u32 m0, s{sE0}, {i*2048}"))
    I(f"s_lshl_b32 s{sT0}, s{sRB3}, 5\ns_add_u32 s{sT0}, s{sT0}, s{sT1}\ns_lshl_b32 s{sT0}, s{sT0}, 3\ns_add_u32 s{sT0}, s{sT0}, {F_O}")
    I(f"v_and_b32 v{vT0}, 1, v{vLANE}\nv_bfe_u32 v{vT1}, v{vLANE}, 1, 2\nv_lshl_add_u32 v{vT0}, v{vT0}, 2, v{vT1}\nv_lshl_add_u32 v{vPH}, v{vT0}, 5, s{sT0}")
    I(f"s_bfe_u32 s{sT0}, s{sW}, 0x10001\ns_lshl_b32 s{sT1}, s{sRB3}, 1\ns_add_u32 s{sT0}, s{sT0}, s{sT1}\ns_mul_i32 s{sT0}, s{sT0}, {32*896}")
    I(f"s_lshl_b32 s{sT1}, s{sKH}, 6\ns_add_u32 s{sT0}, s{sT0}, s{sT1}\ns_and_b32 s{sT1}, s{sW}, 1\ns_lshl_b32 s{sT1}, s{sT1}, 5")
    I(f"s_add_u32 s{sT0}, s{sT0}, s{sT1}\ns_add_u32 s{sT0}, s{sT0}, s{sCOL}")
    I(f"v_and_b32 v{vT0}, 31, v{vLANE}\nv_mul_u32_u24 v{vXO}, 896, v{vT0}\nv_lshrrev_b32 v{vT1}, 5, v{vLANE}")
    I(f"v_lshl_add_u32 v{vXO}, v{vT1}, 4, v{vXO}\nv_add_u32 v{vXO}, s{sT0}, v{vXO}")
    I(f"buffer_load_dwordx4 v[{XRS}:{XRS+3}], v{vXO}, s[{S_X}:{S_X+3}], 0 offen")
    for n in range(NIN, 14):
        if n > NIN: grd(n)
        for tt in range(2):
            for ct in range(2): I(g_mfma(GA + 8 * (n & 1), GB + 8 * (n & 3), ct, tt))
    I(poll_load(vPH))
    AR = [GA, GA + 8, SB, SB + 8]
    I(f"v_subrev_u32 v{vT2}, 65536, v{vGA}\nv_subrev_u32 v{vT3}, 65536, v{vGA1}")
    p.waitvm(lambda tag, env: tag[0] == 'GW')
    for i in range(4): emit(g_reads(i * 2048, AR[i], vT2, vT3))
    I(f"s_add_u32 s{sT1}, s{sAB}, {112*1024}")
    poll_check("L_pd", vPH)
    ST('opoll')
    for i in range(4):
        b = GB + 8 * i
        I(f"buffer_load_dwordx4 v[{b}:{b+3}], v{vL16}, {R}, s{sT1} offen sc1")
        I(f"buffer_load_dwordx4 v[{b+4}:{b+7}], v{vL16B}, {R}, s{sT1} offen sc1")
        if i < 3: I(f"s_add_u32 s{sT1}, s{sT1}, 8192")
    I(f"s_lshl_b32 s{sT0}, s{sW}, 14\nv_add_u32 v{vT0}, s{sT0}, v{vL16}")
    I(f"s_lshl_b32 s{sT0}, s{sW}, 11\nv_and_b32 v{vT1}, 31, v{vLANE}\nv_lshlrev_b32 v{vT1}, 4, v{vT1}\nv_lshrrev_b32 v{vM}, 5, v{vLANE}")
    I(f"v_lshl_add_u32 v{vT1}, v{vM}, 10, v{vT1}\nv_add_u32 v{vT1}, s{sT0}, v{vT1}\nv_add_u32 v{vM}, 65536, v{vT1}")
    I("s_waitcnt lgkmcnt(0)\ns_barrier")
    for i in range(4):
        for tt in range(2):
            for ct in range(2): I(g_mfma(AR[i], GB + 8 * i, ct, tt))
    ST('womfma')
    for k in range(16): I(f"ds_write_b128 v{vT0}, v[{G+4*k}:{G+4*k+3}] offset:{k*1024}")
    ACC = 96
    for k in range(4):
        I(f"v_lshlrev_b32 v{ACC+2*k}, 16, v{XRS+k}\nv_and_b32 v{ACC+2*k+1}, 0xffff0000, v{XRS+k}")
    I("s_waitcnt lgkmcnt(0)\ns_barrier")
    ST('redw')
    RDB = 128
    for sw in range(8):
        for h in range(2):
            d = RDB + sw * 8 + h * 4
            I(f"ds_read_b128 v[{d}:{d+3}], v{(vT1, vM)[sw >> 2]} offset:{(sw & 3) * 16384 + h * 512}")
    for sw in range(8):
        for k in range(8): I(f"v_add_f32 v{ACC+k}, v{ACC+k}, v{RDB+sw*8+k}")
    for k in range(4): I(f"v_cvt_pk_bf16_f32 v{XRS+k}, v{ACC+2*k}, v{ACC+2*k+1}")
    I(f"buffer_store_dwordx4 v[{XRS}:{XRS+3}], v{vXO}, s[{S_O}:{S_O+3}], 0 offen")
    if prof is not None: I("s_waitcnt vmcnt(0)")
    p.stamp(8)
    if prof is not None: I(f"s_mov_b32 s{sT0}, s{sW}")
    p.dump_stamps(9, sT0, S_WS)
    p.label("L_end")
    I("s_endpgm")
    p.root.append(Fence())
    p.label("L_fallback")
    I("s_waitcnt vmcnt(0) lgkmcnt(0)\ns_nop 15\ns_barrier")
    I(f"s_mov_b32 s{sFLAG}, 1")
    emit(kv_init())
    for n in (-3, -2, -1):
        a_, b_, c_ = kv_group(n); emit(a_ + b_ + c_)
    I(f"v_and_b32 v{Q+6}, v{Q+6}, v{vKEEP}\nv_and_b32 v{Q+7}, v{Q+7}, v{vKEEP}")
    I(f"v_mov_b32 v{vM}, 0xff800000")
    I(f"s_mul_i32 s{sT1}, s{sKH}, {32*6144}\ns_sub_u32 s{sT0}, s{sHB2}, s{sT1}\ns_mov_b32 s{sT1}, 64")
    p.label("L_fbloop")
    with p.loop('f', 2):
        I(f"buffer_load_dwordx4 v[{KF}:{KF+3}], v{vL16}, {R}, s{sT0} offen sc1")
        I(f"buffer_load_dwordx4 v[{KF+4}:{KF+7}], v{vL16}, {R}, s{sT0} offen offset:1024 sc1")
        I(smfma(0)); I(smfma(1))
        emit(max16(SB, False))
        I(f"s_add_u32 s{sT0}, s{sT0}, 6144\ns_sub_u32 s{sT1}, s{sT1}, 1\ns_cmp_lg_u32 s{sT1}, 0\ns_cbranch_scc1 L_fbloop")
    cross_max()
    set_pads()
    I(f"s_cmp_lg_u32 s{sKH}, 0\ns_cselect_b64 vcc, -1, 0")
    I("s_waitcnt vmcnt(0) lgkmcnt(0)\ns_nop 7")
    I("s_branch L_plain")
    for fn in outofline:
        p.root.append(Fence())
        fn()
    p.label("L_code_end")
    I("s_endpgm")
    p.finalize()
    return p


if __name__ == "__main__":
    p = gen_mk("x")
    print(p.text()); print(p.max_vgpr())
```

```python
import math, struct, os
from asmgen import *

EXP = set(os.environ.get('MKEXP', '').split(','))
STN = os.environ.get('MKST', 'ln,barA,p1,p2,astart,aend').split(',')
def P(name, default): return int(os.environ.get('MK_' + name, default))
def f32(x): return struct.unpack('<I', struct.pack('<f', x))[0]

WS_QKV = 0
WS_ACT = 8 << 20
WS_FLAG = 24 << 20
F_QKV, F_H, F_O = WS_FLAG, WS_FLAG + 65536, WS_FLAG + 131072
WS_SIZE = 32 << 20
SPIN_MAX = 1 << 18
QSCALE = (28 ** -0.5) * math.log2(math.e)
GC1 = -2.0 * math.log2(math.e) * math.sqrt(2.0 / math.pi)
GC2 = GC1 * 0.044715


def flat(items):
    out = []
    for it in items:
        if isinstance(it, list): out += flat(it)
        else: out.append(it)
    return out


class Atom(tuple):
    pass


def gen_mk(name, prof=None):
    p = Prog(); p.prof = prof
    I = p.i
    def ST(nm):
        if nm in STN: p.stamp(1 + STN.index(nm))
    SA = SAlloc(24, 84)
    SA.add([3])

    def srd(d, ptr, size):
        I(f"s_mov_b32 s{d}, s{ptr}\ns_mov_b32 s{d+1}, s{ptr+1}\ns_mov_b32 s{d+2}, {size}\ns_mov_b32 s{d+3}, 0x00020000")

    def srd_adv(d, delta):
        return [Atom((f"s_add_u32 s{d}, s{d}, {delta}", f"s_addc_u32 s{d+1}, s{d+1}, 0")), f"s_sub_u32 s{d+2}, s{d+2}, {delta}"]

    def emit(items):
        for it in items:
            if isinstance(it, (Atom, list)): emit(it)
            elif isinstance(it, tuple): I(it[0], tag=it[1])
            elif callable(it): it()
            else: I(it)

    outofline = []

    def L(text):
        out = []
        for line in flat([t.split('\n') for t in ([text] if isinstance(text, str) else text)]):
            if line.startswith('s_cselect'):
                prev = out.pop()
                out.append(Atom((tuple(prev) if isinstance(prev, Atom) else (prev,)) + (line,)))
            else: out.append(line)
        return out

    S_X, S_C0, S_WS, S_G, S_U, S_D = SA.a('X', 'C0', 'WS', 'G', 'U', 'D', align=4, n=4)
    sN0 = SA.a('N', align=2, n=2); sN1 = sN0 + 1
    sM = SA.a('M', align=2, n=2)
    sW, sCH, sTY, sT0, sT1, sT2, sT4, sSPIN, sW1K = SA.a('W', 'CH', 'TY', 'T0', 'T1', 'T2', 'T4', 'SPIN', 'W1K')
    sRQ = SA.a(*[f'RQ{k}' for k in range(7)])
    sRG = SA.a(*[f'RG{k}' for k in range(7)])
    sRB, sIDX, sROT, sTT = SA.a('RB', 'IDX', 'ROT', 'TT')
    R = f"s[{S_WS}:{S_WS+3}]"
    RD_ = f"s[{S_D}:{S_D+3}]"
    vLANE, vXOFF, vQ, vG, vU = 0, 1, 2, 3, 4
    vPH, vPK = 1, 14
    vLQ = [5, 6, 7]; vLF = [[8, 9, 10], [11, 12, 13]]; vL16 = 15
    XN = 16
    ACC1, ACC2, AF, T = 128, 176, 208, 232
    vH, vLH = T, [None, T + 1, T + 2]
    vN, vPD, vSTR, vZ = 240, 244, 246, 247
    vF, vC1P, vC2P, vIF2, vKEEP, vHI, vSW0, vSW1 = 248, 249, 250, 251, 252, 253, 254, 255
    STATS = 0
    SLOT = [[14 + b for b in range(6)] + [b - 5 for b in range(6, 17)] + [b - 16 for b in range(17, 27)] + [12 + k for k in range(8)],
            [14 + b for b in range(6)] + [b - 5 for b in range(6, 18)] + [b - 17 for b in range(18, 28)] + [13 + k for k in range(7)]]

    I("s_cmp_ge_u32 s2, 256\ns_cbranch_scc1 L_end")
    p.stamp(0); p.stamp(7, True)
    I("s_load_dwordx16 s[4:19], s[0:1], 0\ns_load_dwordx4 s[20:23], s[0:1], 64")
    I(f"s_memrealtime s[{sN0}:{sN1}]")
    I(f"v_lshrrev_b32 v1, 6, v0\nv_readfirstlane_b32 s{sW}, v1\nv_and_b32 v{vLANE}, 63, v0")
    I(f"v_lshlrev_b32 v{vL16}, 4, v{vLANE}")
    if 'nopf' not in EXP:
        I(f"s_getpc_b64 s[{S_D}:{S_D+1}]")
        p.label("L_pcbase")
        I(f"s_mov_b32 s{S_D+2}, L_code_end-L_pcbase\ns_mov_b32 s{S_D+3}, 0x00020000")
        I(f"s_and_b32 s{sT4}, s2, 0x38\ns_add_u32 s{sT4}, s{sT4}, s{sW}\ns_lshl_b32 s{sT4}, s{sT4}, 10")
        I(f"buffer_load_dwordx4 v[204:207], v{vL16}, s[{S_D}:{S_D+3}], s{sT4} offen")
    I(f"s_and_b32 s{sT0}, s2, 1\ns_lshl_b32 s{sT0}, s{sT0}, 3\ns_bfe_u32 s{sRB}, s2, 0x30003\ns_add_u32 s{sRB}, s{sRB}, s{sT0}")
    I(f"s_lshr_b32 s{sT1}, s2, 6\ns_lshr_b32 s{sTY}, s2, 7")
    I(f"s_lshl_b32 s{sROT}, s{sT1}, 1\ns_add_u32 s{sROT}, s{sROT}, s{sRB}")
    I(f"s_sub_u32 s{sT0}, s{sROT}, 14\ns_cmp_ge_u32 s{sROT}, 14\ns_cselect_b32 s{sROT}, s{sT0}, s{sROT}")
    I(f"s_sub_u32 s{sT0}, s{sROT}, 7\ns_cmp_ge_u32 s{sROT}, 7\ns_cselect_b32 s{sROT}, s{sT0}, s{sROT}")
    I(f"s_and_b32 s{sIDX}, s2, 6\ns_and_b32 s{sT1}, s{sT1}, 1\ns_add_u32 s{sIDX}, s{sIDX}, s{sT1}")
    I(f"v_lshrrev_b32 v{T}, 3, v{vLANE}\nv_and_b32 v{T+1}, 7, v{vLANE}")
    I(f"v_mul_u32_u24 v{vXOFF}, 896, v{T}\nv_lshl_add_u32 v{vXOFF}, v{T+1}, 4, v{vXOFF}")
    I(f"s_lshl_b32 s{sT0}, s{sRB}, 3\ns_add_u32 s{sT0}, s{sT0}, s{sW}\ns_mul_i32 s{sT0}, s{sT0}, {16*896}")
    I(f"v_add_u32 v{vXOFF}, s{sT0}, v{vXOFF}\nv_add_u32 v199, {8*896}, v{vXOFF}")
    I(f"s_lshl_b32 s{sRG[0]}, s{sROT}, 7")
    for v in range(1, 7):
        I(f"s_add_u32 s{sRG[v]}, s{sRG[v-1]}, 128\ns_cmp_eq_u32 s{sRG[v]}, 896\ns_cselect_b32 s{sRG[v]}, 0, s{sRG[v]}")
    I("s_waitcnt lgkmcnt(0)")
    SA.add([0, 1, 10, 11])
    srd(S_X, 4, 2048 * 896)
    XR = lambda g, v: ACC1 + (g * 7 + v) * 4
    ST('karg')
    def xload(g, offs):
        for v in range(7):
            I(f"buffer_load_dwordx4 v[{XR(g,v)}:{XR(g,v)+3}], v{(vXOFF, 199)[g]}, s[{S_X}:{S_X+3}], s{offs[v]} offen")
    xload(0, sRG)
    if 'noxsplit' in EXP: xload(1, sRG)
    srd(S_C0, 6, 448 * 2688)
    I(f"s_mul_i32 s{sT0}, s{sIDX}, 112\ns_mul_i32 s{sT1}, s{sTY}, 896\ns_add_u32 s{sT0}, s{sT0}, s{sT1}")
    emit(srd_adv(S_C0, f"s{sT0}"))
    I(f"v_lshlrev_b32 v{T+3}, 1, v{T}\nv_and_b32 v{T+3}, 4, v{T+3}\nv_xor_b32 v{T+3}, v{T+3}, v{T+1}\nv_lshlrev_b32 v{T+3}, 4, v{T+3}")
    I(f"v_mul_u32_u24 v{vQ}, 2688, v{T}\nv_add_u32 v{vQ}, v{vQ}, v{T+3}")
    I(f"s_lshl_b32 s{sW1K}, s{sW}, 10\ns_lshl_b32 s{sT0}, s{sW}, 4")
    for v in range(7):
        I(f"s_add_u32 s{sRG[v]}, s{sRG[v]}, s{sT0}\ns_mul_i32 s{sRQ[v]}, s{sRG[v]}, 1344")

    def dma_block(b, slot, kind, v):
        tag = ('W', b)
        m0 = f"s_add_u32 m0, s{sW1K}, {slot * 8192}"
        if kind == 'Q': return [m0, (f"buffer_load_dwordx4 v{vQ}, s[{S_C0}:{S_C0+3}], s{sRQ[v]} offen lds", tag)]
        if kind == 'G': return [m0, (f"buffer_load_dwordx4 v{vG}, s[{S_G}:{S_G+3}], s{sRG[v]} offen lds", tag)]
        if kind == 'U': return [m0, (f"buffer_load_dwordx4 v{vU}, s[{S_U}:{S_U+3}], s{sRG[v]} offen lds", tag)]
        return [m0,
                Atom((f"s_mov_b64 exec, s[{sM}:{sM+1}]", (f"buffer_load_dwordx4 v{vH}, s[{S_G}:{S_G+3}], s{sRG[v]} offen lds", tag), "s_mov_b64 exec, -1")),
                Atom((f"s_not_b64 exec, s[{sM}:{sM+1}]", (f"buffer_load_dwordx4 v{vH}, s[{S_U}:{S_U+3}], s{sRG[v]} offen lds", tag), "s_mov_b64 exec, -1"))]

    early = [Atom(dma_block(b, 14 + b, 'Q', b)) for b in range(6)]
    sDP = SA.a('DP', align=2, n=2)
    I(f"s_mov_b64 s[{sDP}:{sDP+1}], s[20:21]")
    def nonce_pub():
        srd(S_D, sDP, 256)
        I(f"s_or_b32 s{sT4}, s2, s{sW}\ns_min_u32 s{sT4}, s{sT4}, 1\ns_lshl_b32 s{sT4}, s{sT4}, 12")
        I(f"buffer_store_dwordx2 v[{vN}:{vN+1}], v{vZ}, {RD_}, s{sT4} offen sc1")
    I(f"s_or_b32 s{sN0}, s{sN0}, 1\nv_mov_b32 v{vN}, s{sN0}\nv_mov_b32 v{vN+1}, s{sN1}\nv_mov_b32 v{vZ}, 0")
    early = [nonce_pub] + early
    srd(S_G, 12, 448 * 3584); srd(S_U, 14, 448 * 3584); srd(S_WS, 22, WS_SIZE)
    SA.add([4, 5, 6, 7, 12, 13, 14, 15, 20, 21, 22, 23])
    I(f"s_lshr_b32 s{sCH}, s{sW}, 2\ns_and_b32 s{sTT}, s{sW}, 3")
    sKS1, sKS2, sDC = SA.a('KS1', 'KS2', 'DC')
    I(f"s_lshl_b32 s{sT0}, s{sIDX}, 7\ns_lshl_b32 s{sT1}, s{sTY}, 10\ns_add_u32 s{sT1}, s{sT1}, s{sT0}\ns_lshl_b32 s{sT2}, s{sCH}, 1")
    emit(srd_adv(S_G, f"s{sT1}")); emit(srd_adv(S_U, f"s{sT1}"))
    I(f"s_lshr_b32 s{sKS1}, s{sT1}, 5\ns_add_u32 s{sKS1}, s{sKS1}, s{sT2}")
    I(f"s_add_u32 s{sT0}, s{sT0}, 2048\ns_lshl_b32 s{sT4}, s{sIDX}, 6\ns_add_u32 s{sT4}, s{sT4}, 3072")
    I(f"s_cmp_eq_u32 s{sTY}, 0\ns_cselect_b32 s{sT0}, s{sT0}, s{sT4}\ns_cselect_b32 s{sT2}, s{sT2}, s{sCH}")
    I(f"s_sub_u32 s{sDC}, s{sT0}, s{sT1}\ns_lshr_b32 s{sKS2}, s{sT0}, 5\ns_add_u32 s{sKS2}, s{sKS2}, s{sT2}")
    I(f"v_mul_u32_u24 v{vG}, 3584, v{T}\nv_add_u32 v{vG}, v{vG}, v{T+3}\nv_xor_b32 v{vU}, 32, v{vG}")
    vHH, vMH, vR4, vC4, vRS, tA, tB = range(AF, AF + 7)
    I(f"v_lshrrev_b32 v{vHH}, 5, v{vLANE}\nv_bfe_u32 v{vMH}, v{vLANE}, 4, 1\nv_bfe_u32 v{vR4}, v{vLANE}, 2, 2\nv_and_b32 v{vC4}, 3, v{vLANE}")
    I(f"v_bfe_u32 v{vRS}, v{vLANE}, 3, 1\nv_lshlrev_b32 v{vRS}, 6, v{vRS}")
    I(f"s_mul_i32 s{sT0}, s{sCH}, 56")
    I(f"v_lshl_add_u32 v{tA}, v{vC4}, 3, s{sT0}\nv_lshl_add_u32 v{tA}, v{vMH}, 5, v{tA}\nv_xor_b32 v{tA}, v{tA}, v{vRS}")
    I(f"v_lshl_add_u32 v{tA}, v{vR4}, 7, v{tA}\nv_lshl_add_u32 v{vLQ[0]}, v{vHH}, 10, v{tA}")
    I(f"s_lshl_b32 s{sT0}, s{sCH}, 6")
    I(f"v_lshl_add_u32 v{tA}, v{vC4}, 3, s{sT0}\nv_lshl_add_u32 v{tB}, v{vMH}, 5, v{vRS}\nv_xor_b32 v{tA}, v{tA}, v{tB}")
    I(f"v_lshl_add_u32 v{tA}, v{vR4}, 7, v{tA}\nv_lshl_add_u32 v{tA}, v{vHH}, 10, v{tA}\nv_lshl_add_u32 v{vLF[0][0]}, v{vMH}, 13, v{tA}")
    I(f"v_xor_b32 v{vLF[1][0]}, 32, v{vLF[0][0]}")
    for base in (vLQ, vLF[0], vLF[1]):
        I(f"v_add_u32 v{base[1]}, 0x10000, v{base[0]}\nv_add_u32 v{base[2]}, 0x20000, v{base[0]}")
    I(f"v_sub_u32 v{vHI}, 0, v{vHH}\nv_not_b32 v{vKEEP}, v{vHI}")
    I(f"v_lshlrev_b32 v{vSW0}, 6, v{vHH}\nv_xor_b32 v{vSW0}, v{vSW0}, v{vL16}\nv_xor_b32 v{vSW1}, 128, v{vSW0}")
    if 'noxsplit' not in EXP:
        I(f"s_lshl_b32 s{sT0}, s{sW}, 4\nv_subrev_u32 v199, s{sT0}, v199")
        xload(1, sRG)
    for v in range(7): I(f"s_mul_i32 s{sRG[v]}, s{sRG[v]}, 1792")
    vWB = [[XN, XN + 1], [XN + 2, XN + 3]]
    I(f"s_lshl_b32 s{sT0}, s{sW}, 11")
    I(f"v_lshrrev_b32 v{tA}, 1, v{T}\nv_xor_b32 v{tA}, v{tA}, v{T+1}")
    I(f"v_lshl_add_u32 v{tB}, v{T}, 7, s{sT0}\nv_lshl_add_u32 v{vWB[0][0]}, v{tA}, 4, v{tB}")
    I(f"v_xor_b32 v{vWB[1][0]}, 64, v{vWB[0][0]}\nv_add_u32 v{vWB[1][0]}, 1024, v{vWB[1][0]}")
    I(f"v_add_u32 v{vWB[0][1]}, 65536, v{vWB[0][0]}\nv_add_u32 v{vWB[1][1]}, 65536, v{vWB[1][0]}")
    fa = T + 4
    vSTW, vVAR = T + 2, [T + 3, vPD]
    I(f"v_and_b32 v{tA}, 31, v{vLANE}\nv_bfe_u32 v{tB}, v{vLANE}, 1, 3\nv_xor_b32 v{tB}, v{tB}, v{vHH}")
    I(f"s_lshl_b32 s{sT0}, s{sTT}, 12")
    I(f"v_lshl_add_u32 v{fa}, v{tA}, 7, s{sT0}\nv_lshl_add_u32 v{fa}, v{tB}, 4, v{fa}")
    for k in range(1, 4): I(f"v_xor_b32 v{fa+k}, {k*32}, v{fa}")
    I(f"s_lshl_b32 s{sT0}, s{sW}, 6\nv_lshl_add_u32 v{vSTW}, v{T}, 2, s{sT0}")
    I(f"s_lshl_b32 s{sT0}, s{sTT}, 7\nv_lshl_add_u32 v{vSTR}, v{tA}, 2, s{sT0}")
    u0, u1, u2 = T + 4, T + 5, T + 6
    FH = L([f"v_and_b32 v{u0}, 2, v{T}\nv_and_b32 v{u1}, 3, v{T+1}\nv_xor_b32 v{u0}, v{u0}, v{u1}",
            f"v_mul_u32_u24 v{vH}, 3584, v{T}\nv_lshl_add_u32 v{vH}, v{u0}, 4, v{vH}",
            f"s_lshl_b32 s{sT0}, s{sCH}, 5\nv_lshl_add_u32 v{u0}, v{u1}, 3, s{sT0}\nv_and_b32 v{u1}, 8, v{vLANE}\nv_lshlrev_b32 v{u1}, 2, v{u1}\nv_xor_b32 v{u0}, v{u0}, v{u1}",
            f"v_bfe_u32 v{u1}, v{vLANE}, 4, 1\nv_lshl_add_u32 v{u0}, v{u1}, 6, v{u0}\nv_bfe_u32 v{u1}, v{vLANE}, 2, 2\nv_lshl_add_u32 v{u0}, v{u1}, 7, v{u0}",
            f"v_lshrrev_b32 v{u1}, 5, v{vLANE}\nv_lshl_add_u32 v{u0}, v{u1}, 10, v{u0}\nv_add_u32 v{vLH[1]}, 0x10000, v{u0}\nv_add_u32 v{vLH[2]}, 0x20000, v{u0}",
            f"s_mov_b32 s{sM}, 0x0f0f0f0f\ns_mov_b32 s{sM+1}, 0x0f0f0f0f"])
    F2, F3 = [], []
    sQT = SA.a('QT')
    F2 += L(f"s_mov_b32 s{sQT}, s{sTT}\ns_lshl_b32 s{sT0}, s{sRB}, 2\ns_add_u32 s{sTT}, s{sTT}, s{sT0}")
    sQS, sQF, sH1, sH2, sHF1, sHF2 = SA.a('QS', 'QF', 'H1', 'H2', 'HF1', 'HF2')
    F2 += L(f"s_lshl_b32 s{sT0}, s{sIDX}, 1\ns_add_u32 s{sT0}, s{sT0}, s{sCH}")
    F2 += L(f"s_lshl_b32 s{sQS}, s{sT0}, 6\ns_add_u32 s{sQS}, s{sQS}, s{sTT}\ns_mul_i32 s{sQS}, s{sQS}, 3\ns_add_u32 s{sQS}, s{sQS}, s{sTY}\ns_lshl_b32 s{sQS}, s{sQS}, 11")
    F2 += L(f"s_mul_i32 s{sQF}, s{sT0}, 3\ns_add_u32 s{sQF}, s{sQF}, s{sTY}\ns_lshl_b32 s{sQF}, s{sQF}, 6\ns_add_u32 s{sQF}, s{sQF}, s{sTT}\ns_lshl_b32 s{sQF}, s{sQF}, 3\ns_add_u32 s{sQF}, s{sQF}, {F_QKV}")
    F2 += L(f"s_mul_i32 s{sT0}, s{sTT}, 144\ns_mul_i32 s{sT1}, s{sTT}, 112")
    for sh, sf, sk in ((sH1, sHF1, sKS1), (sH2, sHF2, sKS2)):
        F2 += L(f"s_add_u32 s{sh}, s{sT0}, s{sk}\ns_lshl_b32 s{sh}, s{sh}, 10\ns_add_u32 s{sh}, s{sh}, {WS_ACT}")
        F2 += L(f"s_add_u32 s{sf}, s{sT1}, s{sk}\ns_lshl_b32 s{sf}, s{sf}, 3\ns_add_u32 s{sf}, s{sf}, {F_H}")
    SA.f('KS1', 'KS2', 'RB', 'IDX', 'ROT', 'TT')
    F2 += L(f"s_mov_b32 s{sSPIN}, {SPIN_MAX}")
    sKH = sCH
    sTK, sPOS, sHB2, sKB, sLQ, sREC, sOS, sOF, sRB3, sCOL = SA.a('TK', 'POS', 'HB2', 'KB', 'LQ', 'REC', 'OS', 'OF', 'RB3', 'COL')
    sHEAD, sT3 = sT1, sT2
    F3 += L(f"s_and_b32 s{sT0}, s2, 7\ns_lshl_b32 s{sHEAD}, s{sT0}, 1\ns_add_u32 s{sHEAD}, s{sHEAD}, s{sTY}")
    F3 += L(f"s_bfe_u32 s{sT3}, s2, 0x40003\ns_lshl_b32 s{sT3}, s{sT3}, 2\ns_add_u32 s{sT3}, s{sT3}, s{sQT}")
    F3 += L(f"s_lshl_b32 s{sRB3}, s{sT0}, 2\ns_bfe_u32 s{sT0}, s2, 0x20003\ns_add_u32 s{sRB3}, s{sRB3}, s{sT0}")
    F3 += L(f"s_lshr_b32 s{sCOL}, s2, 5\ns_lshl_b32 s{sCOL}, s{sCOL}, 7")
    F3 += L(f"s_mul_i32 s{sHB2}, s{sHEAD}, {64*6144}\ns_mul_i32 s{sREC}, s{sT3}, 6144\ns_add_u32 s{sREC}, s{sREC}, s{sHB2}")
    F3 += L(f"s_mul_i32 s{sT0}, s{sKH}, {32*6144}\ns_add_u32 s{sHB2}, s{sHB2}, s{sT0}\ns_add_u32 s{sHB2}, s{sHB2}, 2048")
    F3 += L(f"s_sub_u32 s{sLQ}, s{sQT}, s{sKH}\ns_add_u32 s{sLQ}, s{sLQ}, 1\ns_mul_i32 s{sKB}, s{sKH}, 49152")
    F3 += L(f"s_mul_i32 s{sOS}, s{sT3}, 144\ns_lshl_b32 s{sT0}, s{sHEAD}, 1\ns_add_u32 s{sOS}, s{sOS}, s{sT0}\ns_lshl_b32 s{sOS}, s{sOS}, 10\ns_add_u32 s{sOS}, s{sOS}, {WS_ACT + 112*1024}")
    F3 += L(f"s_lshl_b32 s{sOF}, s{sT3}, 4\ns_add_u32 s{sOF}, s{sOF}, s{sHEAD}\ns_lshl_b32 s{sOF}, s{sOF}, 3\ns_add_u32 s{sOF}, s{sOF}, {F_O}")

    def kv_init():
        return [f"s_bfe_u32 s{sTK}, s2, 0x40003", f"s_lshl_b32 s{sTK}, s{sTK}, 2", f"s_add_u32 s{sTK}, s{sTK}, s{sLQ}",
                f"s_add_u32 s{sTK}, s{sTK}, 31", f"s_and_b32 s{sTK}, s{sTK}, 31",
                f"s_sub_u32 s{sPOS}, s{sLQ}, 1", f"s_cmp_eq_u32 s{sLQ}, 0", f"s_cselect_b32 s{sPOS}, 11, s{sPOS}",
                f"s_lshl_b32 s{sPOS}, s{sPOS}, 12", f"s_add_u32 s{sPOS}, s{sPOS}, s{sKB}"]
    F3 += L(kv_init())
    F3 += L(f"s_lshl_b32 s{sT0}, s{sKH}, 5\ns_add_u32 s{sT0}, s{sT0}, 64\ns_add_u32 s{sT4}, s{sLQ}, 3")
    F3 += L(f"v_bfe_u32 v{u1}, v{vLANE}, 3, 1\nv_sub_u32 v{vPK}, s{sT4}, v{u1}\nv_and_b32 v{vPK}, 3, v{vPK}")
    F3 += L(f"v_and_b32 v{u0}, 7, v{vLANE}\nv_lshl_add_u32 v{u0}, v{u0}, 2, s{sT0}\nv_add_u32 v{u0}, v{u0}, v{vPK}\nv_lshl_add_u32 v{u0}, v{u1}, 6, v{u0}")
    F3 += L(f"v_and_b32 v{u1}, 1, v{vLANE}\nv_lshl_add_u32 v{u1}, v{u1}, 6, s{sT3}")
    F3 += L(f"v_bfe_i32 v{vPK}, v{vLANE}, 4, 1\nv_bfi_b32 v{vPK}, v{vPK}, v{u1}, v{u0}")
    F3 += L(f"s_mul_i32 s{sT0}, s{sHEAD}, {192*8}\ns_add_u32 s{sT0}, s{sT0}, {F_QKV}\nv_lshl_add_u32 v{vPK}, v{vPK}, 3, s{sT0}")
    F3 += L(f"v_lshrrev_b32 v{u0}, 1, v{vLANE}\nv_min_u32 v{u0}, 13, v{u0}\nv_and_b32 v{u1}, 1, v{vLANE}\nv_mul_u32_u24 v{u1}, 14, v{u1}\nv_add_u32 v{u0}, v{u0}, v{u1}")
    F3 += L(f"s_mul_i32 s{sT0}, s{sRB3}, 224\ns_add_u32 s{sT0}, s{sT0}, s{sW}\ns_lshl_b32 s{sT0}, s{sT0}, 3\ns_add_u32 s{sT0}, s{sT0}, {F_H}")
    F3 += L(f"v_lshl_add_u32 v{vPH}, v{u0}, 6, s{sT0}")
    F3 += L(f"s_cmp_lg_u32 s{sKH}, 0\ns_cselect_b64 vcc, -1, 0")

    sONES, sSELLO, sSELHI = sT0, sT1, sT2
    I(f"s_mov_b32 s{sONES}, 0x3f803f80\ns_mov_b32 s{sSELLO}, 0x00003f80\ns_mov_b32 s{sSELHI}, 0x3f800000")
    a0, a1, lo, hi, nmu = XN + 4, XN + 5, XN + 8, XN + 12, XN + 6
    def red8(rs):
        for mod in ("quad_perm:[1,0,3,2]", "quad_perm:[2,3,0,1]", "row_half_mirror"):
            for r in rs: I(f"v_add_f32_dpp v{r}, v{r}, v{r} {mod} row_mask:0xf bank_mask:0xf")
    ST('setup')
    emit(early[:P('E0', 1)]); early = early[P('E0', 1):]
    for g in range(2):
        for k in range(28):
            r = XR(g, 0) + k
            if k == 1: ST(f'xa{g}')
            if k == 27: ST(f'xb{g}')
            I(f"v_dot2_f32_bf16 v{a0}, v{r}, s{sONES}, {'0' if k == 0 else 'v%d' % a0}")
            I(f"v_dot2_f32_bf16 v{a1}, v{r}, v{r}, {'0' if k == 0 else 'v%d' % a1}")
        red8([a0, a1])
        I(f"v_mul_f32 v{nmu}, {f32(-1.0/448)}, v{a0}")
        I(f"v_mul_f32 v{a1}, {f32(1.0/448)}, v{a1}\nv_fma_f32 v{a1}, -v{nmu}, v{nmu}, v{a1}\nv_max_f32 v{a1}, 0, v{a1}\nv_add_f32 v{vVAR[g]}, {f32(1e-5)}, v{a1}")
        for v in range(7):
            b = XR(g, v)
            for k in range(4):
                I(f"v_dot2_f32_bf16 v{lo+k}, v{b+k}, s{sSELLO}, v{nmu}")
                I(f"v_dot2_f32_bf16 v{hi+k}, v{b+k}, s{sSELHI}, v{nmu}")
            for k in range(4):
                I(f"v_cvt_pk_bf16_f32 v{b+k}, v{lo+k}, v{hi+k}")
            I(f"ds_write_b128 v{vWB[g][v >> 2]}, v[{b}:{b+3}] offset:{(v & 3) * 16384}")
            if early: emit([early.pop(0)])
    if 'pf2' in EXP:
        I(f"s_add_u32 s{sT0}, s{sRG[0]}, s{sDC}\ns_mul_i32 s{sT1}, s{sTY}, 896\ns_add_u32 s{sT1}, s{sT1}, s{sRQ[0]}")
        I(f"buffer_load_dword v200, v{vQ}, s[{S_C0}:{S_C0+3}], s{sT1} offen")
        I(f"buffer_load_dword v201, v{vG}, s[{S_G}:{S_G+3}], s{sRG[0]} offen\nbuffer_load_dword v202, v{vG}, s[{S_U}:{S_U+3}], s{sRG[0]} offen")
        I(f"buffer_load_dword v203, v{vG}, s[{S_G}:{S_G+3}], s{sT0} offen\nbuffer_load_dword v199, v{vG}, s[{S_U}:{S_U+3}], s{sT0} offen")
    ST('ln')

    def xread(s): return f"ds_read_b128 v[{XN+4*s}:{XN+4*s+3}], v{fa + (s & 3)} offset:{((s >> 2) & 3) * 16384}"

    def spin_check(lbl, cmp_items, reload_items):
        p.label(lbl + "_chk")
        emit(cmp_items)
        I(f"s_cbranch_scc0 {lbl}_spin")
        p.label(lbl + "_ok")
        def ool():
            p.label(lbl + "_spin")
            I(f"s_sub_u32 s{sSPIN}, s{sSPIN}, 1\ns_cmp_lt_i32 s{sSPIN}, 1\ns_cbranch_scc1 {lbl}_ok")
            I("s_sleep 4")
            emit(reload_items)
            I(f"s_waitcnt vmcnt(0)\ns_branch {lbl}_chk")
        outofline.append(ool)

    nonce_load = f"buffer_load_dwordx2 v[{vN}:{vN+1}], v{vZ}, {RD_}, 0 offen sc1"
    def nonce_check(lbl):
        spin_check(lbl, [f"v_readfirstlane_b32 s{sN0}, v{vN}", f"s_cmp_lg_u32 s{sN0}, 0"], [nonce_load])
        I(f"v_mov_b32 v{vN+2}, v{vN}\nv_mov_b32 v{vN+3}, v{vN+1}")

    def flag_store(soff, tag, off=0, two=False):
        st = f"buffer_store_dwordx4 v[{vN}:{vN+3}]" if two else f"buffer_store_dwordx2 v[{vN}:{vN+1}]"
        return Atom((lambda: None if 'nofw' in EXP else p.waitvm(lambda tg, env: tg == tag), "s_mov_b64 exec, 1",
                     f"{st}, v{vZ}, {R}, s{soff} offen offset:{off} sc1", "s_mov_b64 exec, -1"))

    def poll_load(va): return f"buffer_load_dwordx2 v[{vPD}:{vPD+1}], v{va}, {R}, 0 offen sc1"
    def poll_check(lbl, va, mask=None):
        if 'no' + lbl[2:4] in EXP: return
        c = [f"v_cmp_ne_u64 s[{sN0}:{sN1}], v[{vPD}:{vPD+1}], v[{vN}:{vN+1}]"]
        if mask is None: c += [f"s_cmp_eq_u64 s[{sN0}:{sN1}], 0"]
        else: c += [f"s_and_b32 s{sN0}, s{sN0}, {mask}", f"s_cmp_eq_u32 s{sN0}, 0"]
        spin_check(lbl, c, [poll_load(va)])

    G, SB, O, VF, PF, Q, KF, GB, TMP, GA = 16, 80, 96, 112, 120, 128, 136, 144, 176, 208

    def kv_group(st):
        tag = ('KV', st)
        pre = [f"s_mul_i32 s{sT0}, s{sTK}, 6144", f"s_add_u32 s{sT4}, s{sTK}, 31", f"s_add_u32 s{sT0}, s{sT0}, s{sHB2}",
               f"s_and_b32 s{sT4}, s{sT4}, 31", f"s_mul_i32 s{sT4}, s{sT4}, 6144", f"s_add_u32 s{sT4}, s{sT4}, s{sHB2}",
               f"s_add_u32 s{sTK}, s{sTK}, 4", f"s_and_b32 s{sTK}, s{sTK}, 31"]
        BIG = 0x7f000000
        if st == -3:
            pre += [Atom((f"s_cmp_eq_u32 s{sLQ}, 0", f"s_cselect_b32 s{sT0}, {BIG}, s{sT0}")), Atom((f"s_cmp_lt_u32 s{sLQ}, 2", f"s_cselect_b32 s{sT4}, {BIG}, s{sT4}"))]
        if st == 5:
            pre += [Atom((f"s_cmp_lg_u32 s{sLQ}, 0", f"s_cselect_b32 s{sT0}, {BIG}, s{sT0}")), Atom((f"s_cmp_ge_u32 s{sLQ}, 2", f"s_cselect_b32 s{sT4}, {BIG}, s{sT4}"))]
        d = [Atom((f"s_mov_b32 m0, s{sPOS}",
                   (f"buffer_load_dwordx4 v{vL16}, {R}, s{(sT0, sT4)[k >> 1]} offen offset:{k*1024} sc1 lds", tag))) for k in range(4)]
        post = [f"s_add_u32 s{sPOS}, s{sPOS}, 16384", f"s_sub_u32 s{sT0}, s{sPOS}, 49152",
                Atom((f"s_cmp_ge_i32 s{sT0}, s{sKB}", f"s_cselect_b32 s{sPOS}, s{sT0}, s{sPOS}"))]
        return pre, d, post

    def gelu(c, soff, off, tag, tmp=T + 4):
        o = []
        for h in range(2):
            idx = [4 * h + k for k in range(4)]
            t = [tmp + k for k in range(4)]
            for k, j in enumerate(idx): o.append(f"v_mul_f32 v{t[k]}, v{c+j}, v{c+j}")
            for k, j in enumerate(idx): o.append(f"v_fma_f32 v{t[k]}, v{t[k]}, v{vC2P}, v{vC1P}")
            for k, j in enumerate(idx): o.append(f"v_mul_f32 v{t[k]}, v{t[k]}, v{c+j}")
            for k, j in enumerate(idx): o.append(f"v_exp_f32 v{t[k]}, v{t[k]}")
            for k, j in enumerate(idx): o.append(f"v_mul_f32 v{c+j}, v{c+j}, v{c+8+j}")
            for k, j in enumerate(idx): o.append(f"v_fma_f32 v{t[k]}, v{t[k]}, v{vIF2}, v{vIF2}")
            for k, j in enumerate(idx): o.append(f"v_rcp_f32 v{t[k]}, v{t[k]}")
            for k, j in enumerate(idx): o.append(f"v_mul_f32 v{c+j}, v{c+j}, v{t[k]}")
        for k in range(4): o.append(f"v_cvt_pk_bf16_f32 v{c+8+k}, v{c+2*k}, v{c+2*k+1}")
        o.append((f"buffer_store_dwordx4 v[{c+8}:{c+11}], v{vL16}, {R}, s{soff} offen offset:{off} sc1", tag))
        return o

    def qkv_epi(c, which, tag):
        o = []
        fm = vF
        if which == 0:
            fm = T + 3
            o.append(f"v_mul_f32 v{fm}, {f32(QSCALE)}, v{vF}")
        else:
            o.append(f"v_and_b32 v{T+3}, 0x3f803f80, v{vHI}")
        for k in range(8):
            o += [f"v_mul_f32 v{c+2*k}, v{c+2*k}, v{fm}", f"v_mul_f32 v{c+2*k+1}, v{c+2*k+1}, v{fm}",
                  f"v_cvt_pk_bf16_f32 v{c+k}, v{c+2*k}, v{c+2*k+1}"]
            if k == 3:
                o.append((f"buffer_store_dwordx4 v[{c}:{c+3}], v{vSW0 if which == 2 else vL16}, {R}, s{sQS} offen offset:{2048 if which == 2 else 0} sc1", tag))
        for k in (6, 7):
            o.append(f"v_and_b32 v{c+k}, v{c+k}, v{vKEEP}" if which == 0 else f"v_and_or_b32 v{c+k}, v{c+k}, v{vKEEP}, v{T+3}")
        o.append((f"buffer_store_dwordx4 v[{c+4}:{c+7}], v{vSW1 if which == 2 else vL16}, {R}, s{sQS} offen offset:{3072 if which == 2 else 1024} sc1", tag))
        return o

    def qloads():
        return [f"buffer_load_dwordx4 v[{Q+4*k}:{Q+4*k+3}], v{vL16}, {R}, s{sREC} offen offset:{1024*k} sc1" for k in range(4)]

    nbar = [0]
    def cbar(for_lag, need=None):
        nbar[0] += 1
        l = f"L_sk{nbar[0]}"
        I(f"s_cbranch_vcc{'z' if for_lag else 'nz'} {l}")
        alts = p.cond("kh", 2)
        with alts[1 if for_lag else 0]:
            if need: p.waitvm(need)
            I("s_waitcnt lgkmcnt(0)\ns_barrier")
        p.label(l)

    STAGES_T = [[0, 3, 6, 9, 13, 17, 21, 25, 29, 35], [0, 3, 6, 10, 14, 18, 22, 26, 30, 35]]
    D, NB = 4, 6
    LA = P('LA', 36)
    PM = 116

    S_W, S_O = S_C0, S_G
    RW = f"s[{S_W}:{S_W+3}]"
    sFLAG, sAB, sGN, sGW, sWM0, sGEMM, sR8 = sRQ
    sE0 = sRG[0]
    WLDS = 98304
    need0 = lambda tag, env: tag == ('KV', -3)
    sc = [f"s_mov_b32 s{S_W}, s16", f"s_mov_b32 s{S_W+1}, s17", f"s_mov_b32 s{S_W+2}, {1792*896}", f"s_mov_b32 s{S_W+3}, 0x00020000",
          f"s_mov_b32 s{S_O}, s18", f"s_mov_b32 s{S_O+1}, s19", f"s_mov_b32 s{S_O+2}, {2048*896}", f"s_mov_b32 s{S_O+3}, 0x00020000",
          f"s_cmp_lt_u32 s2, 224", f"s_cselect_b32 s{sGEMM}, 1, 0",
          f"s_bfe_u32 s{sT1}, s2, 0x20003", f"s_lshr_b32 s{sT2}, s2, 5", f"s_lshl_b32 s{sR8}, s{sT1}, 1", f"s_add_u32 s{sR8}, s{sR8}, s{sT2}",
          f"s_add_u32 s{sGN}, s{sT1}, s{sT2}", f"s_and_b32 s{sGN}, s{sGN}, 3",
          f"s_sub_u32 s{sT2}, s{sR8}, 10", f"s_cmp_ge_u32 s{sR8}, 10", f"s_cselect_b32 s{sR8}, s{sT2}, s{sR8}", f"s_add_u32 s{sR8}, s{sR8}, 4",
          f"s_lshl_b32 s{sGW}, s{sGN}, 3", f"s_add_u32 s{sGW}, s{sGW}, s{sW}", f"s_mul_i32 s{sGW}, s{sGW}, {16*896}", f"s_add_u32 s{sGW}, s{sGW}, s{sCOL}",
          f"s_lshl_b32 s{sGN}, s{sGN}, 13",
          f"s_mul_i32 s{sAB}, s{sRB3}, {2*144*1024}", f"s_add_u32 s{sAB}, s{sAB}, {WS_ACT}", f"s_lshl_b32 s{sT1}, s{sW}, 10", f"s_add_u32 s{sAB}, s{sAB}, s{sT1}",
          f"s_add_u32 s{sGN}, s{sGN}, s{sAB}",
          f"s_lshl_b32 s{sWM0}, s{sW}, 13", f"s_add_u32 s{sWM0}, s{sWM0}, {WLDS}", f"s_mov_b32 s{sFLAG}, 0"]

    wd_prefetch = [] if 'pf3' not in EXP else [
        f"v_lshrrev_b32 v{T+4}, 4, v{vLANE}", f"v_and_b32 v{T+5}, 15, v{vLANE}", f"v_lshl_add_u32 v{T+4}, v{T+4}, 9, v{T+5}",
        f"v_mul_u32_u24 v{T+4}, 896, v{T+4}",
        f"s_bfe_u32 s{sT1}, s2, 0x20003", f"s_lshl_b32 s{sT1}, s{sT1}, 3", f"s_add_u32 s{sT1}, s{sT1}, s{sW}",
        f"s_mul_i32 s{sT1}, s{sT1}, {16*896}", f"s_add_u32 s{sT1}, s{sT1}, s{sCOL}",
        f"s_mov_b32 s{S_D}, s16", f"s_mov_b32 s{S_D+1}, s17", f"s_mov_b32 s{S_D+2}, {1792*896}",
        f"buffer_load_dword v{vSTR}, v{T+4}, {RD_}, s{sT1} offen",
        f"v_mul_u32_u24 v{T+5}, 896, v{T+5}", f"s_bfe_u32 s{sT1}, s2, 0x20003", f"s_lshl_b32 s{sT1}, s{sT1}, 3", f"s_add_u32 s{sT1}, s{sT1}, s{sW}",
        f"s_mul_i32 s{sT1}, s{sT1}, {14*896}", f"s_add_u32 s{sT1}, s{sT1}, s{sCOL}",
        f"s_mov_b32 s{S_D}, s8", f"s_mov_b32 s{S_D+1}, s9", f"s_mov_b32 s{S_D+2}, {448*896}",
        f"buffer_load_dword v{vPD+1}, v{T+5}, {RD_}, s{sT1} offen"]

    def phase1(ty):
        if ty == 0: blocks = [('Q', 0)] * 7 + [('G', 1), ('U', 1)] * 7 + [('G', 2), ('U', 2)] * 7
        else: blocks = [('Q', 0)] * 7 + [('Q', 1)] * 7 + [('G', 2), ('U', 2)] * 7 + [('H', 1)] * 7
        STAGES = STAGES_T[ty]
        slot_of = lambda b: SLOT[ty][b]
        vidx = []; cnt = {}
        for kb in blocks:
            vidx.append(cnt.get(kb, 0)); cnt[kb] = vidx[-1] + 1
        M = []
        b = 0
        while b < 35:
            kind, arg = blocks[b]
            off = slot_of(b) * 8192
            for s_ in range(4):
                ks = 4 * vidx[b] + s_
                im = (off & 0xffff) + s_ * 2048
                if kind == 'Q': M.append((b, b, vLQ[off >> 16], im, ACC1 + 16 * arg, ks))
                elif kind == 'H': M.append((b, b, vLH[off >> 16], im, ACC1 + 32, ks))
                else:
                    acc = ACC1 + 16 if arg == 1 else ACC2
                    for t in range(2): M.append((b, b + 1, vLF[t][off >> 16], im, acc + 16 * t, ks))
            b += 2 if kind == 'G' else 1
        assert len(M) == 140
        first_m, last_m = {}, {}
        for m, e in enumerate(M):
            for bb in (e[0], e[1]):
                first_m.setdefault(bb, m); last_m[bb] = m
        stage_first = {first_m[sb]: i for i, sb in enumerate(STAGES[:-1])}
        owner = {sl: ('X', sl // 2) for sl in range(14)}
        for bb in range(6): owner[slot_of(bb)] = ('W', bb)
        xfree = set(); nxt = [6]
        dmaq, fillq = [], []
        done = [-1]
        def release(m_done): done[0] = m_done
        def pace(m):
            while nxt[0] < 35:
                bb = nxt[0]
                o = owner[slot_of(bb)]
                if not ((o[1] in xfree) if o[0] == 'X' else last_m[o[1]] <= done[0]): break
                if first_m[bb] - m > LA: break
                owner[slot_of(bb)] = ('W', bb)
                kind, arg = blocks[bb]
                if kind == 'H': assert m > 58 and FH[-1] not in fillq
                if ty == 1 and bb == 7: dmaq.extend(srd_adv(S_C0, 896))
                if bb == (21, 28)[ty]: dmaq.extend(srd_adv(S_G, f"s{sDC}") + srd_adv(S_U, f"s{sDC}"))
                dmaq.extend(dma_block(bb, slot_of(bb), kind, vidx[bb]))
                nxt[0] += 1
        def rd(r):
            e = M[r]; d = AF + 4 * (r % NB)
            return [f"ds_read_b64_tr_b16 v[{d+2*jh}:{d+2*jh+1}], v{e[2]} offset:{e[3] + jh*512}" for jh in range(2)]
        side = {}
        def at(m, items): side.setdefault(m, []).extend(items)
        urg = {}
        def atu(m, items): urg.setdefault(m, []).extend(items)
        at(4, [f"ds_write_b32 v{vSTW}, v{vVAR[0]}", f"ds_write_b32 v{vSTW}, v{vVAR[1]} offset:32"])
        at(12, [nonce_load, f"ds_read_b32 v{vIF2}, v{vSTR}"])
        at(5, F2)
        at(20, [f"v_rsq_f32 v{vF}, v{vIF2}", f"v_mul_f32 v{vC1P}, {f32(GC1)}, v{vF}", f"v_mul_f32 v{vC2P}, v{vF}, v{vF}",
                f"v_mul_f32 v{vC2P}, v{vC2P}, v{vF}", f"v_mul_f32 v{vC2P}, {f32(GC2)}, v{vC2P}"])
        at(29, qkv_epi(ACC1, ty, 'QS'))
        atu(48, [lambda: nonce_check(f"L_non{ty}")])
        atu(P('QF1', 52), [flag_store(sQF, 'QS')])
        burst = {}
        if ty == 0:
            at(85, gelu(ACC1 + 16, sH1, 0, 'HS1') + gelu(ACC1 + 32, sH1, 1024, 'HS1'))
            atu(P('HF1', 130), [flag_store(sHF1, 'HS1', two=True)])
        else:
            at(57, qkv_epi(ACC1 + 16, 2, 'QS2'))
            atu(P('QF2', 80), [flag_store(sQF, 'QS2', off=512)])
            at(113, gelu(ACC2, sH1, 0, 'HS2'))
        at(30, F3)
        at(58, FH if ty else [])
        xq = list(range(8, 28))
        I(xread(0)); emit(rd(0))
        for k in range(1, D): I(xread(k)); emit(rd(k))
        for k in range(D, 8): I(xread(k))
        bars = sorted([(x if x in burst else x - D) for x in stage_first if x > 0])
        bar_m = 0
        rd_next = D
        for m in range(140):
            def stage_sync(r, staggered):
                i = stage_first[r]; hi = STAGES[i + 1]
                assert nxt[0] >= hi and not any(f"('W', {bb})" in str(x) for x in dmaq for bb in range(hi)), (ty, m, hi, nxt[0])
                if len(xfree) < 7:
                    k = (28 - len(xq)) // 4
                    p.waitreg(f"v[{XN+16*k-4}:{XN+16*k-1}]")
                    xfree.update(range(k))
                need = lambda tag, env, hi=hi: tag[0] == 'W' and tag[1] < hi
                if staggered: return need
                p.waitvm(need)
                I("s_barrier")
            if m == 3:
                p.waitreg(f"v[{XN+28}:{XN+31}]")
                I("s_barrier")
                xfree.update((0, 1)); release(-1)
            if m in burst:
                bl = burst[m]
                need = stage_sync(m, True)
                cbar(True, need)
                I(f"s_setprio {P('BPRIO', 0)}")
                emit(bl[:-P('BTAIL', 21)])
                cbar(False, need)
                while rd_next < m + D: emit(rd(rd_next)); rd_next += 1
                emit(bl[-P('BTAIL', 21):])
                release(m - 1); bar_m = m
            elif (m + D) in stage_first and (m + D) not in burst:
                stage_sync(m + D, False)
                release(m - 1); bar_m = m
            nb_ = min([x for x in bars if x > m] + [140])
            lv = lambda mm: (4 * (mm - bar_m)) // (nb_ - bar_m)
            if m == bar_m or lv(m) != lv(m - 1): I(f"s_setprio {3 - lv(m)}")
            if m == PM:
                ST('pa0'); poll_check(f"L_pa{ty}", vPK); ST('pa1')
                a_, b_, c_ = kv_group(-3); dmaq += a_ + b_ + c_
                dmaq += qloads()
            lim = min([x for x in burst if x > m] + [140])
            if rd_next <= m + D and rd_next < lim: emit(rd(rd_next)); rd_next += 1
            budget = 2 if (m & 1) == 0 else 3
            if len(fillq) + len(dmaq) > 12: budget += P('XB', 4)
            if m >= 3:
                for _ in range(3):
                    if xq:
                        k = xq.pop(0)
                        if k == 16: emit([f"v_add_u32 v{fa+j}, 65536, v{fa+j}" for j in range(4)])
                        I(xread(k))
            e = M[m]; a_ = AF + 4 * (m % NB); c = e[4]; ks = e[5]
            if (m & 1) == 0 and m + 1 < rd_next and m >= 28:
                a2 = AF + 4 * ((m + 1) % NB)
                p.waitreg(f"v[{a2}:{a2+3}]")
            cin = '0' if ks == 0 else f"v[{c}:{c+15}]"
            I(f"v_mfma_f32_32x32x16_bf16 v[{c}:{c+15}], v[{a_}:{a_+3}], v[{XN+4*ks}:{XN+4*ks+3}], {cin}")
            fillq += side.get(m, [])
            for it in urg.get(m, []):
                assert not any('buffer_store' in str(x) for x in fillq), ("stores still queued", ty, m)
                emit([it]); budget -= 2
            pace(m)
            if m == PM - 12:
                assert F3[-1] not in fillq
                dmaq.append(poll_load(vPK))
            nv = False
            while budget > 0:
                it = None
                for q in (dmaq, fillq):
                    if q and not (nv and 'buffer_' in str(q[0])):
                        it = q.pop(0); break
                if it is None: break
                nv = nv or 'buffer_' in str(it)
                emit([it]); budget -= len(it) if isinstance(it, Atom) else 1
            if m == 83: ST('p1')
            ST(f'm{m}')
        assert nxt[0] == 35
        emit(fillq); emit(dmaq)
        ST('p2')
        if ty == 0: ge = gelu(ACC2, sH2, 0, 'HS2') + gelu(ACC2 + 16, sH2, 1024, 'HS2')
        else: ge = gelu(ACC2 + 16, sH1, 1024, 'HS2') + gelu(ACC1 + 32, sH2, 0, 'HS2')
        kv = []
        for st in (-2, -1):
            a_, b_, c_ = kv_group(st); kv += a_ + b_ + c_
        k0 = P('KV0', 60)
        emit(interleave([[x] for x in ge[:k0]], kv) + interleave([[x] for x in ge[k0:]], sc))

    p.waitvm(lambda tag, env: tag[0] == 'W' and tag[1] < 3)
    I("s_waitcnt lgkmcnt(0)\ns_barrier")
    ST('barA')
    I(f"s_cmp_lg_u32 s{sTY}, 0\ns_cbranch_scc1 L_p1C")
    altA, altC = p.cond("type", 2)
    with altA:
        phase1(0)
        I("s_branch L_fin")
    with altC:
        p.label("L_p1C")
        phase1(1)
    p.label("L_fin")
    vK, vV0, vV1, vT0, vT1, vT2, vT3, vM, vWO, vGA, vGA1, vXO, vL16B = 14, 2, 3, 4, 5, 6, 7, 8, 9, 10, 11, 12, 13
    XRS = 224

    def smfma(half):
        cin = '0' if half == 0 else f"v[{SB}:{SB+15}]"
        return f"v_mfma_f32_32x32x16_bf16 v[{SB}:{SB+15}], v[{KF+4*half}:{KF+4*half+3}], v[{Q+4*half}:{Q+4*half+3}], {cin}"

    ST('gelu')
    I(smfma(0)); I(smfma(1))
    I(f"v_lshrrev_b32 v{vT0}, 3, v{vLANE}\nv_and_b32 v{vT1}, 7, v{vLANE}")
    I(f"v_lshlrev_b32 v{vT2}, 1, v{vT0}\nv_and_b32 v{vT2}, 4, v{vT2}\nv_xor_b32 v{vT2}, v{vT2}, v{vT1}")
    I(f"v_mul_u32_u24 v{vWO}, 896, v{vT0}\nv_lshl_add_u32 v{vWO}, v{vT2}, 4, v{vWO}")
    vWO2 = T
    I(f"v_add_u32 v{vWO2}, {8*896 - 1024}, v{vWO}")
    I(f"v_add_u32 v{vL16B}, {144*1024}, v{vL16}")
    I(f"v_and_b32 v{vT0}, 3, v{vLANE}\nv_lshlrev_b32 v{vGA}, 3, v{vT0}")
    I(f"v_bfe_u32 v{vT0}, v{vLANE}, 4, 1\nv_lshl_add_u32 v{vGA}, v{vT0}, 5, v{vGA}")
    I(f"v_bfe_u32 v{vT1}, v{vLANE}, 3, 1\nv_lshl_add_u32 v{vGA}, v{vT1}, 6, v{vGA}")
    I(f"v_bfe_u32 v{vT3}, v{vLANE}, 2, 2\nv_lshl_add_u32 v{vGA}, v{vT3}, 7, v{vGA}")
    I(f"v_lshrrev_b32 v{vT2}, 5, v{vLANE}\nv_lshl_add_u32 v{vGA}, v{vT2}, 9, v{vGA}")
    I(f"v_add_u32 v{vGA}, s{sWM0}, v{vGA}\nv_xor_b32 v{vGA1}, 64, v{vGA}")
    I(f"v_add_u32 v{vK}, s{sKB}, v{vL16}")
    I(f"v_and_b32 v{vT1}, 1, v{vLANE}\nv_xor_b32 v{vT2}, v{vT2}, v{vT1}")
    I(f"v_mul_u32_u24 v{vV0}, {1024+128}, v{vT0}")
    I(f"v_lshl_add_u32 v{vV0}, v{vT1}, 9, v{vV0}\nv_lshl_add_u32 v{vV0}, v{vT2}, 6, v{vV0}\nv_lshl_add_u32 v{vV0}, v{vT3}, 4, v{vV0}")
    I(f"v_bfe_u32 v{vT1}, v{vLANE}, 1, 1\nv_lshl_add_u32 v{vV0}, v{vT1}, 3, v{vV0}")
    I(f"v_add_u32 v{vV0}, s{sKB}, v{vV0}\nv_add_u32 v{vV0}, 2048, v{vV0}\nv_xor_b32 v{vV1}, 128, v{vV0}")

    def set_pads():
        I(f"v_sub_f32 v{vT0}, 0, v{vM}")
        I(f"v_and_b32 v{vT1}, 0xffff0000, v{vT0}\nv_sub_f32 v{vT0}, v{vT0}, v{vT1}")
        I(f"v_and_b32 v{vT2}, 0xffff0000, v{vT0}\nv_sub_f32 v{vT0}, v{vT0}, v{vT2}")
        I(f"v_lshrrev_b32 v{vT1}, 16, v{vT1}\nv_or_b32 v{vT1}, v{vT1}, v{vT2}\nv_lshrrev_b32 v{vT0}, 16, v{vT0}")
        I(f"v_and_b32 v{vT1}, v{vT1}, v{vHI}\nv_and_b32 v{vT0}, v{vT0}, v{vHI}")
        I(f"v_and_or_b32 v{Q+6}, v{Q+6}, v{vKEEP}, v{vT1}\nv_and_or_b32 v{Q+7}, v{Q+7}, v{vKEEP}, v{vT0}")

    def max16(c, first):
        o = []
        if first:
            o += [f"v_max3_f32 v{vM}, v{c}, v{c+1}, v{c+2}", f"v_max_f32 v{vM}, v{vM}, v{c+15}"]
            ks = range(3, 15, 2)
        else:
            ks = range(0, 16, 2)
        return o + [f"v_max3_f32 v{vM}, v{vM}, v{c+k}, v{c+k+1}" for k in ks]

    def cross_max():
        I(f"v_mov_b32 v{vT0}, v{vM}\nv_permlane32_swap_b32 v{vT0}, v{vM}\nv_max_f32 v{vM}, v{vM}, v{vT0}")

    emit(max16(SB, True)); cross_max(); set_pads()

    def gw_issue(n):
        slot, tag = n & 3, ('GW', n)
        lo_, hi_ = (0, 4) if n < 4 else (4, 14)
        m0 = f"s_add_u32 m0, s{sWM0}, {slot*2048}"
        d = [Atom((m0, (f"buffer_load_dwordx4 v{vWO}, {RW}, s{sGW} offen lds", tag))),
             Atom((m0, (f"buffer_load_dwordx4 v{vWO2}, {RW}, s{sGW} offen offset:1024 lds", tag)))]
        post = []
        if n == 3:
            post = [f"s_lshl_b32 s{sGW}, s{sR8}, 3", f"s_add_u32 s{sGW}, s{sGW}, s{sW}", f"s_mul_i32 s{sGW}, s{sGW}, {16*896}", f"s_add_u32 s{sGW}, s{sGW}, s{sCOL}"]
        elif n < 13:
            post = [f"s_add_u32 s{sGW}, s{sGW}, {128*896}", f"s_sub_u32 s{sT2}, s{sGW}, {(hi_-lo_)*128*896}",
                    Atom((f"s_cmp_ge_u32 s{sGW}, {hi_*128*896}", f"s_cselect_b32 s{sGW}, s{sT2}, s{sGW}"))]
        return d + post

    def gb_issue(n):
        b = GB + 8 * (n & 3)
        lo_, hi_ = (0, 4) if n < 4 else (4, 14)
        d = [f"buffer_load_dwordx4 v[{b}:{b+3}], v{vL16}, {R}, s{sGN} offen sc1", f"buffer_load_dwordx4 v[{b+4}:{b+7}], v{vL16B}, {R}, s{sGN} offen sc1"]
        post = []
        if n == 3: post = [f"s_lshl_b32 s{sGN}, s{sR8}, 13", f"s_add_u32 s{sGN}, s{sGN}, s{sAB}"]
        elif n < 13:
            post = [f"s_add_u32 s{sGN}, s{sGN}, 8192", f"s_sub_u32 s{sT1}, s{sGN}, s{sAB}", f"s_sub_u32 s{sE0}, s{sGN}, {(hi_-lo_)*8192}",
                    Atom((f"s_cmp_eq_u32 s{sT1}, {hi_*8192}", f"s_cselect_b32 s{sGN}, s{sE0}, s{sGN}"))]
        return d + post

    def wo_issue(i, m0val):
        tag = ('GW', 14 + i)
        return [f"s_add_u32 s{sT2}, s{sGW}, {112*896*i}", m0val,
                (f"buffer_load_dwordx4 v{vWO}, {RW}, s{sT2} offen lds", tag),
                (f"buffer_load_dwordx4 v{vWO2}, {RW}, s{sT2} offen offset:1024 lds", tag)]

    def g_reads(off, ga, a0_=None, a1_=None):
        return [f"ds_read_b64_tr_b16 v[{ga+4*ct+2*jh}:{ga+4*ct+2*jh+1}], v{(a0_ or vGA, a1_ or vGA1)[ct]} offset:{off + jh*1024}"
                for ct in range(2) for jh in range(2)]

    def g_mfma(ga, gb, ct, tt, first=False):
        c = G + 16 * (2 * ct + tt)
        cin = '0' if first else f"v[{c}:{c+15}]"
        return f"v_mfma_f32_32x32x16_bf16 v[{c}:{c+15}], v[{ga+4*ct}:{ga+4*ct+3}], v[{gb+4*tt}:{gb+4*tt+3}], {cin}"

    def kread(t): return [f"ds_read_b128 v[{KF+4*h}:{KF+4*h+3}], v{vK} offset:{(t % 12)*4096 + h*1024}" for h in range(2)]
    def vread(t, u):
        return [f"ds_read_b64_tr_b16 v[{VF+4*u+2*jh}:{VF+4*u+2*jh+1}], v{(vV0, vV1)[jh]} offset:{((t + 1) % 12)*4096 + u*256}" for jh in range(2)]
    def pv(t, first=False):
        cin = '0' if first else f"v[{O}:{O+15}]"
        return f"v_mfma_f32_32x32x16_bf16 v[{O}:{O+15}], v[{VF+4*t}:{VF+4*t+3}], v[{PF+4*t}:{PF+4*t+3}], {cin}"

    def vphase():
        emit([f"v_exp_f32 v{SB+k}, v{SB+k}" for k in range(16)])
        emit([f"v_cvt_pk_bf16_f32 v{PF+k}, v{SB+2*k}, v{SB+2*k+1}" for k in range(8)])

    T0 = P('T0', 10)
    NIN = (32 - T0) // 2

    def grd(n):
        p.waitvm(lambda tag, env: tag[0] == 'GW' and tag[1] <= n)
        emit(g_reads((n & 3) * 2048, GA + 8 * (n & 1)))

    def late_flags():
        return [Atom((f"s_cmp_eq_u32 s{sTY}, 0", f"s_cselect_b32 s{sHF1}, s{sHF2}, s{sHF1}")),
                flag_store(sHF1, 'HS2', two=True), flag_store(sHF2, 'HS2')]

    def attention(gemm):
        S = {k: [] for k in ('kv', 'gw', 'gb', 'misc')}
        def add(stream, e, d, key, items):
            for it in items: S[stream].append((e, d, key, it))
        vpre = [[] for _ in range(34)]
        for st in range(0, 6):
            a_, b_, c_ = kv_group(st)
            add('kv', 4 * st + 3, 4 * st + 10, ('KV', st), a_ + b_ + c_)
        if gemm:
            PB, LF = T0 - P('PBD', 5), P('LF', 4)
            for n in range(14):
                use = T0 + 2 * n
                ew = (0, 3, 4, 5)[n] if n < 4 else use - 7
                eb = PB + (1, 3, 4, 5)[n] if n < 4 else use - 6
                add('gw', ew, use - 1, ('GW', n), gw_issue(n))
                add('gb', eb, use, ('GB', n), gb_issue(n))
            tl = T0 + 2
            ms = sorted([(PB - 2, [poll_load(vPH)], 'P1'), (LF, late_flags(), 'LF'), (tl - 3, [poll_load(vPH)], 'P2')], key=lambda x: x[0])
            for e, items, key in ms: add('misc', e, e, key, items)
            assert tl - 3 > PB
            vpre[PB] += [lambda: chk('P1'), lambda: ST('pb0'), lambda: poll_check("L_pb", vPH, 0xff), lambda: ST('pb1')]
            vpre[tl - 1] += [lambda: chk('P2'), lambda: ST('pc0'), lambda: poll_check("L_pc", vPH), lambda: ST('pc1')]
        isvm = lambda it: 'buffer_' in str(it)
        def chk(key):
            assert not any(x[2] == key and isvm(x[3]) for q in S.values() for x in q), ("not issued in time", key)
        p.waitvm(need0)
        I("s_waitcnt lgkmcnt(0)\ns_barrier")
        emit(kread(0))
        if gemm: ST('astart')
        for t in range(32):
            st, i = t >> 2, t & 3
            n = (t - T0) >> 1
            g_on = gemm and t >= T0
            def gap(budget, vm_ok):
                while budget > 0:
                    cand = [q for q in S.values() if q and q[0][0] <= t and (vm_ok or not isvm(q[0][3]))]
                    if not cand: break
                    q = min(cand, key=lambda q: (q[0][1], not isvm(q[0][3])))
                    it = q.pop(0)[3]
                    if isvm(it): vm_ok = False
                    emit([it]); budget -= len(it) if isinstance(it, Atom) else 1
            busy = len([x for q in S.values() for x in q if x[0] <= t and isvm(x[3])]) > 2
            needkv = lambda tag, env, st=st: tag[0] == 'KV' and tag[1] <= st - 2
            if i == 2:
                chk(('KV', st - 2)); cbar(True, needkv)
            I(f"s_setprio {3 - ((i - 2) & 3)}")
            I(smfma(0)); gap(5, True)
            I(smfma(1))
            if t < 31: emit(kread(t + 1))
            gap(3, not g_on)
            if t > 0: I(pv(0, t == 1))
            emit(vread(t, 0)); gap(3, busy or not g_on)
            if t > 0: I(pv(1))
            emit(vread(t, 1))
            if g_on:
                gap(3, False)
                chk(('GB', n))
                ga, gb = GA + 8 * (n & 1), GB + 8 * (n & 3)
                I(g_mfma(ga, gb, t & 1, 0, n == 0))
                gap(5, True)
                I(g_mfma(ga, gb, t & 1, 1, n == 0))
            if gemm and t >= T0 - 1 and ((t - T0) & 1) == 1 and n + 1 < 14:
                chk(('GW', n + 1)); grd(n + 1)
            if i == 2: cbar(False, needkv)
            emit(vpre[t])
            vphase()
            if gemm: ST(f"t{t}")
        for q in S.values(): emit([x[3] for x in q])

    I(f"s_cmp_eq_u32 s{sGEMM}, 0\ns_cbranch_scc1 L_plain0")
    ag, an = p.cond("gemm", 2)
    with ag:
        attention(True)
        I("s_branch L_attn_done")
    with an:
        p.label("L_plain0")
        emit(late_flags())
        p.label("L_plain")
        attention(False)
    p.label("L_attn_done")
    I(pv(0)); I(pv(1))
    I("s_setprio 0")
    ST('aend')
    FLAGS = 16384
    I(f"s_lshl_b32 s{sT0}, s{sW}, 2\ns_add_u32 s{sT0}, s{sT0}, {FLAGS}\nv_mov_b32 v{vT2}, s{sT0}")
    I(f"s_lshl_b32 s{sT0}, s{sQT}, 12\nv_add_u32 v{vT3}, s{sT0}, v{vL16}")
    I("s_waitcnt lgkmcnt(0)\ns_barrier")
    I(f"v_and_b32 v{vT0}, v{O+12}, v{vHI}")
    I(f"v_cmp_ngt_f32 vcc, {f32(2.0**30)}, v{vT0}")
    I(f"s_cmp_lg_u64 vcc, 0\ns_cselect_b32 s{sT0}, 1, 0\nv_mov_b32 v{vT1}, s{sT0}")
    I(f"ds_write_b32 v{vT2}, v{vT1}")
    I(f"s_cmp_eq_u32 s{sKH}, 0\ns_cbranch_scc1 L_nowr")
    a0_, a1_ = p.cond("kh", 2)
    with a1_:
        for k in range(4): I(f"ds_write_b128 v{vT3}, v[{O+4*k}:{O+4*k+3}] offset:{k*1024}")
    p.label("L_nowr")
    I(f"v_and_b32 v{vT1}, 7, v{vLANE}\nv_lshlrev_b32 v{vT1}, 2, v{vT1}")
    I("s_waitcnt lgkmcnt(0)\ns_barrier")
    I(f"ds_read_b32 v{vT2}, v{vT1} offset:{FLAGS}")
    for k in range(4): I(f"ds_read_b128 v[{TMP+4*k}:{TMP+4*k+3}], v{vT3} offset:{k*1024}")
    I(f"v_cmp_ne_u32 vcc, 0, v{vT2}")
    I(f"s_cmp_lg_u64 vcc, 0\ns_cselect_b32 s{sT0}, 1, 0\ns_andn2_b32 s{sT0}, s{sT0}, s{sFLAG}")
    I(f"s_cmp_lg_u32 s{sT0}, 0\ns_cbranch_scc1 L_fallback")
    I(f"s_cmp_lg_u32 s{sKH}, 0\ns_cbranch_scc1 L_nostore")
    a0_, a1_ = p.cond("kh", 2)
    with a0_:
        for k in range(16): I(f"v_add_f32 v{O+k}, v{O+k}, v{TMP+k}")
        I(f"v_mov_b32 v{vT0}, v{O+12}\nv_mov_b32 v{vT1}, v{O+12}\nv_permlane32_swap_b32 v{vT0}, v{vT1}")
        I(f"v_rcp_f32 v{vT1}, v{vT1}")
        for k in range(16): I(f"v_mul_f32 v{O+k}, v{O+k}, v{vT1}")
        for k in range(8): I(f"v_cvt_pk_bf16_f32 v{TMP+k}, v{O+2*k}, v{O+2*k+1}")
        for k in (6, 7): I(f"v_and_b32 v{TMP+k}, v{TMP+k}, v{vKEEP}")
        I(f"buffer_store_dwordx4 v[{TMP}:{TMP+3}], v{vL16}, {R}, s{sOS} offen sc1", tag='OS')
        I(f"buffer_store_dwordx4 v[{TMP+4}:{TMP+7}], v{vL16}, {R}, s{sOS} offen offset:1024 sc1", tag='OS')
        emit([flag_store(sOF, 'OS')])
    p.label("L_nostore")
    ST('opub')
    I(f"s_cmp_eq_u32 s{sGEMM}, 0\ns_cbranch_scc1 L_end")
    I(f"s_mov_b32 s{S_W}, s8\ns_mov_b32 s{S_W+1}, s9\ns_mov_b32 s{S_W+2}, {448*896}")
    I(f"s_lshr_b32 s{sT1}, s{sW}, 1\ns_mul_i32 s{sGW}, s{sT1}, 28\ns_and_b32 s{sT0}, s{sW}, 1\ns_lshl_b32 s{sT0}, s{sT0}, 4\ns_add_u32 s{sGW}, s{sGW}, s{sT0}")
    I(f"s_mul_i32 s{sGW}, s{sGW}, 896\ns_add_u32 s{sGW}, s{sGW}, s{sCOL}\ns_sub_u32 s{sE0}, s{sWM0}, 65536")
    for i in range(4): emit(wo_issue(i, f"s_add_u32 m0, s{sE0}, {i*2048}"))
    I(f"s_lshl_b32 s{sT0}, s{sRB3}, 5\ns_add_u32 s{sT0}, s{sT0}, s{sT1}\ns_lshl_b32 s{sT0}, s{sT0}, 3\ns_add_u32 s{sT0}, s{sT0}, {F_O}")
    I(f"v_and_b32 v{vT0}, 1, v{vLANE}\nv_bfe_u32 v{vT1}, v{vLANE}, 1, 2\nv_lshl_add_u32 v{vT0}, v{vT0}, 2, v{vT1}\nv_lshl_add_u32 v{vPH}, v{vT0}, 5, s{sT0}")
    I(f"s_bfe_u32 s{sT0}, s{sW}, 0x10001\ns_lshl_b32 s{sT1}, s{sRB3}, 1\ns_add_u32 s{sT0}, s{sT0}, s{sT1}\ns_mul_i32 s{sT0}, s{sT0}, {32*896}")
    I(f"s_lshl_b32 s{sT1}, s{sKH}, 6\ns_add_u32 s{sT0}, s{sT0}, s{sT1}\ns_and_b32 s{sT1}, s{sW}, 1\ns_lshl_b32 s{sT1}, s{sT1}, 5")
    I(f"s_add_u32 s{sT0}, s{sT0}, s{sT1}\ns_add_u32 s{sT0}, s{sT0}, s{sCOL}")
    I(f"v_and_b32 v{vT0}, 31, v{vLANE}\nv_mul_u32_u24 v{vXO}, 896, v{vT0}\nv_lshrrev_b32 v{vT1}, 5, v{vLANE}")
    I(f"v_lshl_add_u32 v{vXO}, v{vT1}, 4, v{vXO}\nv_add_u32 v{vXO}, s{sT0}, v{vXO}")
    I(f"buffer_load_dwordx4 v[{XRS}:{XRS+3}], v{vXO}, s[{S_X}:{S_X+3}], 0 offen")
    for n in range(NIN, 14):
        if n > NIN: grd(n)
        for tt in range(2):
            for ct in range(2): I(g_mfma(GA + 8 * (n & 1), GB + 8 * (n & 3), ct, tt))
    I(poll_load(vPH))
    AR = [GA, GA + 8, SB, SB + 8]
    I(f"v_subrev_u32 v{vT2}, 65536, v{vGA}\nv_subrev_u32 v{vT3}, 65536, v{vGA1}")
    p.waitvm(lambda tag, env: tag[0] == 'GW')
    for i in range(4): emit(g_reads(i * 2048, AR[i], vT2, vT3))
    I(f"s_add_u32 s{sT1}, s{sAB}, {112*1024}")
    poll_check("L_pd", vPH)
    ST('opoll')
    for i in range(4):
        b = GB + 8 * i
        I(f"buffer_load_dwordx4 v[{b}:{b+3}], v{vL16}, {R}, s{sT1} offen sc1")
        I(f"buffer_load_dwordx4 v[{b+4}:{b+7}], v{vL16B}, {R}, s{sT1} offen sc1")
        if i < 3: I(f"s_add_u32 s{sT1}, s{sT1}, 8192")
    I(f"s_lshl_b32 s{sT0}, s{sW}, 14\nv_add_u32 v{vT0}, s{sT0}, v{vL16}")
    I(f"s_lshl_b32 s{sT0}, s{sW}, 11\nv_and_b32 v{vT1}, 31, v{vLANE}\nv_lshlrev_b32 v{vT1}, 4, v{vT1}\nv_lshrrev_b32 v{vM}, 5, v{vLANE}")
    I(f"v_lshl_add_u32 v{vT1}, v{vM}, 10, v{vT1}\nv_add_u32 v{vT1}, s{sT0}, v{vT1}\nv_add_u32 v{vM}, 65536, v{vT1}")
    I("s_waitcnt lgkmcnt(0)\ns_barrier")
    for i in range(4):
        for tt in range(2):
            for ct in range(2): I(g_mfma(AR[i], GB + 8 * i, ct, tt))
    ST('womfma')
    for k in range(16): I(f"ds_write_b128 v{vT0}, v[{G+4*k}:{G+4*k+3}] offset:{k*1024}")
    ACC = 96
    for k in range(4):
        I(f"v_lshlrev_b32 v{ACC+2*k}, 16, v{XRS+k}\nv_and_b32 v{ACC+2*k+1}, 0xffff0000, v{XRS+k}")
    I("s_waitcnt lgkmcnt(0)\ns_barrier")
    ST('redw')
    RDB = 128
    for sw in range(8):
        for h in range(2):
            d = RDB + sw * 8 + h * 4
            I(f"ds_read_b128 v[{d}:{d+3}], v{(vT1, vM)[sw >> 2]} offset:{(sw & 3) * 16384 + h * 512}")
    for sw in range(8):
        for k in range(8): I(f"v_add_f32 v{ACC+k}, v{ACC+k}, v{RDB+sw*8+k}")
    for k in range(4): I(f"v_cvt_pk_bf16_f32 v{XRS+k}, v{ACC+2*k}, v{ACC+2*k+1}")
    I(f"buffer_store_dwordx4 v[{XRS}:{XRS+3}], v{vXO}, s[{S_O}:{S_O+3}], 0 offen")
    if prof is not None: I("s_waitcnt vmcnt(0)")
    p.stamp(8)
    if prof is not None: I(f"s_mov_b32 s{sT0}, s{sW}")
    if 'dbgst' in EXP:
        I(f"s_waitcnt vmcnt(0) lgkmcnt(0)\ns_mov_b32 s{S_D}, s{sDP}\ns_mov_b32 s{S_D+1}, s{sDP+1}\ns_mov_b32 s{S_D+2}, 256")
        I(f"s_cmp_eq_u32 s2, 8\ns_cselect_b32 s{sT1}, 8, 4096\ns_cmp_eq_u32 s2, 135\ns_cselect_b32 s{sT1}, 36, s{sT1}\ns_cmp_eq_u32 s{sW}, 0\ns_cselect_b32 s{sT1}, s{sT1}, 4096")
        for k, j in enumerate((1, 2, 3, 4, 5, 6, 8)):
            I(f"s_sub_u32 s{sT2}, s{84+2*j}, s84\nv_mov_b32 v2, s{sT2}\nbuffer_store_dword v2, v{vZ}, {RD_}, s{sT1} offen offset:{4*k}")
    else:
        p.dump_stamps(9, sT0, S_WS)
    p.label("L_end")
    I("s_endpgm")
    p.root.append(Fence())
    p.label("L_fallback")
    I("s_waitcnt vmcnt(0) lgkmcnt(0)\ns_nop 15\ns_barrier")
    I(f"s_mov_b32 s{sFLAG}, 1")
    emit(kv_init())
    for n in (-3, -2, -1):
        a_, b_, c_ = kv_group(n); emit(a_ + b_ + c_)
    I(f"v_and_b32 v{Q+6}, v{Q+6}, v{vKEEP}\nv_and_b32 v{Q+7}, v{Q+7}, v{vKEEP}")
    I(f"v_mov_b32 v{vM}, 0xff800000")
    I(f"s_mul_i32 s{sT1}, s{sKH}, {32*6144}\ns_sub_u32 s{sT0}, s{sHB2}, s{sT1}\ns_mov_b32 s{sT1}, 64")
    p.label("L_fbloop")
    with p.loop('f', 2):
        I(f"buffer_load_dwordx4 v[{KF}:{KF+3}], v{vL16}, {R}, s{sT0} offen sc1")
        I(f"buffer_load_dwordx4 v[{KF+4}:{KF+7}], v{vL16}, {R}, s{sT0} offen offset:1024 sc1")
        I(smfma(0)); I(smfma(1))
        emit(max16(SB, False))
        I(f"s_add_u32 s{sT0}, s{sT0}, 6144\ns_sub_u32 s{sT1}, s{sT1}, 1\ns_cmp_lg_u32 s{sT1}, 0\ns_cbranch_scc1 L_fbloop")
    cross_max()
    set_pads()
    I(f"s_cmp_lg_u32 s{sKH}, 0\ns_cselect_b64 vcc, -1, 0")
    I("s_waitcnt vmcnt(0) lgkmcnt(0)\ns_nop 7")
    I("s_branch L_plain")
    for fn in outofline:
        p.root.append(Fence())
        fn()
    p.label("L_code_end")
    I("s_endpgm")
    p.finalize()
    return p


if __name__ == "__main__":
    p = gen_mk("x")
    print(p.text()); print(p.max_vgpr())
```

```python
import math, struct, os
from asmgen import *

EXP = set(os.environ.get('MKEXP', '').split(','))
STN = os.environ.get('MKST', 'ln,barA,p1,p2,astart,aend').split(',')
def P(name, default): return int(os.environ.get('MK_' + name, default))
def f32(x): return struct.unpack('<I', struct.pack('<f', x))[0]

WS_QKV = 0
WS_ACT = 8 << 20
WS_FLAG = 24 << 20
F_QKV, F_H, F_O = WS_FLAG, WS_FLAG + 65536, WS_FLAG + 131072
WS_SIZE = 32 << 20
SPIN_MAX = 1 << 18
QSCALE = (28 ** -0.5) * math.log2(math.e)
GC1 = -2.0 * math.log2(math.e) * math.sqrt(2.0 / math.pi)
GC2 = GC1 * 0.044715


def flat(items):
    out = []
    for it in items:
        if isinstance(it, list): out += flat(it)
        else: out.append(it)
    return out


class Atom(tuple):
    pass


def gen_mk(name, prof=None):
    p = Prog(); p.prof = prof
    I = p.i
    def ST(nm):
        if nm in STN: p.stamp(1 + STN.index(nm))
    SA = SAlloc(24, 84)
    SA.add([3])

    def srd(d, ptr, size):
        I(f"s_mov_b32 s{d}, s{ptr}\ns_mov_b32 s{d+1}, s{ptr+1}\ns_mov_b32 s{d+2}, {size}\ns_mov_b32 s{d+3}, 0x00020000")

    def srd_adv(d, delta):
        return [Atom((f"s_add_u32 s{d}, s{d}, {delta}", f"s_addc_u32 s{d+1}, s{d+1}, 0")), f"s_sub_u32 s{d+2}, s{d+2}, {delta}"]

    def emit(items):
        for it in items:
            if isinstance(it, (Atom, list)): emit(it)
            elif isinstance(it, tuple): I(it[0], tag=it[1])
            elif callable(it): it()
            else: I(it)

    outofline = []

    def L(text):
        out = []
        for line in flat([t.split('\n') for t in ([text] if isinstance(text, str) else text)]):
            if line.startswith('s_cselect'):
                prev = out.pop()
                out.append(Atom((tuple(prev) if isinstance(prev, Atom) else (prev,)) + (line,)))
            else: out.append(line)
        return out

    S_X, S_C0, S_WS, S_G, S_U, S_D = SA.a('X', 'C0', 'WS', 'G', 'U', 'D', align=4, n=4)
    sN0 = SA.a('N', align=2, n=2); sN1 = sN0 + 1
    sM = SA.a('M', align=2, n=2)
    sW, sCH, sTY, sT0, sT1, sT2, sT4, sSPIN, sW1K = SA.a('W', 'CH', 'TY', 'T0', 'T1', 'T2', 'T4', 'SPIN', 'W1K')
    sRQ = SA.a(*[f'RQ{k}' for k in range(7)])
    sRG = SA.a(*[f'RG{k}' for k in range(7)])
    sRB, sIDX, sROT, sTT = SA.a('RB', 'IDX', 'ROT', 'TT')
    R = f"s[{S_WS}:{S_WS+3}]"
    RD_ = f"s[{S_D}:{S_D+3}]"
    vLANE, vXOFF, vQ, vG, vU = 0, 1, 2, 3, 4
    vPH, vPK = 1, 14
    vLQ = [5, 6, 7]; vLF = [[8, 9, 10], [11, 12, 13]]; vL16 = 15
    XN = 16
    ACC1, ACC2, AF, T = 128, 176, 208, 232
    vH, vLH = T, [None, T + 1, T + 2]
    vN, vPD, vSTR, vZ = 240, 244, 246, 247
    vF, vC1P, vC2P, vIF2, vKEEP, vHI, vSW0, vSW1 = 248, 249, 250, 251, 252, 253, 254, 255
    STATS = 0
    SLOT = [[14 + b for b in range(6)] + [b - 5 for b in range(6, 17)] + [b - 16 for b in range(17, 27)] + [12 + k for k in range(8)],
            [14 + b for b in range(6)] + [b - 5 for b in range(6, 18)] + [b - 17 for b in range(18, 28)] + [13 + k for k in range(7)]]

    I("s_cmp_ge_u32 s2, 256\ns_cbranch_scc1 L_end")
    if 'scr' in EXP: I("s_and_b32 s3, s2, 7\ns_lshl_b32 s3, s3, 5\ns_lshr_b32 s2, s2, 3\ns_or_b32 s2, s2, s3")
    p.stamp(0); p.stamp(7, True)
    I("s_load_dwordx16 s[4:19], s[0:1], 0\ns_load_dwordx4 s[20:23], s[0:1], 64")
    I(f"s_memrealtime s[{sN0}:{sN1}]")
    I(f"v_lshrrev_b32 v1, 6, v0\nv_readfirstlane_b32 s{sW}, v1\nv_and_b32 v{vLANE}, 63, v0")
    I(f"v_lshlrev_b32 v{vL16}, 4, v{vLANE}")
    if 'nopf' not in EXP:
        I(f"s_getpc_b64 s[{S_D}:{S_D+1}]")
        p.label("L_pcbase")
        I(f"s_mov_b32 s{S_D+2}, L_code_end-L_pcbase\ns_mov_b32 s{S_D+3}, 0x00020000")
        I(f"s_and_b32 s{sT4}, s2, 0x38\ns_add_u32 s{sT4}, s{sT4}, s{sW}\ns_lshl_b32 s{sT4}, s{sT4}, 10")
        I(f"buffer_load_dwordx4 v[204:207], v{vL16}, s[{S_D}:{S_D+3}], s{sT4} offen")
    I(f"s_and_b32 s{sT0}, s2, 1\ns_lshl_b32 s{sT0}, s{sT0}, 3\ns_bfe_u32 s{sRB}, s2, 0x30003\ns_add_u32 s{sRB}, s{sRB}, s{sT0}")
    I(f"s_lshr_b32 s{sT1}, s2, 6\ns_lshr_b32 s{sTY}, s2, 7")
    I(f"s_lshl_b32 s{sROT}, s{sT1}, 1\ns_add_u32 s{sROT}, s{sROT}, s{sRB}")
    I(f"s_sub_u32 s{sT0}, s{sROT}, 14\ns_cmp_ge_u32 s{sROT}, 14\ns_cselect_b32 s{sROT}, s{sT0}, s{sROT}")
    I(f"s_sub_u32 s{sT0}, s{sROT}, 7\ns_cmp_ge_u32 s{sROT}, 7\ns_cselect_b32 s{sROT}, s{sT0}, s{sROT}")
    I(f"s_and_b32 s{sIDX}, s2, 6\ns_and_b32 s{sT1}, s{sT1}, 1\ns_add_u32 s{sIDX}, s{sIDX}, s{sT1}")
    I(f"v_lshrrev_b32 v{T}, 3, v{vLANE}\nv_and_b32 v{T+1}, 7, v{vLANE}")
    I(f"v_mul_u32_u24 v{vXOFF}, 896, v{T}\nv_lshl_add_u32 v{vXOFF}, v{T+1}, 4, v{vXOFF}")
    I(f"s_lshl_b32 s{sT0}, s{sRB}, 3\ns_add_u32 s{sT0}, s{sT0}, s{sW}\ns_mul_i32 s{sT0}, s{sT0}, {16*896}")
    I(f"v_add_u32 v{vXOFF}, s{sT0}, v{vXOFF}\nv_add_u32 v199, {8*896}, v{vXOFF}")
    I(f"s_lshl_b32 s{sRG[0]}, s{sROT}, 7")
    for v in range(1, 7):
        I(f"s_add_u32 s{sRG[v]}, s{sRG[v-1]}, 128\ns_cmp_eq_u32 s{sRG[v]}, 896\ns_cselect_b32 s{sRG[v]}, 0, s{sRG[v]}")
    I("s_waitcnt lgkmcnt(0)")
    SA.add([0, 1, 10, 11])
    srd(S_X, 4, 2048 * 896)
    XR = lambda g, v: ACC1 + (g * 7 + v) * 4
    ST('karg')
    def xload(g, offs):
        for v in range(7):
            I(f"buffer_load_dwordx4 v[{XR(g,v)}:{XR(g,v)+3}], v{(vXOFF, 199)[g]}, s[{S_X}:{S_X+3}], s{offs[v]} offen")
    xload(0, sRG)
    if 'noxsplit' in EXP: xload(1, sRG)
    srd(S_C0, 6, 448 * 2688)
    I(f"s_mul_i32 s{sT0}, s{sIDX}, 112\ns_mul_i32 s{sT1}, s{sTY}, 896\ns_add_u32 s{sT0}, s{sT0}, s{sT1}")
    emit(srd_adv(S_C0, f"s{sT0}"))
    I(f"v_lshlrev_b32 v{T+3}, 1, v{T}\nv_and_b32 v{T+3}, 4, v{T+3}\nv_xor_b32 v{T+3}, v{T+3}, v{T+1}\nv_lshlrev_b32 v{T+3}, 4, v{T+3}")
    I(f"v_mul_u32_u24 v{vQ}, 2688, v{T}\nv_add_u32 v{vQ}, v{vQ}, v{T+3}")
    I(f"s_lshl_b32 s{sW1K}, s{sW}, 10\ns_lshl_b32 s{sT0}, s{sW}, 4")
    for v in range(7):
        I(f"s_add_u32 s{sRG[v]}, s{sRG[v]}, s{sT0}\ns_mul_i32 s{sRQ[v]}, s{sRG[v]}, 1344")

    def dma_block(b, slot, kind, v):
        tag = ('W', b)
        m0 = f"s_add_u32 m0, s{sW1K}, {slot * 8192}"
        if kind == 'Q': return [m0, (f"buffer_load_dwordx4 v{vQ}, s[{S_C0}:{S_C0+3}], s{sRQ[v]} offen lds", tag)]
        if kind == 'G': return [m0, (f"buffer_load_dwordx4 v{vG}, s[{S_G}:{S_G+3}], s{sRG[v]} offen lds", tag)]
        if kind == 'U': return [m0, (f"buffer_load_dwordx4 v{vU}, s[{S_U}:{S_U+3}], s{sRG[v]} offen lds", tag)]
        return [m0,
                Atom((f"s_mov_b64 exec, s[{sM}:{sM+1}]", (f"buffer_load_dwordx4 v{vH}, s[{S_G}:{S_G+3}], s{sRG[v]} offen lds", tag), "s_mov_b64 exec, -1")),
                Atom((f"s_not_b64 exec, s[{sM}:{sM+1}]", (f"buffer_load_dwordx4 v{vH}, s[{S_U}:{S_U+3}], s{sRG[v]} offen lds", tag), "s_mov_b64 exec, -1"))]

    early = [Atom(dma_block(b, 14 + b, 'Q', b)) for b in range(6)]
    sDP = SA.a('DP', align=2, n=2)
    I(f"s_mov_b64 s[{sDP}:{sDP+1}], s[20:21]")
    def nonce_pub():
        srd(S_D, sDP, 256)
        I(f"s_or_b32 s{sT4}, s2, s{sW}\ns_min_u32 s{sT4}, s{sT4}, 1\ns_lshl_b32 s{sT4}, s{sT4}, 12")
        I(f"buffer_store_dwordx2 v[{vN}:{vN+1}], v{vZ}, {RD_}, s{sT4} offen sc1")
    I(f"s_or_b32 s{sN0}, s{sN0}, 1\nv_mov_b32 v{vN}, s{sN0}\nv_mov_b32 v{vN+1}, s{sN1}\nv_mov_b32 v{vZ}, 0")
    early = [nonce_pub] + early
    srd(S_G, 12, 448 * 3584); srd(S_U, 14, 448 * 3584); srd(S_WS, 22, WS_SIZE)
    SA.add([4, 5, 6, 7, 12, 13, 14, 15, 20, 21, 22, 23])
    I(f"s_lshr_b32 s{sCH}, s{sW}, 2\ns_and_b32 s{sTT}, s{sW}, 3")
    sKS1, sKS2, sDC = SA.a('KS1', 'KS2', 'DC')
    I(f"s_lshl_b32 s{sT0}, s{sIDX}, 7\ns_lshl_b32 s{sT1}, s{sTY}, 10\ns_add_u32 s{sT1}, s{sT1}, s{sT0}\ns_lshl_b32 s{sT2}, s{sCH}, 1")
    emit(srd_adv(S_G, f"s{sT1}")); emit(srd_adv(S_U, f"s{sT1}"))
    I(f"s_lshr_b32 s{sKS1}, s{sT1}, 5\ns_add_u32 s{sKS1}, s{sKS1}, s{sT2}")
    I(f"s_add_u32 s{sT0}, s{sT0}, 2048\ns_lshl_b32 s{sT4}, s{sIDX}, 6\ns_add_u32 s{sT4}, s{sT4}, 3072")
    I(f"s_cmp_eq_u32 s{sTY}, 0\ns_cselect_b32 s{sT0}, s{sT0}, s{sT4}\ns_cselect_b32 s{sT2}, s{sT2}, s{sCH}")
    I(f"s_sub_u32 s{sDC}, s{sT0}, s{sT1}\ns_lshr_b32 s{sKS2}, s{sT0}, 5\ns_add_u32 s{sKS2}, s{sKS2}, s{sT2}")
    I(f"v_mul_u32_u24 v{vG}, 3584, v{T}\nv_add_u32 v{vG}, v{vG}, v{T+3}\nv_xor_b32 v{vU}, 32, v{vG}")
    vHH, vMH, vR4, vC4, vRS, tA, tB = range(AF, AF + 7)
    I(f"v_lshrrev_b32 v{vHH}, 5, v{vLANE}\nv_bfe_u32 v{vMH}, v{vLANE}, 4, 1\nv_bfe_u32 v{vR4}, v{vLANE}, 2, 2\nv_and_b32 v{vC4}, 3, v{vLANE}")
    I(f"v_bfe_u32 v{vRS}, v{vLANE}, 3, 1\nv_lshlrev_b32 v{vRS}, 6, v{vRS}")
    I(f"s_mul_i32 s{sT0}, s{sCH}, 56")
    I(f"v_lshl_add_u32 v{tA}, v{vC4}, 3, s{sT0}\nv_lshl_add_u32 v{tA}, v{vMH}, 5, v{tA}\nv_xor_b32 v{tA}, v{tA}, v{vRS}")
    I(f"v_lshl_add_u32 v{tA}, v{vR4}, 7, v{tA}\nv_lshl_add_u32 v{vLQ[0]}, v{vHH}, 10, v{tA}")
    I(f"s_lshl_b32 s{sT0}, s{sCH}, 6")
    I(f"v_lshl_add_u32 v{tA}, v{vC4}, 3, s{sT0}\nv_lshl_add_u32 v{tB}, v{vMH}, 5, v{vRS}\nv_xor_b32 v{tA}, v{tA}, v{tB}")
    I(f"v_lshl_add_u32 v{tA}, v{vR4}, 7, v{tA}\nv_lshl_add_u32 v{tA}, v{vHH}, 10, v{tA}\nv_lshl_add_u32 v{vLF[0][0]}, v{vMH}, 13, v{tA}")
    I(f"v_xor_b32 v{vLF[1][0]}, 32, v{vLF[0][0]}")
    for base in (vLQ, vLF[0], vLF[1]):
        I(f"v_add_u32 v{base[1]}, 0x10000, v{base[0]}\nv_add_u32 v{base[2]}, 0x20000, v{base[0]}")
    I(f"v_sub_u32 v{vHI}, 0, v{vHH}\nv_not_b32 v{vKEEP}, v{vHI}")
    I(f"v_lshlrev_b32 v{vSW0}, 6, v{vHH}\nv_xor_b32 v{vSW0}, v{vSW0}, v{vL16}\nv_xor_b32 v{vSW1}, 128, v{vSW0}")
    if 'noxsplit' not in EXP:
        I(f"s_lshl_b32 s{sT0}, s{sW}, 4\nv_subrev_u32 v199, s{sT0}, v199")
        xload(1, sRG)
    for v in range(7): I(f"s_mul_i32 s{sRG[v]}, s{sRG[v]}, 1792")
    vWB = [[XN, XN + 1], [XN + 2, XN + 3]]
    I(f"s_lshl_b32 s{sT0}, s{sW}, 11")
    I(f"v_lshrrev_b32 v{tA}, 1, v{T}\nv_xor_b32 v{tA}, v{tA}, v{T+1}")
    I(f"v_lshl_add_u32 v{tB}, v{T}, 7, s{sT0}\nv_lshl_add_u32 v{vWB[0][0]}, v{tA}, 4, v{tB}")
    I(f"v_xor_b32 v{vWB[1][0]}, 64, v{vWB[0][0]}\nv_add_u32 v{vWB[1][0]}, 1024, v{vWB[1][0]}")
    I(f"v_add_u32 v{vWB[0][1]}, 65536, v{vWB[0][0]}\nv_add_u32 v{vWB[1][1]}, 65536, v{vWB[1][0]}")
    fa = T + 4
    vSTW, vVAR = T + 2, [T + 3, vPD]
    I(f"v_and_b32 v{tA}, 31, v{vLANE}\nv_bfe_u32 v{tB}, v{vLANE}, 1, 3\nv_xor_b32 v{tB}, v{tB}, v{vHH}")
    I(f"s_lshl_b32 s{sT0}, s{sTT}, 12")
    I(f"v_lshl_add_u32 v{fa}, v{tA}, 7, s{sT0}\nv_lshl_add_u32 v{fa}, v{tB}, 4, v{fa}")
    for k in range(1, 4): I(f"v_xor_b32 v{fa+k}, {k*32}, v{fa}")
    I(f"s_lshl_b32 s{sT0}, s{sW}, 6\nv_lshl_add_u32 v{vSTW}, v{T}, 2, s{sT0}")
    I(f"s_lshl_b32 s{sT0}, s{sTT}, 7\nv_lshl_add_u32 v{vSTR}, v{tA}, 2, s{sT0}")
    u0, u1, u2 = T + 4, T + 5, T + 6
    FH = L([f"v_and_b32 v{u0}, 2, v{T}\nv_and_b32 v{u1}, 3, v{T+1}\nv_xor_b32 v{u0}, v{u0}, v{u1}",
            f"v_mul_u32_u24 v{vH}, 3584, v{T}\nv_lshl_add_u32 v{vH}, v{u0}, 4, v{vH}",
            f"s_lshl_b32 s{sT0}, s{sCH}, 5\nv_lshl_add_u32 v{u0}, v{u1}, 3, s{sT0}\nv_and_b32 v{u1}, 8, v{vLANE}\nv_lshlrev_b32 v{u1}, 2, v{u1}\nv_xor_b32 v{u0}, v{u0}, v{u1}",
            f"v_bfe_u32 v{u1}, v{vLANE}, 4, 1\nv_lshl_add_u32 v{u0}, v{u1}, 6, v{u0}\nv_bfe_u32 v{u1}, v{vLANE}, 2, 2\nv_lshl_add_u32 v{u0}, v{u1}, 7, v{u0}",
            f"v_lshrrev_b32 v{u1}, 5, v{vLANE}\nv_lshl_add_u32 v{u0}, v{u1}, 10, v{u0}\nv_add_u32 v{vLH[1]}, 0x10000, v{u0}\nv_add_u32 v{vLH[2]}, 0x20000, v{u0}",
            f"s_mov_b32 s{sM}, 0x0f0f0f0f\ns_mov_b32 s{sM+1}, 0x0f0f0f0f"])
    F2, F3 = [], []
    sQT = SA.a('QT')
    F2 += L(f"s_mov_b32 s{sQT}, s{sTT}\ns_lshl_b32 s{sT0}, s{sRB}, 2\ns_add_u32 s{sTT}, s{sTT}, s{sT0}")
    sQS, sQF, sH1, sH2, sHF1, sHF2 = SA.a('QS', 'QF', 'H1', 'H2', 'HF1', 'HF2')
    F2 += L(f"s_lshl_b32 s{sT0}, s{sIDX}, 1\ns_add_u32 s{sT0}, s{sT0}, s{sCH}")
    F2 += L(f"s_lshl_b32 s{sQS}, s{sT0}, 6\ns_add_u32 s{sQS}, s{sQS}, s{sTT}\ns_mul_i32 s{sQS}, s{sQS}, 3\ns_add_u32 s{sQS}, s{sQS}, s{sTY}\ns_lshl_b32 s{sQS}, s{sQS}, 11")
    F2 += L(f"s_mul_i32 s{sQF}, s{sT0}, 3\ns_add_u32 s{sQF}, s{sQF}, s{sTY}\ns_lshl_b32 s{sQF}, s{sQF}, 6\ns_add_u32 s{sQF}, s{sQF}, s{sTT}\ns_lshl_b32 s{sQF}, s{sQF}, 3\ns_add_u32 s{sQF}, s{sQF}, {F_QKV}")
    F2 += L(f"s_mul_i32 s{sT0}, s{sTT}, 144\ns_mul_i32 s{sT1}, s{sTT}, 112")
    for sh, sf, sk in ((sH1, sHF1, sKS1), (sH2, sHF2, sKS2)):
        F2 += L(f"s_add_u32 s{sh}, s{sT0}, s{sk}\ns_lshl_b32 s{sh}, s{sh}, 10\ns_add_u32 s{sh}, s{sh}, {WS_ACT}")
        F2 += L(f"s_add_u32 s{sf}, s{sT1}, s{sk}\ns_lshl_b32 s{sf}, s{sf}, 3\ns_add_u32 s{sf}, s{sf}, {F_H}")
    SA.f('KS1', 'KS2', 'RB', 'IDX', 'ROT', 'TT')
    F2 += L(f"s_mov_b32 s{sSPIN}, {SPIN_MAX}")
    sKH = sCH
    sTK, sPOS, sHB2, sKB, sLQ, sREC, sOS, sOF, sRB3, sCOL = SA.a('TK', 'POS', 'HB2', 'KB', 'LQ', 'REC', 'OS', 'OF', 'RB3', 'COL')
    sHEAD, sT3 = sT1, sT2
    F3 += L(f"s_and_b32 s{sT0}, s2, 7\ns_lshl_b32 s{sHEAD}, s{sT0}, 1\ns_add_u32 s{sHEAD}, s{sHEAD}, s{sTY}")
    F3 += L(f"s_bfe_u32 s{sT3}, s2, 0x40003\ns_lshl_b32 s{sT3}, s{sT3}, 2\ns_add_u32 s{sT3}, s{sT3}, s{sQT}")
    F3 += L(f"s_lshl_b32 s{sRB3}, s{sT0}, 2\ns_bfe_u32 s{sT0}, s2, 0x20003\ns_add_u32 s{sRB3}, s{sRB3}, s{sT0}")
    F3 += L(f"s_lshr_b32 s{sCOL}, s2, 5\ns_lshl_b32 s{sCOL}, s{sCOL}, 7")
    F3 += L(f"s_mul_i32 s{sHB2}, s{sHEAD}, {64*6144}\ns_mul_i32 s{sREC}, s{sT3}, 6144\ns_add_u32 s{sREC}, s{sREC}, s{sHB2}")
    F3 += L(f"s_mul_i32 s{sT0}, s{sKH}, {32*6144}\ns_add_u32 s{sHB2}, s{sHB2}, s{sT0}\ns_add_u32 s{sHB2}, s{sHB2}, 2048")
    F3 += L(f"s_sub_u32 s{sLQ}, s{sQT}, s{sKH}\ns_add_u32 s{sLQ}, s{sLQ}, 1\ns_mul_i32 s{sKB}, s{sKH}, 49152")
    F3 += L(f"s_mul_i32 s{sOS}, s{sT3}, 144\ns_lshl_b32 s{sT0}, s{sHEAD}, 1\ns_add_u32 s{sOS}, s{sOS}, s{sT0}\ns_lshl_b32 s{sOS}, s{sOS}, 10\ns_add_u32 s{sOS}, s{sOS}, {WS_ACT + 112*1024}")
    F3 += L(f"s_lshl_b32 s{sOF}, s{sT3}, 4\ns_add_u32 s{sOF}, s{sOF}, s{sHEAD}\ns_lshl_b32 s{sOF}, s{sOF}, 3\ns_add_u32 s{sOF}, s{sOF}, {F_O}")

    def kv_init():
        return [f"s_bfe_u32 s{sTK}, s2, 0x40003", f"s_lshl_b32 s{sTK}, s{sTK}, 2", f"s_add_u32 s{sTK}, s{sTK}, s{sLQ}",
                f"s_add_u32 s{sTK}, s{sTK}, 31", f"s_and_b32 s{sTK}, s{sTK}, 31",
                f"s_sub_u32 s{sPOS}, s{sLQ}, 1", f"s_cmp_eq_u32 s{sLQ}, 0", f"s_cselect_b32 s{sPOS}, 11, s{sPOS}",
                f"s_lshl_b32 s{sPOS}, s{sPOS}, 12", f"s_add_u32 s{sPOS}, s{sPOS}, s{sKB}"]
    F3 += L(kv_init())
    F3 += L(f"s_lshl_b32 s{sT0}, s{sKH}, 5\ns_add_u32 s{sT0}, s{sT0}, 64\ns_add_u32 s{sT4}, s{sLQ}, 3")
    F3 += L(f"v_bfe_u32 v{u1}, v{vLANE}, 3, 1\nv_sub_u32 v{vPK}, s{sT4}, v{u1}\nv_and_b32 v{vPK}, 3, v{vPK}")
    F3 += L(f"v_and_b32 v{u0}, 7, v{vLANE}\nv_lshl_add_u32 v{u0}, v{u0}, 2, s{sT0}\nv_add_u32 v{u0}, v{u0}, v{vPK}\nv_lshl_add_u32 v{u0}, v{u1}, 6, v{u0}")
    F3 += L(f"v_and_b32 v{u1}, 1, v{vLANE}\nv_lshl_add_u32 v{u1}, v{u1}, 6, s{sT3}")
    F3 += L(f"v_bfe_i32 v{vPK}, v{vLANE}, 4, 1\nv_bfi_b32 v{vPK}, v{vPK}, v{u1}, v{u0}")
    F3 += L(f"s_mul_i32 s{sT0}, s{sHEAD}, {192*8}\ns_add_u32 s{sT0}, s{sT0}, {F_QKV}\nv_lshl_add_u32 v{vPK}, v{vPK}, 3, s{sT0}")
    F3 += L(f"v_lshrrev_b32 v{u0}, 1, v{vLANE}\nv_min_u32 v{u0}, 13, v{u0}\nv_and_b32 v{u1}, 1, v{vLANE}\nv_mul_u32_u24 v{u1}, 14, v{u1}\nv_add_u32 v{u0}, v{u0}, v{u1}")
    F3 += L(f"s_mul_i32 s{sT0}, s{sRB3}, 224\ns_add_u32 s{sT0}, s{sT0}, s{sW}\ns_lshl_b32 s{sT0}, s{sT0}, 3\ns_add_u32 s{sT0}, s{sT0}, {F_H}")
    F3 += L(f"v_lshl_add_u32 v{vPH}, v{u0}, 6, s{sT0}")
    F3 += L(f"s_cmp_lg_u32 s{sKH}, 0\ns_cselect_b64 vcc, -1, 0")

    sONES, sSELLO, sSELHI = sT0, sT1, sT2
    I(f"s_mov_b32 s{sONES}, 0x3f803f80\ns_mov_b32 s{sSELLO}, 0x00003f80\ns_mov_b32 s{sSELHI}, 0x3f800000")
    a0, a1, lo, hi, nmu = XN + 4, XN + 5, XN + 8, XN + 12, XN + 6
    def red8(rs):
        for mod in ("quad_perm:[1,0,3,2]", "quad_perm:[2,3,0,1]", "row_half_mirror"):
            for r in rs: I(f"v_add_f32_dpp v{r}, v{r}, v{r} {mod} row_mask:0xf bank_mask:0xf")
    ST('setup')
    emit(early[:P('E0', 1)]); early = early[P('E0', 1):]
    for g in range(2):
        for k in range(28):
            r = XR(g, 0) + k
            if k == 1: ST(f'xa{g}')
            if k == 27: ST(f'xb{g}')
            I(f"v_dot2_f32_bf16 v{a0}, v{r}, s{sONES}, {'0' if k == 0 else 'v%d' % a0}")
            I(f"v_dot2_f32_bf16 v{a1}, v{r}, v{r}, {'0' if k == 0 else 'v%d' % a1}")
        red8([a0, a1])
        I(f"v_mul_f32 v{nmu}, {f32(-1.0/448)}, v{a0}")
        I(f"v_mul_f32 v{a1}, {f32(1.0/448)}, v{a1}\nv_fma_f32 v{a1}, -v{nmu}, v{nmu}, v{a1}\nv_max_f32 v{a1}, 0, v{a1}\nv_add_f32 v{vVAR[g]}, {f32(1e-5)}, v{a1}")
        for v in range(7):
            b = XR(g, v)
            for k in range(4):
                I(f"v_dot2_f32_bf16 v{lo+k}, v{b+k}, s{sSELLO}, v{nmu}")
                I(f"v_dot2_f32_bf16 v{hi+k}, v{b+k}, s{sSELHI}, v{nmu}")
            for k in range(4):
                I(f"v_cvt_pk_bf16_f32 v{b+k}, v{lo+k}, v{hi+k}")
            I(f"ds_write_b128 v{vWB[g][v >> 2]}, v[{b}:{b+3}] offset:{(v & 3) * 16384}")
            if early: emit([early.pop(0)])
    if 'pf2' in EXP:
        I(f"s_add_u32 s{sT0}, s{sRG[0]}, s{sDC}\ns_mul_i32 s{sT1}, s{sTY}, 896\ns_add_u32 s{sT1}, s{sT1}, s{sRQ[0]}")
        I(f"buffer_load_dword v200, v{vQ}, s[{S_C0}:{S_C0+3}], s{sT1} offen")
        I(f"buffer_load_dword v201, v{vG}, s[{S_G}:{S_G+3}], s{sRG[0]} offen\nbuffer_load_dword v202, v{vG}, s[{S_U}:{S_U+3}], s{sRG[0]} offen")
        I(f"buffer_load_dword v203, v{vG}, s[{S_G}:{S_G+3}], s{sT0} offen\nbuffer_load_dword v199, v{vG}, s[{S_U}:{S_U+3}], s{sT0} offen")
    ST('ln')

    def xread(s): return f"ds_read_b128 v[{XN+4*s}:{XN+4*s+3}], v{fa + (s & 3)} offset:{((s >> 2) & 3) * 16384}"

    def spin_check(lbl, cmp_items, reload_items):
        p.label(lbl + "_chk")
        emit(cmp_items)
        I(f"s_cbranch_scc0 {lbl}_spin")
        p.label(lbl + "_ok")
        def ool():
            p.label(lbl + "_spin")
            I(f"s_sub_u32 s{sSPIN}, s{sSPIN}, 1\ns_cmp_lt_i32 s{sSPIN}, 1\ns_cbranch_scc1 {lbl}_ok")
            I("s_sleep 4")
            emit(reload_items)
            I(f"s_waitcnt vmcnt(0)\ns_branch {lbl}_chk")
        outofline.append(ool)

    nonce_load = f"buffer_load_dwordx2 v[{vN}:{vN+1}], v{vZ}, {RD_}, 0 offen sc1"
    def nonce_check(lbl):
        spin_check(lbl, [f"v_readfirstlane_b32 s{sN0}, v{vN}", f"s_cmp_lg_u32 s{sN0}, 0"], [nonce_load])
        I(f"v_mov_b32 v{vN+2}, v{vN}\nv_mov_b32 v{vN+3}, v{vN+1}")

    def flag_store(soff, tag, off=0, two=False):
        st = f"buffer_store_dwordx4 v[{vN}:{vN+3}]" if two else f"buffer_store_dwordx2 v[{vN}:{vN+1}]"
        return Atom((lambda: None if 'nofw' in EXP else p.waitvm(lambda tg, env: tg == tag), "s_mov_b64 exec, 1",
                     f"{st}, v{vZ}, {R}, s{soff} offen offset:{off} sc1", "s_mov_b64 exec, -1"))

    def poll_load(va): return f"buffer_load_dwordx2 v[{vPD}:{vPD+1}], v{va}, {R}, 0 offen sc1"
    def poll_check(lbl, va, mask=None):
        if 'no' + lbl[2:4] in EXP: return
        c = [f"v_cmp_ne_u64 s[{sN0}:{sN1}], v[{vPD}:{vPD+1}], v[{vN}:{vN+1}]"]
        if mask is None: c += [f"s_cmp_eq_u64 s[{sN0}:{sN1}], 0"]
        else: c += [f"s_and_b32 s{sN0}, s{sN0}, {mask}", f"s_cmp_eq_u32 s{sN0}, 0"]
        spin_check(lbl, c, [poll_load(va)])

    G, SB, O, VF, PF, Q, KF, GB, TMP, GA = 16, 80, 96, 112, 120, 128, 136, 144, 176, 208

    def kv_group(st):
        tag = ('KV', st)
        pre = [f"s_mul_i32 s{sT0}, s{sTK}, 6144", f"s_add_u32 s{sT4}, s{sTK}, 31", f"s_add_u32 s{sT0}, s{sT0}, s{sHB2}",
               f"s_and_b32 s{sT4}, s{sT4}, 31", f"s_mul_i32 s{sT4}, s{sT4}, 6144", f"s_add_u32 s{sT4}, s{sT4}, s{sHB2}",
               f"s_add_u32 s{sTK}, s{sTK}, 4", f"s_and_b32 s{sTK}, s{sTK}, 31"]
        BIG = 0x7f000000
        if st == -3:
            pre += [Atom((f"s_cmp_eq_u32 s{sLQ}, 0", f"s_cselect_b32 s{sT0}, {BIG}, s{sT0}")), Atom((f"s_cmp_lt_u32 s{sLQ}, 2", f"s_cselect_b32 s{sT4}, {BIG}, s{sT4}"))]
        if st == 5:
            pre += [Atom((f"s_cmp_lg_u32 s{sLQ}, 0", f"s_cselect_b32 s{sT0}, {BIG}, s{sT0}")), Atom((f"s_cmp_ge_u32 s{sLQ}, 2", f"s_cselect_b32 s{sT4}, {BIG}, s{sT4}"))]
        def m0set(k):
            if st in (-3, 5):
                return (f"s_bitcmp1_b32 s{(sT0, sT4)[k >> 1]}, 30", f"s_cselect_b32 m0, 0x30000, s{sPOS}")
            return (f"s_mov_b32 m0, s{sPOS}",)
        d = [Atom(m0set(k) + ((f"buffer_load_dwordx4 v{vL16}, {R}, s{(sT0, sT4)[k >> 1]} offen offset:{k*1024} sc1 lds", tag),)) for k in range(4)]
        post = [f"s_add_u32 s{sPOS}, s{sPOS}, 16384", f"s_sub_u32 s{sT0}, s{sPOS}, 49152",
                Atom((f"s_cmp_ge_i32 s{sT0}, s{sKB}", f"s_cselect_b32 s{sPOS}, s{sT0}, s{sPOS}"))]
        return pre, d, post

    def gelu(c, soff, off, tag, tmp=T + 4):
        o = []
        for h in range(2):
            idx = [4 * h + k for k in range(4)]
            t = [tmp + k for k in range(4)]
            for k, j in enumerate(idx): o.append(f"v_mul_f32 v{t[k]}, v{c+j}, v{c+j}")
            for k, j in enumerate(idx): o.append(f"v_fma_f32 v{t[k]}, v{t[k]}, v{vC2P}, v{vC1P}")
            for k, j in enumerate(idx): o.append(f"v_mul_f32 v{t[k]}, v{t[k]}, v{c+j}")
            for k, j in enumerate(idx): o.append(f"v_exp_f32 v{t[k]}, v{t[k]}")
            for k, j in enumerate(idx): o.append(f"v_mul_f32 v{c+j}, v{c+j}, v{c+8+j}")
            for k, j in enumerate(idx): o.append(f"v_fma_f32 v{t[k]}, v{t[k]}, v{vIF2}, v{vIF2}")
            for k, j in enumerate(idx): o.append(f"v_rcp_f32 v{t[k]}, v{t[k]}")
            for k, j in enumerate(idx): o.append(f"v_mul_f32 v{c+j}, v{c+j}, v{t[k]}")
        for k in range(4): o.append(f"v_cvt_pk_bf16_f32 v{c+8+k}, v{c+2*k}, v{c+2*k+1}")
        o.append((f"buffer_store_dwordx4 v[{c+8}:{c+11}], v{vL16}, {R}, s{soff} offen offset:{off} sc1", tag))
        return o

    def qkv_epi(c, which, tag):
        o = []
        fm = vF
        if which == 0:
            fm = T + 3
            o.append(f"v_mul_f32 v{fm}, {f32(QSCALE)}, v{vF}")
        else:
            o.append(f"v_and_b32 v{T+3}, 0x3f803f80, v{vHI}")
        for k in range(8):
            o += [f"v_mul_f32 v{c+2*k}, v{c+2*k}, v{fm}", f"v_mul_f32 v{c+2*k+1}, v{c+2*k+1}, v{fm}",
                  f"v_cvt_pk_bf16_f32 v{c+k}, v{c+2*k}, v{c+2*k+1}"]
            if k == 3:
                o.append((f"buffer_store_dwordx4 v[{c}:{c+3}], v{vSW0 if which == 2 else vL16}, {R}, s{sQS} offen offset:{2048 if which == 2 else 0} sc1", tag))
        for k in (6, 7):
            o.append(f"v_and_b32 v{c+k}, v{c+k}, v{vKEEP}" if which == 0 else f"v_and_or_b32 v{c+k}, v{c+k}, v{vKEEP}, v{T+3}")
        o.append((f"buffer_store_dwordx4 v[{c+4}:{c+7}], v{vSW1 if which == 2 else vL16}, {R}, s{sQS} offen offset:{3072 if which == 2 else 1024} sc1", tag))
        return o

    def qloads():
        return [f"buffer_load_dwordx4 v[{Q+4*k}:{Q+4*k+3}], v{vL16}, {R}, s{sREC} offen offset:{1024*k} sc1" for k in range(4)]

    nbar = [0]
    def cbar(for_lag, need=None):
        nbar[0] += 1
        l = f"L_sk{nbar[0]}"
        I(f"s_cbranch_vcc{'z' if for_lag else 'nz'} {l}")
        alts = p.cond("kh", 2)
        with alts[1 if for_lag else 0]:
            if need: p.waitvm(need)
            I("s_waitcnt lgkmcnt(0)\ns_barrier")
        p.label(l)

    STAGES_T = [[0, 3, 6, 9, 13, 17, 21, 25, 29, 35], [0, 3, 6, 10, 14, 18, 22, 26, 30, 35]]
    D, NB = 4, 6
    LA = P('LA', 36)
    PM = 116

    S_W, S_O = S_C0, S_G
    RW = f"s[{S_W}:{S_W+3}]"
    sFLAG, sAB, sGN, sGW, sWM0, sGEMM, sR8 = sRQ
    sE0 = sRG[0]
    WLDS = 98304
    need0 = lambda tag, env: tag == ('KV', -3)
    sc = [f"s_mov_b32 s{S_W}, s16", f"s_mov_b32 s{S_W+1}, s17", f"s_mov_b32 s{S_W+2}, {1792*896}", f"s_mov_b32 s{S_W+3}, 0x00020000",
          f"s_mov_b32 s{S_O}, s18", f"s_mov_b32 s{S_O+1}, s19", f"s_mov_b32 s{S_O+2}, {2048*896}", f"s_mov_b32 s{S_O+3}, 0x00020000",
          f"s_cmp_lt_u32 s2, 224", f"s_cselect_b32 s{sGEMM}, 1, 0",
          f"s_bfe_u32 s{sT1}, s2, 0x20003", f"s_lshr_b32 s{sT2}, s2, 5", f"s_lshl_b32 s{sR8}, s{sT1}, 1", f"s_add_u32 s{sR8}, s{sR8}, s{sT2}",
          f"s_add_u32 s{sGN}, s{sT1}, s{sT2}", f"s_and_b32 s{sGN}, s{sGN}, 3",
          f"s_sub_u32 s{sT2}, s{sR8}, 10", f"s_cmp_ge_u32 s{sR8}, 10", f"s_cselect_b32 s{sR8}, s{sT2}, s{sR8}", f"s_add_u32 s{sR8}, s{sR8}, 4",
          f"s_lshl_b32 s{sGW}, s{sGN}, 3", f"s_add_u32 s{sGW}, s{sGW}, s{sW}", f"s_mul_i32 s{sGW}, s{sGW}, {16*896}", f"s_add_u32 s{sGW}, s{sGW}, s{sCOL}",
          f"s_lshl_b32 s{sGN}, s{sGN}, 13",
          f"s_mul_i32 s{sAB}, s{sRB3}, {2*144*1024}", f"s_add_u32 s{sAB}, s{sAB}, {WS_ACT}", f"s_lshl_b32 s{sT1}, s{sW}, 10", f"s_add_u32 s{sAB}, s{sAB}, s{sT1}",
          f"s_add_u32 s{sGN}, s{sGN}, s{sAB}",
          f"s_lshl_b32 s{sWM0}, s{sW}, 13", f"s_add_u32 s{sWM0}, s{sWM0}, {WLDS}", f"s_mov_b32 s{sFLAG}, 0"]

    wd_prefetch = [] if 'pf3' not in EXP else [
        f"v_lshrrev_b32 v{T+4}, 4, v{vLANE}", f"v_and_b32 v{T+5}, 15, v{vLANE}", f"v_lshl_add_u32 v{T+4}, v{T+4}, 9, v{T+5}",
        f"v_mul_u32_u24 v{T+4}, 896, v{T+4}",
        f"s_bfe_u32 s{sT1}, s2, 0x20003", f"s_lshl_b32 s{sT1}, s{sT1}, 3", f"s_add_u32 s{sT1}, s{sT1}, s{sW}",
        f"s_mul_i32 s{sT1}, s{sT1}, {16*896}", f"s_add_u32 s{sT1}, s{sT1}, s{sCOL}",
        f"s_mov_b32 s{S_D}, s16", f"s_mov_b32 s{S_D+1}, s17", f"s_mov_b32 s{S_D+2}, {1792*896}",
        f"buffer_load_dword v{vSTR}, v{T+4}, {RD_}, s{sT1} offen",
        f"v_mul_u32_u24 v{T+5}, 896, v{T+5}", f"s_bfe_u32 s{sT1}, s2, 0x20003", f"s_lshl_b32 s{sT1}, s{sT1}, 3", f"s_add_u32 s{sT1}, s{sT1}, s{sW}",
        f"s_mul_i32 s{sT1}, s{sT1}, {14*896}", f"s_add_u32 s{sT1}, s{sT1}, s{sCOL}",
        f"s_mov_b32 s{S_D}, s8", f"s_mov_b32 s{S_D+1}, s9", f"s_mov_b32 s{S_D+2}, {448*896}",
        f"buffer_load_dword v{vPD+1}, v{T+5}, {RD_}, s{sT1} offen"]

    def phase1(ty):
        if ty == 0: blocks = [('Q', 0)] * 7 + [('G', 1), ('U', 1)] * 7 + [('G', 2), ('U', 2)] * 7
        else: blocks = [('Q', 0)] * 7 + [('Q', 1)] * 7 + [('G', 2), ('U', 2)] * 7 + [('H', 1)] * 7
        STAGES = STAGES_T[ty]
        slot_of = lambda b: SLOT[ty][b]
        vidx = []; cnt = {}
        for kb in blocks:
            vidx.append(cnt.get(kb, 0)); cnt[kb] = vidx[-1] + 1
        M = []
        b = 0
        while b < 35:
            kind, arg = blocks[b]
            off = slot_of(b) * 8192
            for s_ in range(4):
                ks = 4 * vidx[b] + s_
                im = (off & 0xffff) + s_ * 2048
                if kind == 'Q': M.append((b, b, vLQ[off >> 16], im, ACC1 + 16 * arg, ks))
                elif kind == 'H': M.append((b, b, vLH[off >> 16], im, ACC1 + 32, ks))
                else:
                    acc = ACC1 + 16 if arg == 1 else ACC2
                    for t in range(2): M.append((b, b + 1, vLF[t][off >> 16], im, acc + 16 * t, ks))
            b += 2 if kind == 'G' else 1
        assert len(M) == 140
        first_m, last_m = {}, {}
        for m, e in enumerate(M):
            for bb in (e[0], e[1]):
                first_m.setdefault(bb, m); last_m[bb] = m
        stage_first = {first_m[sb]: i for i, sb in enumerate(STAGES[:-1])}
        owner = {sl: ('X', sl // 2) for sl in range(14)}
        for bb in range(6): owner[slot_of(bb)] = ('W', bb)
        xfree = set(); nxt = [6]
        dmaq, fillq = [], []
        done = [-1]
        def release(m_done): done[0] = m_done
        def pace(m):
            while nxt[0] < 35:
                bb = nxt[0]
                o = owner[slot_of(bb)]
                if not ((o[1] in xfree) if o[0] == 'X' else last_m[o[1]] <= done[0]): break
                if first_m[bb] - m > LA: break
                owner[slot_of(bb)] = ('W', bb)
                kind, arg = blocks[bb]
                if kind == 'H': assert m > 58 and FH[-1] not in fillq
                if ty == 1 and bb == 7: dmaq.extend(srd_adv(S_C0, 896))
                if bb == (21, 28)[ty]: dmaq.extend(srd_adv(S_G, f"s{sDC}") + srd_adv(S_U, f"s{sDC}"))
                dmaq.extend(dma_block(bb, slot_of(bb), kind, vidx[bb]))
                nxt[0] += 1
        def rd(r):
            e = M[r]; d = AF + 4 * (r % NB)
            return [f"ds_read_b64_tr_b16 v[{d+2*jh}:{d+2*jh+1}], v{e[2]} offset:{e[3] + jh*512}" for jh in range(2)]
        side = {}
        def at(m, items): side.setdefault(m, []).extend(items)
        urg = {}
        def atu(m, items): urg.setdefault(m, []).extend(items)
        at(4, [f"ds_write_b32 v{vSTW}, v{vVAR[0]}", f"ds_write_b32 v{vSTW}, v{vVAR[1]} offset:32"])
        at(12, [nonce_load, f"ds_read_b32 v{vIF2}, v{vSTR}"])
        at(5, F2)
        at(20, [f"v_rsq_f32 v{vF}, v{vIF2}", f"v_mul_f32 v{vC1P}, {f32(GC1)}, v{vF}", f"v_mul_f32 v{vC2P}, v{vF}, v{vF}",
                f"v_mul_f32 v{vC2P}, v{vC2P}, v{vF}", f"v_mul_f32 v{vC2P}, {f32(GC2)}, v{vC2P}"])
        at(29, qkv_epi(ACC1, ty, 'QS'))
        atu(48, [lambda: nonce_check(f"L_non{ty}")])
        atu(P('QF1', 52), [flag_store(sQF, 'QS')])
        burst = {}
        if ty == 0:
            at(85, gelu(ACC1 + 16, sH1, 0, 'HS1') + gelu(ACC1 + 32, sH1, 1024, 'HS1'))
            atu(P('HF1', 130), [flag_store(sHF1, 'HS1', two=True)])
        else:
            at(57, qkv_epi(ACC1 + 16, 2, 'QS2'))
            atu(P('QF2', 80), [flag_store(sQF, 'QS2', off=512)])
            at(113, gelu(ACC2, sH1, 0, 'HS2'))
        at(30, F3)
        at(58, FH if ty else [])
        xq = list(range(8, 28))
        I(xread(0)); emit(rd(0))
        for k in range(1, D): I(xread(k)); emit(rd(k))
        for k in range(D, 8): I(xread(k))
        bars = sorted([(x if x in burst else x - D) for x in stage_first if x > 0])
        bar_m = 0
        rd_next = D
        for m in range(140):
            def stage_sync(r, staggered):
                i = stage_first[r]; hi = STAGES[i + 1]
                assert nxt[0] >= hi and not any(f"('W', {bb})" in str(x) for x in dmaq for bb in range(hi)), (ty, m, hi, nxt[0])
                if len(xfree) < 7:
                    k = (28 - len(xq)) // 4
                    p.waitreg(f"v[{XN+16*k-4}:{XN+16*k-1}]")
                    xfree.update(range(k))
                need = lambda tag, env, hi=hi: tag[0] == 'W' and tag[1] < hi
                if staggered: return need
                p.waitvm(need)
                I("s_barrier")
            if m == 3:
                p.waitreg(f"v[{XN+28}:{XN+31}]")
                I("s_barrier")
                xfree.update((0, 1)); release(-1)
            if m in burst:
                bl = burst[m]
                need = stage_sync(m, True)
                cbar(True, need)
                I(f"s_setprio {P('BPRIO', 0)}")
                emit(bl[:-P('BTAIL', 21)])
                cbar(False, need)
                while rd_next < m + D: emit(rd(rd_next)); rd_next += 1
                emit(bl[-P('BTAIL', 21):])
                release(m - 1); bar_m = m
            elif (m + D) in stage_first and (m + D) not in burst:
                stage_sync(m + D, False)
                release(m - 1); bar_m = m
            nb_ = min([x for x in bars if x > m] + [140])
            lv = lambda mm: (4 * (mm - bar_m)) // (nb_ - bar_m)
            if m == bar_m or lv(m) != lv(m - 1): I(f"s_setprio {3 - lv(m)}")
            if m == PM:
                ST('pa0'); poll_check(f"L_pa{ty}", vPK); ST('pa1')
                a_, b_, c_ = kv_group(-3); dmaq += a_ + b_ + c_
                dmaq += qloads()
            lim = min([x for x in burst if x > m] + [140])
            if rd_next <= m + D and rd_next < lim: emit(rd(rd_next)); rd_next += 1
            budget = 2 if (m & 1) == 0 else 3
            if len(fillq) + len(dmaq) > 12: budget += P('XB', 4)
            if m >= 3:
                for _ in range(3):
                    if xq:
                        k = xq.pop(0)
                        if k == 16: emit([f"v_add_u32 v{fa+j}, 65536, v{fa+j}" for j in range(4)])
                        I(xread(k))
            e = M[m]; a_ = AF + 4 * (m % NB); c = e[4]; ks = e[5]
            if (m & 1) == 0 and m + 1 < rd_next and m >= 28:
                a2 = AF + 4 * ((m + 1) % NB)
                p.waitreg(f"v[{a2}:{a2+3}]")
            cin = '0' if ks == 0 else f"v[{c}:{c+15}]"
            I(f"v_mfma_f32_32x32x16_bf16 v[{c}:{c+15}], v[{a_}:{a_+3}], v[{XN+4*ks}:{XN+4*ks+3}], {cin}")
            fillq += side.get(m, [])
            for it in urg.get(m, []):
                assert not any('buffer_store' in str(x) for x in fillq), ("stores still queued", ty, m)
                emit([it]); budget -= 2
            pace(m)
            if m == P('KV2', 130):
                for st in (-2, -1):
                    a_, b_, c_ = kv_group(st); dmaq += a_ + b_ + c_
            if m == PM - 12:
                assert F3[-1] not in fillq
                dmaq.append(poll_load(vPK))
            nv = False
            while budget > 0:
                it = None
                for q in (dmaq, fillq):
                    if q and not (nv and 'buffer_' in str(q[0])):
                        it = q.pop(0); break
                if it is None: break
                nv = nv or 'buffer_' in str(it)
                emit([it]); budget -= len(it) if isinstance(it, Atom) else 1
            if m == 83: ST('p1')
            ST(f'm{m}')
        assert nxt[0] == 35
        emit(fillq); emit(dmaq)
        ST('p2')
        if ty == 0: ge = gelu(ACC2, sH2, 0, 'HS2') + gelu(ACC2 + 16, sH2, 1024, 'HS2')
        else: ge = gelu(ACC2 + 16, sH1, 1024, 'HS2') + gelu(ACC1 + 32, sH2, 0, 'HS2')
        kv = []
        for st in (-2, -1):
            if P('KV2', 130) > 139:
                a_, b_, c_ = kv_group(st); kv += a_ + b_ + c_
        k0 = P('KV0', 60)
        emit(interleave([[x] for x in ge[:k0]], kv) + interleave([[x] for x in ge[k0:]], sc))

    p.waitvm(lambda tag, env: tag[0] == 'W' and tag[1] < 3)
    I("s_waitcnt lgkmcnt(0)\ns_barrier")
    ST('barA')
    I(f"s_cmp_lg_u32 s{sTY}, 0\ns_cbranch_scc1 L_p1C")
    altA, altC = p.cond("type", 2)
    with altA:
        phase1(0)
        I("s_branch L_fin")
    with altC:
        p.label("L_p1C")
        phase1(1)
    p.label("L_fin")
    vK, vV0, vV1, vT0, vT1, vT2, vT3, vM, vWO, vGA, vGA1, vXO, vL16B = 14, 2, 3, 4, 5, 6, 7, 8, 9, 10, 11, 12, 13
    XRS = T + 4
    GA3 = 224

    def smfma(half):
        cin = '0' if half == 0 else f"v[{SB}:{SB+15}]"
        return f"v_mfma_f32_32x32x16_bf16 v[{SB}:{SB+15}], v[{KF+4*half}:{KF+4*half+3}], v[{Q+4*half}:{Q+4*half+3}], {cin}"

    ST('gelu')
    I(smfma(0)); I(smfma(1))
    I(f"v_lshrrev_b32 v{vT0}, 3, v{vLANE}\nv_and_b32 v{vT1}, 7, v{vLANE}")
    I(f"v_lshlrev_b32 v{vT2}, 1, v{vT0}\nv_and_b32 v{vT2}, 4, v{vT2}\nv_xor_b32 v{vT2}, v{vT2}, v{vT1}")
    I(f"v_mul_u32_u24 v{vWO}, 896, v{vT0}\nv_lshl_add_u32 v{vWO}, v{vT2}, 4, v{vWO}")
    vWO2 = T
    I(f"v_add_u32 v{vWO2}, {8*896 - 1024}, v{vWO}")
    I(f"v_add_u32 v{vL16B}, {144*1024}, v{vL16}")
    I(f"v_and_b32 v{vT0}, 3, v{vLANE}\nv_lshlrev_b32 v{vGA}, 3, v{vT0}")
    I(f"v_bfe_u32 v{vT0}, v{vLANE}, 4, 1\nv_lshl_add_u32 v{vGA}, v{vT0}, 5, v{vGA}")
    I(f"v_bfe_u32 v{vT1}, v{vLANE}, 3, 1\nv_lshl_add_u32 v{vGA}, v{vT1}, 6, v{vGA}")
    I(f"v_bfe_u32 v{vT3}, v{vLANE}, 2, 2\nv_lshl_add_u32 v{vGA}, v{vT3}, 7, v{vGA}")
    I(f"v_lshrrev_b32 v{vT2}, 5, v{vLANE}\nv_lshl_add_u32 v{vGA}, v{vT2}, 9, v{vGA}")
    I(f"v_add_u32 v{vGA}, s{sWM0}, v{vGA}\nv_xor_b32 v{vGA1}, 64, v{vGA}")
    I(f"v_add_u32 v{vK}, s{sKB}, v{vL16}")
    I(f"v_and_b32 v{vT1}, 1, v{vLANE}\nv_xor_b32 v{vT2}, v{vT2}, v{vT1}")
    I(f"v_mul_u32_u24 v{vV0}, {1024+128}, v{vT0}")
    I(f"v_lshl_add_u32 v{vV0}, v{vT1}, 9, v{vV0}\nv_lshl_add_u32 v{vV0}, v{vT2}, 6, v{vV0}\nv_lshl_add_u32 v{vV0}, v{vT3}, 4, v{vV0}")
    I(f"v_bfe_u32 v{vT1}, v{vLANE}, 1, 1\nv_lshl_add_u32 v{vV0}, v{vT1}, 3, v{vV0}")
    I(f"v_add_u32 v{vV0}, s{sKB}, v{vV0}\nv_add_u32 v{vV0}, 2048, v{vV0}\nv_xor_b32 v{vV1}, 128, v{vV0}")

    def set_pads():
        I(f"v_sub_f32 v{vT0}, 0, v{vM}")
        I(f"v_and_b32 v{vT1}, 0xffff0000, v{vT0}\nv_sub_f32 v{vT0}, v{vT0}, v{vT1}")
        I(f"v_and_b32 v{vT2}, 0xffff0000, v{vT0}\nv_sub_f32 v{vT0}, v{vT0}, v{vT2}")
        I(f"v_lshrrev_b32 v{vT1}, 16, v{vT1}\nv_or_b32 v{vT1}, v{vT1}, v{vT2}\nv_lshrrev_b32 v{vT0}, 16, v{vT0}")
        I(f"v_and_b32 v{vT1}, v{vT1}, v{vHI}\nv_and_b32 v{vT0}, v{vT0}, v{vHI}")
        I(f"v_and_or_b32 v{Q+6}, v{Q+6}, v{vKEEP}, v{vT1}\nv_and_or_b32 v{Q+7}, v{Q+7}, v{vKEEP}, v{vT0}")

    def max16(c, first):
        o = []
        if first:
            o += [f"v_max3_f32 v{vM}, v{c}, v{c+1}, v{c+2}", f"v_max_f32 v{vM}, v{vM}, v{c+15}"]
            ks = range(3, 15, 2)
        else:
            ks = range(0, 16, 2)
        return o + [f"v_max3_f32 v{vM}, v{vM}, v{c+k}, v{c+k+1}" for k in ks]

    def cross_max():
        I(f"v_mov_b32 v{vT0}, v{vM}\nv_permlane32_swap_b32 v{vT0}, v{vM}\nv_max_f32 v{vM}, v{vM}, v{vT0}")

    emit(max16(SB, True)); cross_max(); set_pads()

    def gw_issue(n):
        slot, tag = n & 3, ('GW', n)
        lo_, hi_ = (0, 4) if n < 4 else (4, 14)
        m0 = f"s_add_u32 m0, s{sWM0}, {slot*2048}"
        d = [Atom((m0, (f"buffer_load_dwordx4 v{vWO}, {RW}, s{sGW} offen lds", tag))),
             Atom((m0, (f"buffer_load_dwordx4 v{vWO2}, {RW}, s{sGW} offen offset:1024 lds", tag)))]
        post = []
        if n == 3:
            post = [f"s_lshl_b32 s{sGW}, s{sR8}, 3", f"s_add_u32 s{sGW}, s{sGW}, s{sW}", f"s_mul_i32 s{sGW}, s{sGW}, {16*896}", f"s_add_u32 s{sGW}, s{sGW}, s{sCOL}"]
        elif n < 13:
            post = [f"s_add_u32 s{sGW}, s{sGW}, {128*896}", f"s_sub_u32 s{sT2}, s{sGW}, {(hi_-lo_)*128*896}",
                    Atom((f"s_cmp_ge_u32 s{sGW}, {hi_*128*896}", f"s_cselect_b32 s{sGW}, s{sT2}, s{sGW}"))]
        return d + post

    def gb_issue(n):
        b = GB + 8 * (n & 3)
        lo_, hi_ = (0, 4) if n < 4 else (4, 14)
        d = [f"buffer_load_dwordx4 v[{b}:{b+3}], v{vL16}, {R}, s{sGN} offen sc1", f"buffer_load_dwordx4 v[{b+4}:{b+7}], v{vL16B}, {R}, s{sGN} offen sc1"]
        post = []
        if n == 3: post = [f"s_lshl_b32 s{sGN}, s{sR8}, 13", f"s_add_u32 s{sGN}, s{sGN}, s{sAB}"]
        elif n < 13:
            post = [f"s_add_u32 s{sGN}, s{sGN}, 8192", f"s_sub_u32 s{sT1}, s{sGN}, s{sAB}", f"s_sub_u32 s{sRG[6]}, s{sGN}, {(hi_-lo_)*8192}",
                    Atom((f"s_cmp_eq_u32 s{sT1}, {hi_*8192}", f"s_cselect_b32 s{sGN}, s{sRG[6]}, s{sGN}"))]
        return d + post

    sWB, sWS, sOFS = sRG[1], sRG[2], sRG[3]
    def wo_setup():
        return L([f"s_lshl_b32 s{sWB}, s{sQT}, 14", f"s_cmp_eq_u32 s{sQT}, 1", f"s_cselect_b32 s{sWB}, {80*1024}, s{sWB}",
                  f"s_add_u32 s{sOFS}, s{sQT}, 1", f"s_and_b32 s{sOFS}, s{sOFS}, 2",
                  f"s_mul_i32 s{sWS}, s{sQT}, {112*896}", f"s_add_u32 s{sWS}, s{sWS}, s{sCOL}",
                  f"s_mov_b32 s{S_D}, s8", f"s_mov_b32 s{S_D+1}, s9", f"s_mov_b32 s{S_D+2}, {448*896}"])
    def wo_slot(e_expr, halves=(0, 1)):
        o = e_expr + [f"s_add_u32 s{sE0}, s{sE0}, s{sOFS}", f"s_and_b32 s{sE0}, s{sE0}, 7",
                      f"s_lshr_b32 s{sRG[4]}, s{sE0}, 1", f"s_mul_i32 s{sRG[4]}, s{sRG[4]}, {28*896 - 2*16*896}",
                      f"s_mul_i32 s{sRG[5]}, s{sE0}, {16*896}", f"s_add_u32 s{sRG[4]}, s{sRG[4]}, s{sRG[5]}", f"s_add_u32 s{sRG[4]}, s{sRG[4]}, s{sWS}",
                      f"s_lshl_b32 s{sRG[5]}, s{sE0}, 11", f"s_add_u32 s{sRG[5]}, s{sRG[5]}, s{sWB}"]
        for h in halves:
            o.append(Atom((f"s_mov_b32 m0, s{sRG[5]}",
                           (f"buffer_load_dwordx4 v{(vWO, vWO2)[h]}, {RD_}, s{sRG[4]} offen offset:{1024*h} lds", 'WO'))))
        return o

    def g_reads(off, ga, a0_=None, a1_=None):
        return [f"ds_read_b64_tr_b16 v[{ga+4*ct+2*jh}:{ga+4*ct+2*jh+1}], v{(a0_ or vGA, a1_ or vGA1)[ct]} offset:{off + jh*1024}"
                for ct in range(2) for jh in range(2)]

    def g_mfma(ga, gb, ct, tt, first=False):
        c = G + 16 * (2 * ct + tt)
        cin = '0' if first else f"v[{c}:{c+15}]"
        return f"v_mfma_f32_32x32x16_bf16 v[{c}:{c+15}], v[{ga+4*ct}:{ga+4*ct+3}], v[{gb+4*tt}:{gb+4*tt+3}], {cin}"

    def kread(t): return [f"ds_read_b128 v[{KF+4*h}:{KF+4*h+3}], v{vK} offset:{(t % 12)*4096 + h*1024}" for h in range(2)]
    def vread(t, u):
        return [f"ds_read_b64_tr_b16 v[{VF+4*u+2*jh}:{VF+4*u+2*jh+1}], v{(vV0, vV1)[jh]} offset:{((t + 1) % 12)*4096 + u*256}" for jh in range(2)]
    def pv(t, first=False):
        cin = '0' if first else f"v[{O}:{O+15}]"
        return f"v_mfma_f32_32x32x16_bf16 v[{O}:{O+15}], v[{VF+4*t}:{VF+4*t+3}], v[{PF+4*t}:{PF+4*t+3}], {cin}"

    def vphase():
        emit([f"v_exp_f32 v{SB+k}, v{SB+k}" for k in range(16)])
        emit([f"v_cvt_pk_bf16_f32 v{PF+k}, v{SB+2*k}, v{SB+2*k+1}" for k in range(8)])

    T0 = P('T0', 6)
    NIN = P('NIN', 11)

    assert NIN >= 11
    gabuf = lambda n: GA3 if (n == 13 and NIN == 11) else GA + 8 * (n & 1)
    def grd(n):
        p.waitvm(lambda tag, env: tag[0] == 'GW' and tag[1] <= n)
        emit(g_reads((n & 3) * 2048, gabuf(n)))

    def late_flags():
        return [Atom((f"s_cmp_eq_u32 s{sTY}, 0", f"s_cselect_b32 s{sHF1}, s{sHF2}, s{sHF1}")),
                flag_store(sHF1, 'HS2', two=True), flag_store(sHF2, 'HS2')]

    def attention(gemm):
        S = {k: [] for k in ('kv', 'gw', 'gb', 'misc', 'wo')}
        def add(stream, e, d, key, items):
            for it in items: S[stream].append((e, d, key, it))
        vpre = [[] for _ in range(34)]
        rdone = [-1]
        for st in range(0, 6):
            a_, b_, c_ = kv_group(st)
            add('kv', 4 * st + 2, 4 * st + 8, 'x', a_); add('kv', 4 * st + 3, 4 * st + 8, ('KV', st), b_ + c_)
        if gemm:
            PB, LF, PC = P('PB', 3), P('LF', 4), P('PC', 10)
            for n in range(14):
                use = T0 + 2 * n
                ew = (0, 1, 2, 2)[n] if n < 4 else T0 + 2 * n - 7
                eb = PB + (1, 2, 3, 4)[n] if n < 4 else max(T0 + 2 * n - 6, PC + 1)
                add('gw', ew, min(use - 1, 28), ('GW', n), gw_issue(n))
                add('gb', eb, use if n < NIN else 40, ('GB', n), gb_issue(n))
            w0 = wo_slot([f"s_mul_i32 s{sE0}, s{sKH}, 3"])
            add('wo', 1, 50, 'x', wo_setup() + w0[:-2] + L([f"s_bitcmp1_b32 s{sE0}, 0", f"s_cselect_b32 s{sE0}, {12*896}, s{sFLAG}",
                                                          f"s_cselect_b32 s{sE0}, s{sE0}, {16*896}"]))
            add('wo', 27, 29, 'WO', w0[-2:] + [f"s_add_u32 s{sRG[4]}, s{sRG[4]}, s{sE0}", f"s_add_u32 s{sRG[5]}, s{sRG[5]}, 2048"] + w0[-2:] +
                [f"s_sub_u32 s{sRG[4]}, s{sRG[4]}, s{sE0}", f"s_add_u32 s{sRG[4]}, s{sRG[4]}, {28*896}", f"s_add_u32 s{sRG[5]}, s{sRG[5]}, 2048"] + w0[-2:])
            ms = sorted([(PB - 2, [poll_load(vPH)], 'P1'), (LF, late_flags(), 'LF'), (PC - 2, [poll_load(vPH)], 'P2')], key=lambda x: x[0])
            for e, items, key in ms: add('misc', e, e, key, items)
            assert PC - 2 > PB
            vpre[PB] += [lambda: chk('P1'), lambda: ST('pb0'), lambda: poll_check("L_pb", vPH, 0xff), lambda: ST('pb1')]
            vpre[PC] += [lambda: chk('P2'), lambda: ST('pc0'), lambda: poll_check("L_pc", vPH), lambda: ST('pc1')]
        isvm = lambda it: 'buffer_' in str(it)
        def chk(key):
            assert not any(x[2] == key and isvm(x[3]) for q in S.values() for x in q), ("not issued in time", key)
        p.waitvm(need0)
        I("s_waitcnt lgkmcnt(0)\ns_barrier")
        emit(kread(0))
        if gemm: ST('astart')
        for t in range(32):
            st, i = t >> 2, t & 3
            n = (t - T0) >> 1
            g_on = gemm and t >= T0 and n < NIN
            def gap(budget, vm_ok):
                while budget > 0:
                    cand = [q for q in S.values() if q and q[0][0] <= t and (vm_ok or not isvm(q[0][3]))]
                    if not cand: break
                    q = min(cand, key=lambda q: (not isvm(q[0][3]), q[0][1]))
                    it = q.pop(0)[3]
                    if isvm(it): vm_ok = False
                    emit([it]); budget -= len(it) if isinstance(it, Atom) else 1
            busy = len([x for q in S.values() for x in q if x[0] <= t and isvm(x[3])]) > 2
            needkv = lambda tag, env, st=st: tag[0] == 'KV' and tag[1] <= st - 2
            if i == 2:
                chk(('KV', st - 2)); cbar(True, needkv)
            I(f"s_setprio {3 - ((i - 2) & 3)}")
            I(smfma(0)); gap(5, True)
            I(smfma(1))
            if t < 31: emit(kread(t + 1))
            gap(3, not g_on)
            if t > 0: I(pv(0, t == 1))
            emit(vread(t, 0)); gap(3, busy or not g_on)
            if t > 0: I(pv(1))
            emit(vread(t, 1))
            if not g_on: gap(8, False)
            if g_on:
                gap(3, False)
                chk(('GB', n))
                ga, gb = GA + 8 * (n & 1), GB + 8 * (n & 3)
                I(g_mfma(ga, gb, t & 1, 0, n == 0))
                gap(5, True)
                I(g_mfma(ga, gb, t & 1, 1, n == 0))
            if gemm and t >= T0 - 1 and ((t - T0) & 1) == 1 and n + 1 < 14:
                chk(('GW', n + 1)); grd(n + 1); rdone[0] = n + 1
            if i == 2: cbar(False, needkv)
            emit(vpre[t])
            vphase()
            if gemm: ST(f"t{t}")
        I(pv(0)); I(pv(1))
        for q in S.values(): emit([x[3] for x in q])
        if gemm:
            for n in range(rdone[0] + 1, 14): grd(n)

    I(f"s_cmp_eq_u32 s{sGEMM}, 0\ns_cbranch_scc1 L_plain0")
    ag, an = p.cond("gemm", 2)
    with ag:
        attention(True)
        I("s_branch L_attn_done")
    with an:
        p.label("L_plain0")
        emit(late_flags())
        p.label("L_plain")
        attention(False)
    p.label("L_attn_done")
    I("s_setprio 0")
    ST('aend')
    FLAGS = 65536
    I(f"s_lshl_b32 s{sT0}, s{sW}, 2\ns_add_u32 s{sT0}, s{sT0}, {FLAGS}\nv_mov_b32 v{vT2}, s{sT0}")
    I(f"s_lshl_b32 s{sT0}, s{sQT}, 13\ns_add_u32 s{sT0}, s{sT0}, {WLDS}\nv_add_u32 v{vT3}, s{sT0}, v{vL16}")
    I(f"v_and_b32 v{vT1}, 7, v{vLANE}\nv_lshlrev_b32 v{vM}, 2, v{vT1}\nv_add_u32 v{vM}, {FLAGS}, v{vM}")
    I(f"v_and_b32 v{vT0}, v{O+12}, v{vHI}")
    I(f"v_mov_b32 v{vT1}, {f32(2.0**P('THR', 30))}")
    I(f"v_cmp_ngt_f32 s[{sN0}:{sN1}], v{vT1}, v{vT0}")
    I(f"s_cmp_lg_u64 s[{sN0}:{sN1}], 0\ns_cselect_b32 s{sT0}, 1, 0\nv_mov_b32 v{vT1}, s{sT0}")
    I(f"ds_write_b32 v{vT2}, v{vT1}")
    I("s_cbranch_vccnz L_nowr")
    a0_, a1_ = p.cond("kh", 2)
    with a0_:
        I("s_waitcnt lgkmcnt(0)")
        for k in range(4): I(f"ds_write_b128 v{vT3}, v[{O+4*k}:{O+4*k+3}] offset:{k*1024}")
    p.label("L_nowr")
    p.waitvm(lambda tag, env: tag == 'WO')
    I("s_waitcnt lgkmcnt(0)\ns_barrier")
    I(f"ds_read_b32 v{vT2}, v{vM}")
    for k in range(4): I(f"ds_read_b128 v[{TMP+4*k}:{TMP+4*k+3}], v{vT3} offset:{k*1024}")
    I(f"v_cmp_ne_u32 s[{sN0}:{sN1}], 0, v{vT2}")
    I(f"s_cmp_lg_u64 s[{sN0}:{sN1}], 0\ns_cselect_b32 s{sT0}, 1, 0\ns_andn2_b32 s{sT0}, s{sT0}, s{sFLAG}")
    I(f"s_cmp_lg_u32 s{sT0}, 0\ns_cbranch_scc1 L_fallback")

    def rest_down():
        for n in range(NIN, 14):
            for tt in range(2):
                for ct in range(2): I(g_mfma(gabuf(n), GB + 8 * (n & 3), ct, tt))
    def resid():
        I(f"s_bfe_u32 s{sT0}, s{sW}, 0x10001\ns_lshl_b32 s{sT1}, s{sRB3}, 1\ns_add_u32 s{sT0}, s{sT0}, s{sT1}\ns_mul_i32 s{sT0}, s{sT0}, {32*896}")
        I(f"s_lshl_b32 s{sT1}, s{sKH}, 6\ns_add_u32 s{sT0}, s{sT0}, s{sT1}\ns_and_b32 s{sT1}, s{sW}, 1\ns_lshl_b32 s{sT1}, s{sT1}, 5")
        I(f"s_add_u32 s{sT0}, s{sT0}, s{sT1}\ns_add_u32 s{sT0}, s{sT0}, s{sCOL}")
        I(f"v_and_b32 v{vT0}, 31, v{vLANE}\nv_mul_u32_u24 v{vXO}, 896, v{vT0}\nv_lshrrev_b32 v{vT1}, 5, v{vLANE}")
        I(f"v_lshl_add_u32 v{vXO}, v{vT1}, 4, v{vXO}\nv_add_u32 v{vXO}, s{sT0}, v{vXO}")
        I(f"buffer_load_dwordx4 v[{XRS}:{XRS+3}], v{vXO}, s[{S_X}:{S_X+3}], 0 offen")
        I(f"v_lshlrev_b32 v{vT0}, 4, v{vT0}\nv_lshl_add_u32 v{vT0}, v{vT1}, 10, v{vT0}")
        I(f"s_lshl_b32 s{sT0}, s{sW}, 11\nv_add_u32 v{vV0}, s{sT0}, v{vT0}")
        I(f"s_lshl_b32 s{sT0}, s{sQT}, 11\ns_lshl_b32 s{sT1}, s{sKH}, 15\ns_add_u32 s{sT0}, s{sT0}, s{sT1}\ns_add_u32 s{sT0}, s{sT0}, {WLDS}\nv_add_u32 v{vV1}, s{sT0}, v{vT0}")

    I("s_cbranch_vccnz L_lag")
    a0_, a1_ = p.cond("kh", 2)
    with a1_:
        p.label("L_lag")
        for k in range(16): I(f"v_add_f32 v{O+k}, v{O+k}, v{TMP+k}")
        I(f"v_mov_b32 v{vT0}, v{O+12}\nv_mov_b32 v{vT1}, v{O+12}\nv_permlane32_swap_b32 v{vT0}, v{vT1}")
        I(f"v_rcp_f32 v{vT1}, v{vT1}")
        for h in range(2):
            for k in range(8 * h, 8 * h + 8): I(f"v_mul_f32 v{O+k}, v{O+k}, v{vT1}")
            for k in range(4 * h, 4 * h + 4): I(f"v_cvt_pk_bf16_f32 v{TMP+k}, v{O+2*k}, v{O+2*k+1}")
            if h:
                for k in (6, 7): I(f"v_and_b32 v{TMP+k}, v{TMP+k}, v{vKEEP}")
            I(f"buffer_store_dwordx4 v[{TMP+4*h}:{TMP+4*h+3}], v{vL16}, {R}, s{sOS} offen offset:{1024*h} sc1", tag='OS')
        emit([flag_store(sOF, 'OS')])
        ST('opub')
        I(f"s_cmp_eq_u32 s{sGEMM}, 0\ns_cbranch_scc1 L_end")
        rest_down()
        resid()
        for k in range(16): I(f"ds_write_b128 v{vT3}, v[{G+4*k}:{G+4*k+3}] offset:{(k >> 3) * 32768 + (k & 7) * 1024}")
    with a0_:
        I(f"s_cmp_eq_u32 s{sGEMM}, 0\ns_cbranch_scc1 L_end")
        I(f"s_lshl_b32 s{sT0}, s{sRB3}, 3\ns_add_u32 s{sT0}, s{sT0}, s{sQT}\ns_lshl_b32 s{sT0}, s{sT0}, 5\ns_add_u32 s{sT0}, s{sT0}, {F_O}")
        I(f"v_and_b32 v{vT0}, 1, v{vLANE}\nv_bfe_u32 v{vT1}, v{vLANE}, 1, 2\nv_lshl_add_u32 v{vT0}, v{vT0}, 4, v{vT1}\nv_lshl_add_u32 v{vPH}, v{vT0}, 3, s{sT0}")
        I(f"s_cmp_eq_u32 s{sFLAG}, 0\ns_cbranch_scc1 L_wo_ok")
        f0_, f1_ = p.cond("fb", 2)
        with f1_:
            for e in range(6): emit(wo_slot([f"s_mov_b32 s{sE0}, {e}"]))
        p.label("L_wo_ok")
        for e in (6, 7): emit(wo_slot([f"s_mov_b32 s{sE0}, {e}"]))
        I(poll_load(vPH))
        resid()
        rest_down()
        I(f"s_sub_u32 s{sT0}, s{sWB}, s{sWM0}\nv_add_u32 v{vT2}, s{sT0}, v{vGA}\nv_add_u32 v{vT3}, s{sT0}, v{vGA1}")
        AW, BW = 80, 144
        p.waitvm(lambda tag, env: tag == 'WO')
        for j in range(8): emit(g_reads(j * 2048, AW + 8 * j, vT2, vT3))
        I(f"s_mul_i32 s{sT1}, s{sQT}, {7*1024}\ns_add_u32 s{sT1}, s{sT1}, s{sAB}\ns_add_u32 s{sT1}, s{sT1}, {112*1024}\ns_add_u32 s{sT2}, s{sT1}, 4096")
        I(f"s_lshl_b32 s{sT0}, s{sW}, 14\nv_add_u32 v{vT0}, s{sT0}, v{vL16}")
        poll_check("L_pd", vPH)
        ST('opoll')
        for j in range(8):
            b = BW + 8 * j
            I(f"buffer_load_dwordx4 v[{b}:{b+3}], v{vL16}, {R}, s{(sT1, sT2)[j >> 2]} offen offset:{(j & 3) * 1024} sc1")
            I(f"buffer_load_dwordx4 v[{b+4}:{b+7}], v{vL16B}, {R}, s{(sT1, sT2)[j >> 2]} offen offset:{(j & 3) * 1024} sc1")
        for j in range(6):
            for tt in range(2):
                for ct in range(2): I(g_mfma(AW + 8 * j, BW + 8 * j, ct, tt))
        wr = lambda tl_: [f"ds_write_b128 v{vT0}, v[{G+16*tl_+4*k}:{G+16*tl_+4*k+3}] offset:{(4*tl_+k)*1024}" for k in range(4)]
        order = [(0, 0), (1, 0), (0, 1), (1, 1)]
        for idx, (ct, tt) in enumerate(order):
            for j in (6, 7): I(g_mfma(AW + 8 * j, BW + 8 * j, ct, tt))
            if idx: emit(wr(2 * order[idx - 1][0] + order[idx - 1][1]))
        ST('womfma')
        emit(wr(3))
        I("s_branch L_final")
    p.label("L_final")
    ACC = 208
    for k in range(4):
        I(f"v_lshlrev_b32 v{ACC+2*k}, 16, v{XRS+k}\nv_and_b32 v{ACC+2*k+1}, 0xffff0000, v{XRS+k}")
    I("s_waitcnt lgkmcnt(0)\ns_barrier")
    ST('redw')
    RDB = 80
    for sw in range(8):
        for h in range(2):
            d = RDB + sw * 8 + h * 4
            if sw < 4: I(f"ds_read_b128 v[{d}:{d+3}], v{vV0} offset:{sw * 16384 + h * 512}")
            else: I(f"ds_read_b128 v[{d}:{d+3}], v{vV1} offset:{(sw - 4) * 8192 + h * 512}")
    for sw in range(8):
        for k in range(8): I(f"v_add_f32 v{ACC+k}, v{ACC+k}, v{RDB+sw*8+k}")
    for k in range(4): I(f"v_cvt_pk_bf16_f32 v{XRS+k}, v{ACC+2*k}, v{ACC+2*k+1}")
    I(f"buffer_store_dwordx4 v[{XRS}:{XRS+3}], v{vXO}, s[{S_O}:{S_O+3}], 0 offen")
    if prof is not None: I("s_waitcnt vmcnt(0)")
    p.stamp(8)
    if prof is not None: I(f"s_mov_b32 s{sT0}, s{sW}")
    if 'dbgst' in EXP:
        I(f"s_waitcnt vmcnt(0) lgkmcnt(0)\ns_mov_b32 s{S_D}, s{sDP}\ns_mov_b32 s{S_D+1}, s{sDP+1}\ns_mov_b32 s{S_D+2}, 256")
        I(f"s_cmp_eq_u32 s2, 8\ns_cselect_b32 s{sT1}, 8, 4096\ns_cmp_eq_u32 s2, 135\ns_cselect_b32 s{sT1}, 36, s{sT1}\ns_cmp_eq_u32 s{sW}, 0\ns_cselect_b32 s{sT1}, s{sT1}, 4096")
        for k, j in enumerate((1, 2, 3, 4, 5, 6, 8)):
            I(f"s_sub_u32 s{sT2}, s{84+2*j}, s84\nv_mov_b32 v2, s{sT2}\nbuffer_store_dword v2, v{vZ}, {RD_}, s{sT1} offen offset:{4*k}")
    else:
        p.dump_stamps(9, sT0, S_WS)
    p.label("L_end")
    I("s_endpgm")
    p.root.append(Fence())
    p.label("L_fallback")
    I("s_waitcnt vmcnt(0) lgkmcnt(0)\ns_nop 15\ns_barrier")
    I(f"s_mov_b32 s{sFLAG}, 1")
    emit(kv_init())
    for n in (-3, -2, -1):
        a_, b_, c_ = kv_group(n); emit(a_ + b_ + c_)
    I(f"v_and_b32 v{Q+6}, v{Q+6}, v{vKEEP}\nv_and_b32 v{Q+7}, v{Q+7}, v{vKEEP}")
    I(f"v_mov_b32 v{vM}, 0xff800000")
    I(f"s_mul_i32 s{sT1}, s{sKH}, {32*6144}\ns_sub_u32 s{sT0}, s{sHB2}, s{sT1}\ns_mov_b32 s{sT1}, 64")
    p.label("L_fbloop")
    with p.loop('f', 2):
        I(f"buffer_load_dwordx4 v[{KF}:{KF+3}], v{vL16}, {R}, s{sT0} offen sc1")
        I(f"buffer_load_dwordx4 v[{KF+4}:{KF+7}], v{vL16}, {R}, s{sT0} offen offset:1024 sc1")
        I(smfma(0)); I(smfma(1))
        emit(max16(SB, False))
        I(f"s_add_u32 s{sT0}, s{sT0}, 6144\ns_sub_u32 s{sT1}, s{sT1}, 1\ns_cmp_lg_u32 s{sT1}, 0\ns_cbranch_scc1 L_fbloop")
    cross_max()
    set_pads()
    I("s_waitcnt vmcnt(0) lgkmcnt(0)\ns_nop 7")
    I("s_branch L_plain")
    for fn in outofline:
        p.root.append(Fence())
        fn()
    p.label("L_code_end")
    I("s_endpgm")
    p.finalize()
    return p


if __name__ == "__main__":
    p = gen_mk("x")
    print(p.text()); print(p.max_vgpr())
```

```python
import math, struct, os
from asmgen import *

EXP = set(os.environ.get('MKEXP', '').split(','))
STN = os.environ.get('MKST', 'ln,barA,p1,p2,astart,aend').split(',')
def P(name, default): return int(os.environ.get('MK_' + name, default))
def f32(x): return struct.unpack('<I', struct.pack('<f', x))[0]

WS_QKV = 0
WS_ACT = 8 << 20
WS_FLAG = 24 << 20
F_QKV, F_H, F_O = WS_FLAG, WS_FLAG + 65536, WS_FLAG + 131072
WS_SIZE = 32 << 20
SPIN_MAX = 1 << 18
QSCALE = (28 ** -0.5) * math.log2(math.e)
GC1 = -2.0 * math.log2(math.e) * math.sqrt(2.0 / math.pi)
GC2 = GC1 * 0.044715


def flat(items):
    out = []
    for it in items:
        if isinstance(it, list): out += flat(it)
        else: out.append(it)
    return out


class Atom(tuple):
    pass


def gen_mk(name, prof=None):
    p = Prog(); p.prof = prof
    I = p.i
    def ST(nm):
        if nm in STN: p.stamp(1 + STN.index(nm))
    SA = SAlloc(24, 84)
    SA.add([3])

    def srd(d, ptr, size):
        I(f"s_mov_b32 s{d}, s{ptr}\ns_mov_b32 s{d+1}, s{ptr+1}\ns_mov_b32 s{d+2}, {size}\ns_mov_b32 s{d+3}, 0x00020000")

    def srd_adv(d, delta):
        return [Atom((f"s_add_u32 s{d}, s{d}, {delta}", f"s_addc_u32 s{d+1}, s{d+1}, 0")), f"s_sub_u32 s{d+2}, s{d+2}, {delta}"]

    def emit(items):
        for it in items:
            if isinstance(it, (Atom, list)): emit(it)
            elif isinstance(it, tuple): I(it[0], tag=it[1])
            elif callable(it): it()
            else: I(it)

    outofline = []

    def L(text):
        out = []
        for line in flat([t.split('\n') for t in ([text] if isinstance(text, str) else text)]):
            if line.startswith('s_cselect'):
                prev = out.pop()
                out.append(Atom((tuple(prev) if isinstance(prev, Atom) else (prev,)) + (line,)))
            else: out.append(line)
        return out

    S_X, S_C0, S_WS, S_G, S_U, S_D = SA.a('X', 'C0', 'WS', 'G', 'U', 'D', align=4, n=4)
    sN0 = SA.a('N', align=2, n=2); sN1 = sN0 + 1
    sM = SA.a('M', align=2, n=2)
    sW, sCH, sTY, sT0, sT1, sT2, sT4, sSPIN, sW1K = SA.a('W', 'CH', 'TY', 'T0', 'T1', 'T2', 'T4', 'SPIN', 'W1K')
    sRQ = SA.a(*[f'RQ{k}' for k in range(7)])
    sRG = SA.a(*[f'RG{k}' for k in range(7)])
    sRB, sIDX, sROT, sTT = SA.a('RB', 'IDX', 'ROT', 'TT')
    R = f"s[{S_WS}:{S_WS+3}]"
    RD_ = f"s[{S_D}:{S_D+3}]"
    vLANE, vXOFF, vQ, vG, vU = 0, 1, 2, 3, 4
    vPH, vPK = 1, 14
    vLQ = [5, 6, 7]; vLF = [[8, 9, 10], [11, 12, 13]]; vL16 = 15
    XN = 16
    ACC1, ACC2, AF, T = 128, 176, 208, 232
    vH, vLH = T, [None, T + 1, T + 2]
    vN, vPD, vSTR, vZ = 240, 244, 246, 247
    vF, vC1P, vC2P, vIF2, vKEEP, vHI, vSW0, vSW1 = 248, 249, 250, 251, 252, 253, 254, 255
    STATS = 0
    SLOT = [[14 + b for b in range(6)] + [b - 5 for b in range(6, 17)] + [b - 16 for b in range(17, 27)] + [12 + k for k in range(8)],
            [14 + b for b in range(6)] + [b - 5 for b in range(6, 18)] + [b - 17 for b in range(18, 28)] + [13 + k for k in range(7)]]

    I("s_cmp_ge_u32 s2, 256\ns_cbranch_scc1 L_end")
    if 'scr' in EXP: I("s_and_b32 s3, s2, 7\ns_lshl_b32 s3, s3, 5\ns_lshr_b32 s2, s2, 3\ns_or_b32 s2, s2, s3")
    p.stamp(0); p.stamp(7, True)
    I("s_load_dwordx16 s[4:19], s[0:1], 0\ns_load_dwordx4 s[20:23], s[0:1], 64")
    I(f"s_memrealtime s[{sN0}:{sN1}]")
    I(f"v_lshrrev_b32 v1, 6, v0\nv_readfirstlane_b32 s{sW}, v1\nv_and_b32 v{vLANE}, 63, v0")
    I(f"v_lshlrev_b32 v{vL16}, 4, v{vLANE}")
    if 'nopf' not in EXP:
        I(f"s_getpc_b64 s[{S_D}:{S_D+1}]")
        p.label("L_pcbase")
        I(f"s_mov_b32 s{S_D+2}, L_code_end-L_pcbase\ns_mov_b32 s{S_D+3}, 0x00020000")
        I(f"s_and_b32 s{sT4}, s2, 0x38\ns_add_u32 s{sT4}, s{sT4}, s{sW}\ns_lshl_b32 s{sT4}, s{sT4}, 10")
        I(f"buffer_load_dwordx4 v[204:207], v{vL16}, s[{S_D}:{S_D+3}], s{sT4} offen")
    I(f"s_and_b32 s{sT0}, s2, 1\ns_lshl_b32 s{sT0}, s{sT0}, 3\ns_bfe_u32 s{sRB}, s2, 0x30003\ns_add_u32 s{sRB}, s{sRB}, s{sT0}")
    I(f"s_lshr_b32 s{sT1}, s2, 6\ns_lshr_b32 s{sTY}, s2, 7")
    I(f"s_lshl_b32 s{sROT}, s{sT1}, 1\ns_add_u32 s{sROT}, s{sROT}, s{sRB}")
    I(f"s_sub_u32 s{sT0}, s{sROT}, 14\ns_cmp_ge_u32 s{sROT}, 14\ns_cselect_b32 s{sROT}, s{sT0}, s{sROT}")
    I(f"s_sub_u32 s{sT0}, s{sROT}, 7\ns_cmp_ge_u32 s{sROT}, 7\ns_cselect_b32 s{sROT}, s{sT0}, s{sROT}")
    I(f"s_and_b32 s{sIDX}, s2, 6\ns_and_b32 s{sT1}, s{sT1}, 1\ns_add_u32 s{sIDX}, s{sIDX}, s{sT1}")
    I(f"v_lshrrev_b32 v{T}, 3, v{vLANE}\nv_and_b32 v{T+1}, 7, v{vLANE}")
    I(f"v_mul_u32_u24 v{vXOFF}, 896, v{T}\nv_lshl_add_u32 v{vXOFF}, v{T+1}, 4, v{vXOFF}")
    I(f"s_lshl_b32 s{sT0}, s{sRB}, 3\ns_add_u32 s{sT0}, s{sT0}, s{sW}\ns_mul_i32 s{sT0}, s{sT0}, {16*896}")
    I(f"v_add_u32 v{vXOFF}, s{sT0}, v{vXOFF}\nv_add_u32 v199, {8*896}, v{vXOFF}")
    I(f"s_lshl_b32 s{sRG[0]}, s{sROT}, 7")
    for v in range(1, 7):
        I(f"s_add_u32 s{sRG[v]}, s{sRG[v-1]}, 128\ns_cmp_eq_u32 s{sRG[v]}, 896\ns_cselect_b32 s{sRG[v]}, 0, s{sRG[v]}")
    I("s_waitcnt lgkmcnt(0)")
    SA.add([0, 1, 10, 11])
    srd(S_X, 4, 2048 * 896)
    XR = lambda g, v: ACC1 + (g * 7 + v) * 4
    ST('karg')
    def xload(g, offs):
        for v in range(7):
            I(f"buffer_load_dwordx4 v[{XR(g,v)}:{XR(g,v)+3}], v{(vXOFF, 199)[g]}, s[{S_X}:{S_X+3}], s{offs[v]} offen")
    xload(0, sRG)
    if 'noxsplit' in EXP: xload(1, sRG)
    srd(S_C0, 6, 448 * 2688)
    I(f"s_mul_i32 s{sT0}, s{sIDX}, 112\ns_mul_i32 s{sT1}, s{sTY}, 896\ns_add_u32 s{sT0}, s{sT0}, s{sT1}")
    emit(srd_adv(S_C0, f"s{sT0}"))
    I(f"v_lshlrev_b32 v{T+3}, 1, v{T}\nv_and_b32 v{T+3}, 4, v{T+3}\nv_xor_b32 v{T+3}, v{T+3}, v{T+1}\nv_lshlrev_b32 v{T+3}, 4, v{T+3}")
    I(f"v_mul_u32_u24 v{vQ}, 2688, v{T}\nv_add_u32 v{vQ}, v{vQ}, v{T+3}")
    I(f"s_lshl_b32 s{sW1K}, s{sW}, 10\ns_lshl_b32 s{sT0}, s{sW}, 4")
    for v in range(7):
        I(f"s_add_u32 s{sRG[v]}, s{sRG[v]}, s{sT0}\ns_mul_i32 s{sRQ[v]}, s{sRG[v]}, 1344")

    def dma_block(b, slot, kind, v):
        tag = ('W', b)
        m0 = f"s_add_u32 m0, s{sW1K}, {slot * 8192}"
        if kind == 'Q': return [m0, (f"buffer_load_dwordx4 v{vQ}, s[{S_C0}:{S_C0+3}], s{sRQ[v]} offen lds", tag)]
        if kind == 'G': return [m0, (f"buffer_load_dwordx4 v{vG}, s[{S_G}:{S_G+3}], s{sRG[v]} offen lds", tag)]
        if kind == 'U': return [m0, (f"buffer_load_dwordx4 v{vU}, s[{S_U}:{S_U+3}], s{sRG[v]} offen lds", tag)]
        return [m0,
                Atom((f"s_mov_b64 exec, s[{sM}:{sM+1}]", (f"buffer_load_dwordx4 v{vH}, s[{S_G}:{S_G+3}], s{sRG[v]} offen lds", tag), "s_mov_b64 exec, -1")),
                Atom((f"s_not_b64 exec, s[{sM}:{sM+1}]", (f"buffer_load_dwordx4 v{vH}, s[{S_U}:{S_U+3}], s{sRG[v]} offen lds", tag), "s_mov_b64 exec, -1"))]

    early = [Atom(dma_block(b, 14 + b, 'Q', b)) for b in range(6)]
    sDP = SA.a('DP', align=2, n=2)
    I(f"s_mov_b64 s[{sDP}:{sDP+1}], s[20:21]")
    def nonce_pub():
        srd(S_D, sDP, 256)
        I(f"s_or_b32 s{sT4}, s2, s{sW}\ns_min_u32 s{sT4}, s{sT4}, 1\ns_lshl_b32 s{sT4}, s{sT4}, 12")
        I(f"buffer_store_dwordx2 v[{vN}:{vN+1}], v{vZ}, {RD_}, s{sT4} offen sc1")
    I(f"s_or_b32 s{sN0}, s{sN0}, 1\nv_mov_b32 v{vN}, s{sN0}\nv_mov_b32 v{vN+1}, s{sN1}\nv_mov_b32 v{vZ}, 0")
    early = [nonce_pub] + early
    srd(S_G, 12, 448 * 3584); srd(S_U, 14, 448 * 3584); srd(S_WS, 22, WS_SIZE)
    SA.add([4, 5, 6, 7, 12, 13, 14, 15, 20, 21, 22, 23])
    I(f"s_lshr_b32 s{sCH}, s{sW}, 2\ns_and_b32 s{sTT}, s{sW}, 3")
    sKS1, sKS2, sDC = SA.a('KS1', 'KS2', 'DC')
    I(f"s_lshl_b32 s{sT0}, s{sIDX}, 7\ns_lshl_b32 s{sT1}, s{sTY}, 10\ns_add_u32 s{sT1}, s{sT1}, s{sT0}\ns_lshl_b32 s{sT2}, s{sCH}, 1")
    emit(srd_adv(S_G, f"s{sT1}")); emit(srd_adv(S_U, f"s{sT1}"))
    I(f"s_lshr_b32 s{sKS1}, s{sT1}, 5\ns_add_u32 s{sKS1}, s{sKS1}, s{sT2}")
    I(f"s_add_u32 s{sT0}, s{sT0}, 2048\ns_lshl_b32 s{sT4}, s{sIDX}, 6\ns_add_u32 s{sT4}, s{sT4}, 3072")
    I(f"s_cmp_eq_u32 s{sTY}, 0\ns_cselect_b32 s{sT0}, s{sT0}, s{sT4}\ns_cselect_b32 s{sT2}, s{sT2}, s{sCH}")
    I(f"s_sub_u32 s{sDC}, s{sT0}, s{sT1}\ns_lshr_b32 s{sKS2}, s{sT0}, 5\ns_add_u32 s{sKS2}, s{sKS2}, s{sT2}")
    I(f"v_mul_u32_u24 v{vG}, 3584, v{T}\nv_add_u32 v{vG}, v{vG}, v{T+3}\nv_xor_b32 v{vU}, 32, v{vG}")
    vHH, vMH, vR4, vC4, vRS, tA, tB = range(AF, AF + 7)
    I(f"v_lshrrev_b32 v{vHH}, 5, v{vLANE}\nv_bfe_u32 v{vMH}, v{vLANE}, 4, 1\nv_bfe_u32 v{vR4}, v{vLANE}, 2, 2\nv_and_b32 v{vC4}, 3, v{vLANE}")
    I(f"v_bfe_u32 v{vRS}, v{vLANE}, 3, 1\nv_lshlrev_b32 v{vRS}, 6, v{vRS}")
    I(f"s_mul_i32 s{sT0}, s{sCH}, 56")
    I(f"v_lshl_add_u32 v{tA}, v{vC4}, 3, s{sT0}\nv_lshl_add_u32 v{tA}, v{vMH}, 5, v{tA}\nv_xor_b32 v{tA}, v{tA}, v{vRS}")
    I(f"v_lshl_add_u32 v{tA}, v{vR4}, 7, v{tA}\nv_lshl_add_u32 v{vLQ[0]}, v{vHH}, 10, v{tA}")
    I(f"s_lshl_b32 s{sT0}, s{sCH}, 6")
    I(f"v_lshl_add_u32 v{tA}, v{vC4}, 3, s{sT0}\nv_lshl_add_u32 v{tB}, v{vMH}, 5, v{vRS}\nv_xor_b32 v{tA}, v{tA}, v{tB}")
    I(f"v_lshl_add_u32 v{tA}, v{vR4}, 7, v{tA}\nv_lshl_add_u32 v{tA}, v{vHH}, 10, v{tA}\nv_lshl_add_u32 v{vLF[0][0]}, v{vMH}, 13, v{tA}")
    I(f"v_xor_b32 v{vLF[1][0]}, 32, v{vLF[0][0]}")
    for base in (vLQ, vLF[0], vLF[1]):
        I(f"v_add_u32 v{base[1]}, 0x10000, v{base[0]}\nv_add_u32 v{base[2]}, 0x20000, v{base[0]}")
    I(f"v_sub_u32 v{vHI}, 0, v{vHH}\nv_not_b32 v{vKEEP}, v{vHI}")
    I(f"v_lshlrev_b32 v{vSW0}, 6, v{vHH}\nv_xor_b32 v{vSW0}, v{vSW0}, v{vL16}\nv_xor_b32 v{vSW1}, 128, v{vSW0}")
    if 'noxsplit' not in EXP:
        I(f"s_lshl_b32 s{sT0}, s{sW}, 4\nv_subrev_u32 v199, s{sT0}, v199")
        xload(1, sRG)
    for v in range(7): I(f"s_mul_i32 s{sRG[v]}, s{sRG[v]}, 1792")
    vWB = [[XN, XN + 1], [XN + 2, XN + 3]]
    I(f"s_lshl_b32 s{sT0}, s{sW}, 11")
    I(f"v_lshrrev_b32 v{tA}, 1, v{T}\nv_xor_b32 v{tA}, v{tA}, v{T+1}")
    I(f"v_lshl_add_u32 v{tB}, v{T}, 7, s{sT0}\nv_lshl_add_u32 v{vWB[0][0]}, v{tA}, 4, v{tB}")
    I(f"v_xor_b32 v{vWB[1][0]}, 64, v{vWB[0][0]}\nv_add_u32 v{vWB[1][0]}, 1024, v{vWB[1][0]}")
    I(f"v_add_u32 v{vWB[0][1]}, 65536, v{vWB[0][0]}\nv_add_u32 v{vWB[1][1]}, 65536, v{vWB[1][0]}")
    fa = T + 4
    vSTW, vVAR = T + 2, [T + 3, vPD]
    I(f"v_and_b32 v{tA}, 31, v{vLANE}\nv_bfe_u32 v{tB}, v{vLANE}, 1, 3\nv_xor_b32 v{tB}, v{tB}, v{vHH}")
    I(f"s_lshl_b32 s{sT0}, s{sTT}, 12")
    I(f"v_lshl_add_u32 v{fa}, v{tA}, 7, s{sT0}\nv_lshl_add_u32 v{fa}, v{tB}, 4, v{fa}")
    for k in range(1, 4): I(f"v_xor_b32 v{fa+k}, {k*32}, v{fa}")
    I(f"s_lshl_b32 s{sT0}, s{sW}, 6\nv_lshl_add_u32 v{vSTW}, v{T}, 2, s{sT0}")
    I(f"s_lshl_b32 s{sT0}, s{sTT}, 7\nv_lshl_add_u32 v{vSTR}, v{tA}, 2, s{sT0}")
    u0, u1, u2 = T + 4, T + 5, T + 6
    FH = L([f"v_and_b32 v{u0}, 2, v{T}\nv_and_b32 v{u1}, 3, v{T+1}\nv_xor_b32 v{u0}, v{u0}, v{u1}",
            f"v_mul_u32_u24 v{vH}, 3584, v{T}\nv_lshl_add_u32 v{vH}, v{u0}, 4, v{vH}",
            f"s_lshl_b32 s{sT0}, s{sCH}, 5\nv_lshl_add_u32 v{u0}, v{u1}, 3, s{sT0}\nv_and_b32 v{u1}, 8, v{vLANE}\nv_lshlrev_b32 v{u1}, 2, v{u1}\nv_xor_b32 v{u0}, v{u0}, v{u1}",
            f"v_bfe_u32 v{u1}, v{vLANE}, 4, 1\nv_lshl_add_u32 v{u0}, v{u1}, 6, v{u0}\nv_bfe_u32 v{u1}, v{vLANE}, 2, 2\nv_lshl_add_u32 v{u0}, v{u1}, 7, v{u0}",
            f"v_lshrrev_b32 v{u1}, 5, v{vLANE}\nv_lshl_add_u32 v{u0}, v{u1}, 10, v{u0}\nv_add_u32 v{vLH[1]}, 0x10000, v{u0}\nv_add_u32 v{vLH[2]}, 0x20000, v{u0}",
            f"s_mov_b32 s{sM}, 0x0f0f0f0f\ns_mov_b32 s{sM+1}, 0x0f0f0f0f"])
    F2, F3 = [], []
    sQT = SA.a('QT')
    F2 += L(f"s_mov_b32 s{sQT}, s{sTT}\ns_lshl_b32 s{sT0}, s{sRB}, 2\ns_add_u32 s{sTT}, s{sTT}, s{sT0}")
    sQS, sQF, sH1, sH2, sHF1, sHF2 = SA.a('QS', 'QF', 'H1', 'H2', 'HF1', 'HF2')
    F2 += L(f"s_lshl_b32 s{sT0}, s{sIDX}, 1\ns_add_u32 s{sT0}, s{sT0}, s{sCH}")
    F2 += L(f"s_lshl_b32 s{sQS}, s{sT0}, 6\ns_add_u32 s{sQS}, s{sQS}, s{sTT}\ns_mul_i32 s{sQS}, s{sQS}, 3\ns_add_u32 s{sQS}, s{sQS}, s{sTY}\ns_lshl_b32 s{sQS}, s{sQS}, 11")
    F2 += L(f"s_mul_i32 s{sQF}, s{sT0}, 3\ns_add_u32 s{sQF}, s{sQF}, s{sTY}\ns_lshl_b32 s{sQF}, s{sQF}, 6\ns_add_u32 s{sQF}, s{sQF}, s{sTT}\ns_lshl_b32 s{sQF}, s{sQF}, 3\ns_add_u32 s{sQF}, s{sQF}, {F_QKV}")
    F2 += L(f"s_mul_i32 s{sT0}, s{sTT}, 144\ns_mul_i32 s{sT1}, s{sTT}, 112")
    for sh, sf, sk in ((sH1, sHF1, sKS1), (sH2, sHF2, sKS2)):
        F2 += L(f"s_add_u32 s{sh}, s{sT0}, s{sk}\ns_lshl_b32 s{sh}, s{sh}, 10\ns_add_u32 s{sh}, s{sh}, {WS_ACT}")
        F2 += L(f"s_add_u32 s{sf}, s{sT1}, s{sk}\ns_lshl_b32 s{sf}, s{sf}, 3\ns_add_u32 s{sf}, s{sf}, {F_H}")
    SA.f('KS1', 'KS2', 'RB', 'IDX', 'ROT', 'TT')
    F2 += L(f"s_mov_b32 s{sSPIN}, {SPIN_MAX}")
    sKH = sCH
    sTK, sPOS, sHB2, sKB, sLQ, sREC, sOS, sOF, sRB3, sCOL = SA.a('TK', 'POS', 'HB2', 'KB', 'LQ', 'REC', 'OS', 'OF', 'RB3', 'COL')
    sHEAD, sT3 = sT1, sT2
    F3 += L(f"s_and_b32 s{sT0}, s2, 7\ns_lshl_b32 s{sHEAD}, s{sT0}, 1\ns_add_u32 s{sHEAD}, s{sHEAD}, s{sTY}")
    F3 += L(f"s_bfe_u32 s{sT3}, s2, 0x40003\ns_lshl_b32 s{sT3}, s{sT3}, 2\ns_add_u32 s{sT3}, s{sT3}, s{sQT}")
    F3 += L(f"s_lshl_b32 s{sRB3}, s{sT0}, 2\ns_bfe_u32 s{sT0}, s2, 0x20003\ns_add_u32 s{sRB3}, s{sRB3}, s{sT0}")
    F3 += L(f"s_lshr_b32 s{sCOL}, s2, 5\ns_lshl_b32 s{sCOL}, s{sCOL}, 7")
    F3 += L(f"s_mul_i32 s{sHB2}, s{sHEAD}, {64*6144}\ns_mul_i32 s{sREC}, s{sT3}, 6144\ns_add_u32 s{sREC}, s{sREC}, s{sHB2}")
    F3 += L(f"s_mul_i32 s{sT0}, s{sKH}, {32*6144}\ns_add_u32 s{sHB2}, s{sHB2}, s{sT0}\ns_add_u32 s{sHB2}, s{sHB2}, 2048")
    F3 += L(f"s_sub_u32 s{sLQ}, s{sQT}, s{sKH}\ns_add_u32 s{sLQ}, s{sLQ}, 1\ns_mul_i32 s{sKB}, s{sKH}, 49152")
    F3 += L(f"s_mul_i32 s{sOS}, s{sT3}, 144\ns_lshl_b32 s{sT0}, s{sHEAD}, 1\ns_add_u32 s{sOS}, s{sOS}, s{sT0}\ns_lshl_b32 s{sOS}, s{sOS}, 10\ns_add_u32 s{sOS}, s{sOS}, {WS_ACT + 112*1024}")
    F3 += L(f"s_lshl_b32 s{sOF}, s{sT3}, 4\ns_add_u32 s{sOF}, s{sOF}, s{sHEAD}\ns_lshl_b32 s{sOF}, s{sOF}, 3\ns_add_u32 s{sOF}, s{sOF}, {F_O}")

    def kv_init():
        return [f"s_bfe_u32 s{sTK}, s2, 0x40003", f"s_lshl_b32 s{sTK}, s{sTK}, 2", f"s_add_u32 s{sTK}, s{sTK}, s{sLQ}",
                f"s_add_u32 s{sTK}, s{sTK}, 31", f"s_and_b32 s{sTK}, s{sTK}, 31",
                f"s_sub_u32 s{sPOS}, s{sLQ}, 1", f"s_cmp_eq_u32 s{sLQ}, 0", f"s_cselect_b32 s{sPOS}, 11, s{sPOS}",
                f"s_lshl_b32 s{sPOS}, s{sPOS}, 12", f"s_add_u32 s{sPOS}, s{sPOS}, s{sKB}"]
    F3 += L(kv_init())
    F3 += L(f"s_lshl_b32 s{sT0}, s{sKH}, 5\ns_add_u32 s{sT0}, s{sT0}, 64\ns_add_u32 s{sT4}, s{sLQ}, 3")
    F3 += L(f"v_bfe_u32 v{u1}, v{vLANE}, 3, 1\nv_sub_u32 v{vPK}, s{sT4}, v{u1}\nv_and_b32 v{vPK}, 3, v{vPK}")
    F3 += L(f"v_and_b32 v{u0}, 7, v{vLANE}\nv_lshl_add_u32 v{u0}, v{u0}, 2, s{sT0}\nv_add_u32 v{u0}, v{u0}, v{vPK}\nv_lshl_add_u32 v{u0}, v{u1}, 6, v{u0}")
    F3 += L(f"v_and_b32 v{u1}, 1, v{vLANE}\nv_lshl_add_u32 v{u1}, v{u1}, 6, s{sT3}")
    F3 += L(f"v_bfe_i32 v{vPK}, v{vLANE}, 4, 1\nv_bfi_b32 v{vPK}, v{vPK}, v{u1}, v{u0}")
    F3 += L(f"s_mul_i32 s{sT0}, s{sHEAD}, {192*8}\ns_add_u32 s{sT0}, s{sT0}, {F_QKV}\nv_lshl_add_u32 v{vPK}, v{vPK}, 3, s{sT0}")
    F3 += L(f"v_lshrrev_b32 v{u0}, 1, v{vLANE}\nv_min_u32 v{u0}, 13, v{u0}\nv_and_b32 v{u1}, 1, v{vLANE}\nv_mul_u32_u24 v{u1}, 14, v{u1}\nv_add_u32 v{u0}, v{u0}, v{u1}")
    F3 += L(f"s_mul_i32 s{sT0}, s{sRB3}, 224\ns_add_u32 s{sT0}, s{sT0}, s{sW}\ns_lshl_b32 s{sT0}, s{sT0}, 3\ns_add_u32 s{sT0}, s{sT0}, {F_H}")
    F3 += L(f"v_lshl_add_u32 v{vPH}, v{u0}, 6, s{sT0}")
    F3 += L(f"s_cmp_lg_u32 s{sKH}, 0\ns_cselect_b64 vcc, -1, 0")

    sONES, sSELLO, sSELHI = sT0, sT1, sT2
    I(f"s_mov_b32 s{sONES}, 0x3f803f80\ns_mov_b32 s{sSELLO}, 0x00003f80\ns_mov_b32 s{sSELHI}, 0x3f800000")
    a0, a1, lo, hi, nmu = XN + 4, XN + 5, XN + 8, XN + 12, XN + 6
    def red8(rs):
        for mod in ("quad_perm:[1,0,3,2]", "quad_perm:[2,3,0,1]", "row_half_mirror"):
            for r in rs: I(f"v_add_f32_dpp v{r}, v{r}, v{r} {mod} row_mask:0xf bank_mask:0xf")
    ST('setup')
    emit(early[:P('E0', 1)]); early = early[P('E0', 1):]
    for g in range(2):
        for k in range(28):
            r = XR(g, 0) + k
            if k == 1: ST(f'xa{g}')
            if k == 27: ST(f'xb{g}')
            I(f"v_dot2_f32_bf16 v{a0}, v{r}, s{sONES}, {'0' if k == 0 else 'v%d' % a0}")
            I(f"v_dot2_f32_bf16 v{a1}, v{r}, v{r}, {'0' if k == 0 else 'v%d' % a1}")
        red8([a0, a1])
        I(f"v_mul_f32 v{nmu}, {f32(-1.0/448)}, v{a0}")
        I(f"v_mul_f32 v{a1}, {f32(1.0/448)}, v{a1}\nv_fma_f32 v{a1}, -v{nmu}, v{nmu}, v{a1}\nv_max_f32 v{a1}, 0, v{a1}\nv_add_f32 v{vVAR[g]}, {f32(1e-5)}, v{a1}")
        for v in range(7):
            b = XR(g, v)
            for k in range(4):
                I(f"v_dot2_f32_bf16 v{lo+k}, v{b+k}, s{sSELLO}, v{nmu}")
                I(f"v_dot2_f32_bf16 v{hi+k}, v{b+k}, s{sSELHI}, v{nmu}")
            for k in range(4):
                I(f"v_cvt_pk_bf16_f32 v{b+k}, v{lo+k}, v{hi+k}")
            I(f"ds_write_b128 v{vWB[g][v >> 2]}, v[{b}:{b+3}] offset:{(v & 3) * 16384}")
            if early: emit([early.pop(0)])
    if 'pf2' in EXP:
        I(f"s_add_u32 s{sT0}, s{sRG[0]}, s{sDC}\ns_mul_i32 s{sT1}, s{sTY}, 896\ns_add_u32 s{sT1}, s{sT1}, s{sRQ[0]}")
        I(f"buffer_load_dword v200, v{vQ}, s[{S_C0}:{S_C0+3}], s{sT1} offen")
        I(f"buffer_load_dword v201, v{vG}, s[{S_G}:{S_G+3}], s{sRG[0]} offen\nbuffer_load_dword v202, v{vG}, s[{S_U}:{S_U+3}], s{sRG[0]} offen")
        I(f"buffer_load_dword v203, v{vG}, s[{S_G}:{S_G+3}], s{sT0} offen\nbuffer_load_dword v199, v{vG}, s[{S_U}:{S_U+3}], s{sT0} offen")
    if 'tlb' in EXP:
        I(f"v_lshlrev_b32 v200, 19, v{vLANE}\nv_lshlrev_b32 v201, 15, v{vLANE}")
        I(f"s_cmp_lg_u32 s{sW}, 0\ns_cselect_b32 s{sT4}, 0x7f000000, 0")
        I(f"buffer_load_dword v202, v200, {R}, s{sT4} offen")
        q = sRQ
        I(f"s_mov_b32 s{sT0}, s16\ns_mov_b32 s{sT1}, s17")
        for wv, ptr in ((2, 8), (3, 18)):
            I(f"s_cmp_eq_u32 s{sW}, {wv}\ns_cselect_b32 s{sT0}, s{ptr}, s{sT0}\ns_cselect_b32 s{sT1}, s{ptr+1}, s{sT1}")
        for wv, ptr in ((4, S_G), (5, S_U)):
            I(f"s_cmp_eq_u32 s{sW}, {wv}\ns_cselect_b32 s{sT0}, s{ptr}, s{sT0}\ns_cselect_b32 s{sT1}, s{ptr+1}, s{sT1}")
        I(f"s_mov_b64 s[{sM}:{sM+1}], s[{S_X}:{S_X+1}]\ns_mov_b32 s{S_X}, s{sT0}\ns_mov_b32 s{S_X+1}, s{sT1}\ns_mov_b32 s{S_X+2}, {448*896}")
        I(f"s_cmp_eq_u32 s{sW}, 2\ns_cselect_b32 s{S_X+2}, s{S_X+2}, {1500000}")
        I(f"buffer_load_dword v203, v201, s[{S_X}:{S_X+3}], 0 offen")
        I(f"s_mov_b64 s[{S_X}:{S_X+1}], s[{sM}:{sM+1}]\ns_mov_b32 s{S_X+2}, {2048*896}")
    ST('ln')

    def xread(s): return f"ds_read_b128 v[{XN+4*s}:{XN+4*s+3}], v{fa + (s & 3)} offset:{((s >> 2) & 3) * 16384}"

    def spin_check(lbl, cmp_items, reload_items):
        p.label(lbl + "_chk")
        emit(cmp_items)
        I(f"s_cbranch_scc0 {lbl}_spin")
        p.label(lbl + "_ok")
        def ool():
            p.label(lbl + "_spin")
            I(f"s_sub_u32 s{sSPIN}, s{sSPIN}, 1\ns_cmp_lt_i32 s{sSPIN}, 1\ns_cbranch_scc1 {lbl}_ok")
            I("s_sleep 4")
            emit(reload_items)
            I(f"s_waitcnt vmcnt(0)\ns_branch {lbl}_chk")
        outofline.append(ool)

    nonce_load = f"buffer_load_dwordx2 v[{vN}:{vN+1}], v{vZ}, {RD_}, 0 offen sc1"
    def nonce_check(lbl):
        spin_check(lbl, [f"v_readfirstlane_b32 s{sN0}, v{vN}", f"s_cmp_lg_u32 s{sN0}, 0"], [nonce_load])
        I(f"v_mov_b32 v{vN+2}, v{vN}\nv_mov_b32 v{vN+3}, v{vN+1}")

    def flag_store(soff, tag, off=0, two=False):
        st = f"buffer_store_dwordx4 v[{vN}:{vN+3}]" if two else f"buffer_store_dwordx2 v[{vN}:{vN+1}]"
        return Atom((lambda: None if 'nofw' in EXP else p.waitvm(lambda tg, env: tg == tag), "s_mov_b64 exec, 1",
                     f"{st}, v{vZ}, {R}, s{soff} offen offset:{off} sc1", "s_mov_b64 exec, -1"))

    def poll_load(va): return f"buffer_load_dwordx2 v[{vPD}:{vPD+1}], v{va}, {R}, 0 offen sc1"
    def poll_check(lbl, va, mask=None):
        if 'no' + lbl[2:4] in EXP: return
        c = [f"v_cmp_ne_u64 s[{sN0}:{sN1}], v[{vPD}:{vPD+1}], v[{vN}:{vN+1}]"]
        if mask is None: c += [f"s_cmp_eq_u64 s[{sN0}:{sN1}], 0"]
        else: c += [f"s_and_b32 s{sN0}, s{sN0}, {mask}", f"s_cmp_eq_u32 s{sN0}, 0"]
        spin_check(lbl, c, [poll_load(va)])

    G, SB, O, VF, PF, Q, KF, GB, TMP, GA = 16, 80, 96, 112, 120, 128, 136, 144, 176, 208

    def kv_group(st):
        tag = ('KV', st)
        pre = [f"s_mul_i32 s{sT0}, s{sTK}, 6144", f"s_add_u32 s{sT4}, s{sTK}, 31", f"s_add_u32 s{sT0}, s{sT0}, s{sHB2}",
               f"s_and_b32 s{sT4}, s{sT4}, 31", f"s_mul_i32 s{sT4}, s{sT4}, 6144", f"s_add_u32 s{sT4}, s{sT4}, s{sHB2}",
               f"s_add_u32 s{sTK}, s{sTK}, 4", f"s_and_b32 s{sTK}, s{sTK}, 31"]
        BIG = 0x7f000000
        if st == -3:
            pre += [Atom((f"s_cmp_eq_u32 s{sLQ}, 0", f"s_cselect_b32 s{sT0}, {BIG}, s{sT0}")), Atom((f"s_cmp_lt_u32 s{sLQ}, 2", f"s_cselect_b32 s{sT4}, {BIG}, s{sT4}"))]
        if st == 5:
            pre += [Atom((f"s_cmp_lg_u32 s{sLQ}, 0", f"s_cselect_b32 s{sT0}, {BIG}, s{sT0}")), Atom((f"s_cmp_ge_u32 s{sLQ}, 2", f"s_cselect_b32 s{sT4}, {BIG}, s{sT4}"))]
        def m0set(k):
            if st in (-3, 5):
                return (f"s_bitcmp1_b32 s{(sT0, sT4)[k >> 1]}, 30", f"s_cselect_b32 m0, 0x30000, s{sPOS}")
            return (f"s_mov_b32 m0, s{sPOS}",)
        d = [Atom(m0set(k) + ((f"buffer_load_dwordx4 v{vL16}, {R}, s{(sT0, sT4)[k >> 1]} offen offset:{k*1024} sc1 lds", tag),)) for k in range(4)]
        post = [f"s_add_u32 s{sPOS}, s{sPOS}, 16384", f"s_sub_u32 s{sT0}, s{sPOS}, 49152",
                Atom((f"s_cmp_ge_i32 s{sT0}, s{sKB}", f"s_cselect_b32 s{sPOS}, s{sT0}, s{sPOS}"))]
        return pre, d, post

    def gelu(c, soff, off, tag, tmp=T + 4):
        o = []
        for h in range(2):
            idx = [4 * h + k for k in range(4)]
            t = [tmp + k for k in range(4)]
            for k, j in enumerate(idx): o.append(f"v_mul_f32 v{t[k]}, v{c+j}, v{c+j}")
            for k, j in enumerate(idx): o.append(f"v_fma_f32 v{t[k]}, v{t[k]}, v{vC2P}, v{vC1P}")
            for k, j in enumerate(idx): o.append(f"v_mul_f32 v{t[k]}, v{t[k]}, v{c+j}")
            for k, j in enumerate(idx): o.append(f"v_exp_f32 v{t[k]}, v{t[k]}")
            for k, j in enumerate(idx): o.append(f"v_mul_f32 v{c+j}, v{c+j}, v{c+8+j}")
            for k, j in enumerate(idx): o.append(f"v_fma_f32 v{t[k]}, v{t[k]}, v{vIF2}, v{vIF2}")
            for k, j in enumerate(idx): o.append(f"v_rcp_f32 v{t[k]}, v{t[k]}")
            for k, j in enumerate(idx): o.append(f"v_mul_f32 v{c+j}, v{c+j}, v{t[k]}")
        for k in range(4): o.append(f"v_cvt_pk_bf16_f32 v{c+8+k}, v{c+2*k}, v{c+2*k+1}")
        o.append((f"buffer_store_dwordx4 v[{c+8}:{c+11}], v{vL16}, {R}, s{soff} offen offset:{off} sc1", tag))
        return o

    def qkv_epi(c, which, tag):
        o = []
        fm = vF
        if which == 0:
            fm = T + 3
            o.append(f"v_mul_f32 v{fm}, {f32(QSCALE)}, v{vF}")
        else:
            o.append(f"v_and_b32 v{T+3}, 0x3f803f80, v{vHI}")
        for k in range(8):
            o += [f"v_mul_f32 v{c+2*k}, v{c+2*k}, v{fm}", f"v_mul_f32 v{c+2*k+1}, v{c+2*k+1}, v{fm}",
                  f"v_cvt_pk_bf16_f32 v{c+k}, v{c+2*k}, v{c+2*k+1}"]
            if k == 3:
                o.append((f"buffer_store_dwordx4 v[{c}:{c+3}], v{vSW0 if which == 2 else vL16}, {R}, s{sQS} offen offset:{2048 if which == 2 else 0} sc1", tag))
        for k in (6, 7):
            o.append(f"v_and_b32 v{c+k}, v{c+k}, v{vKEEP}" if which == 0 else f"v_and_or_b32 v{c+k}, v{c+k}, v{vKEEP}, v{T+3}")
        o.append((f"buffer_store_dwordx4 v[{c+4}:{c+7}], v{vSW1 if which == 2 else vL16}, {R}, s{sQS} offen offset:{3072 if which == 2 else 1024} sc1", tag))
        return o

    def qloads():
        return [f"buffer_load_dwordx4 v[{Q+4*k}:{Q+4*k+3}], v{vL16}, {R}, s{sREC} offen offset:{1024*k} sc1" for k in range(4)]

    nbar = [0]
    def cbar(for_lag, need=None):
        nbar[0] += 1
        l = f"L_sk{nbar[0]}"
        I(f"s_cbranch_vcc{'z' if for_lag else 'nz'} {l}")
        alts = p.cond("kh", 2)
        with alts[1 if for_lag else 0]:
            if need: p.waitvm(need)
            I("s_waitcnt lgkmcnt(0)\ns_barrier")
        p.label(l)

    STAGES_T = [[0, 3, 6, 9, 13, 17, 21, 25, 29, 35], [0, 3, 6, 10, 14, 18, 22, 26, 30, 35]]
    D, NB = 4, 6
    LA = P('LA', 36)
    PM = 116

    S_W, S_O = S_C0, S_G
    RW = f"s[{S_W}:{S_W+3}]"
    sFLAG, sAB, sGN, sGW, sWM0, sGEMM, sR8 = sRQ
    sE0 = sRG[0]
    WLDS = 98304
    need0 = lambda tag, env: tag == ('KV', -3)
    sc = [f"s_mov_b32 s{S_W}, s16", f"s_mov_b32 s{S_W+1}, s17", f"s_mov_b32 s{S_W+2}, {1792*896}", f"s_mov_b32 s{S_W+3}, 0x00020000",
          f"s_mov_b32 s{S_O}, s18", f"s_mov_b32 s{S_O+1}, s19", f"s_mov_b32 s{S_O+2}, {2048*896}", f"s_mov_b32 s{S_O+3}, 0x00020000",
          f"s_cmp_lt_u32 s2, 224", f"s_cselect_b32 s{sGEMM}, 1, 0",
          f"s_bfe_u32 s{sT1}, s2, 0x20003", f"s_lshr_b32 s{sT2}, s2, 5", f"s_lshl_b32 s{sR8}, s{sT1}, 1", f"s_add_u32 s{sR8}, s{sR8}, s{sT2}",
          f"s_add_u32 s{sGN}, s{sT1}, s{sT2}", f"s_and_b32 s{sGN}, s{sGN}, 3",
          f"s_sub_u32 s{sT2}, s{sR8}, 10", f"s_cmp_ge_u32 s{sR8}, 10", f"s_cselect_b32 s{sR8}, s{sT2}, s{sR8}", f"s_add_u32 s{sR8}, s{sR8}, 4",
          f"s_lshl_b32 s{sGW}, s{sGN}, 3", f"s_add_u32 s{sGW}, s{sGW}, s{sW}", f"s_mul_i32 s{sGW}, s{sGW}, {16*896}", f"s_add_u32 s{sGW}, s{sGW}, s{sCOL}",
          f"s_lshl_b32 s{sGN}, s{sGN}, 13",
          f"s_mul_i32 s{sAB}, s{sRB3}, {2*144*1024}", f"s_add_u32 s{sAB}, s{sAB}, {WS_ACT}", f"s_lshl_b32 s{sT1}, s{sW}, 10", f"s_add_u32 s{sAB}, s{sAB}, s{sT1}",
          f"s_add_u32 s{sGN}, s{sGN}, s{sAB}",
          f"s_lshl_b32 s{sWM0}, s{sW}, 13", f"s_add_u32 s{sWM0}, s{sWM0}, {WLDS}", f"s_mov_b32 s{sFLAG}, 0"]

    wd_prefetch = [] if 'pf3' not in EXP else [
        f"v_lshrrev_b32 v{T+4}, 4, v{vLANE}", f"v_and_b32 v{T+5}, 15, v{vLANE}", f"v_lshl_add_u32 v{T+4}, v{T+4}, 9, v{T+5}",
        f"v_mul_u32_u24 v{T+4}, 896, v{T+4}",
        f"s_bfe_u32 s{sT1}, s2, 0x20003", f"s_lshl_b32 s{sT1}, s{sT1}, 3", f"s_add_u32 s{sT1}, s{sT1}, s{sW}",
        f"s_mul_i32 s{sT1}, s{sT1}, {16*896}", f"s_add_u32 s{sT1}, s{sT1}, s{sCOL}",
        f"s_mov_b32 s{S_D}, s16", f"s_mov_b32 s{S_D+1}, s17", f"s_mov_b32 s{S_D+2}, {1792*896}",
        f"buffer_load_dword v{vSTR}, v{T+4}, {RD_}, s{sT1} offen",
        f"v_mul_u32_u24 v{T+5}, 896, v{T+5}", f"s_bfe_u32 s{sT1}, s2, 0x20003", f"s_lshl_b32 s{sT1}, s{sT1}, 3", f"s_add_u32 s{sT1}, s{sT1}, s{sW}",
        f"s_mul_i32 s{sT1}, s{sT1}, {14*896}", f"s_add_u32 s{sT1}, s{sT1}, s{sCOL}",
        f"s_mov_b32 s{S_D}, s8", f"s_mov_b32 s{S_D+1}, s9", f"s_mov_b32 s{S_D+2}, {448*896}",
        f"buffer_load_dword v{vPD+1}, v{T+5}, {RD_}, s{sT1} offen"]

    def phase1(ty):
        if ty == 0: blocks = [('Q', 0)] * 7 + [('G', 1), ('U', 1)] * 7 + [('G', 2), ('U', 2)] * 7
        else: blocks = [('Q', 0)] * 7 + [('Q', 1)] * 7 + [('G', 2), ('U', 2)] * 7 + [('H', 1)] * 7
        STAGES = STAGES_T[ty]
        slot_of = lambda b: SLOT[ty][b]
        vidx = []; cnt = {}
        for kb in blocks:
            vidx.append(cnt.get(kb, 0)); cnt[kb] = vidx[-1] + 1
        M = []
        b = 0
        while b < 35:
            kind, arg = blocks[b]
            off = slot_of(b) * 8192
            for s_ in range(4):
                ks = 4 * vidx[b] + s_
                im = (off & 0xffff) + s_ * 2048
                if kind == 'Q': M.append((b, b, vLQ[off >> 16], im, ACC1 + 16 * arg, ks))
                elif kind == 'H': M.append((b, b, vLH[off >> 16], im, ACC1 + 32, ks))
                else:
                    acc = ACC1 + 16 if arg == 1 else ACC2
                    for t in range(2): M.append((b, b + 1, vLF[t][off >> 16], im, acc + 16 * t, ks))
            b += 2 if kind == 'G' else 1
        assert len(M) == 140
        first_m, last_m = {}, {}
        for m, e in enumerate(M):
            for bb in (e[0], e[1]):
                first_m.setdefault(bb, m); last_m[bb] = m
        stage_first = {first_m[sb]: i for i, sb in enumerate(STAGES[:-1])}
        owner = {sl: ('X', sl // 2) for sl in range(14)}
        for bb in range(6): owner[slot_of(bb)] = ('W', bb)
        xfree = set(); nxt = [6]
        dmaq, fillq = [], []
        done = [-1]
        def release(m_done): done[0] = m_done
        def pace(m):
            while nxt[0] < 35:
                bb = nxt[0]
                o = owner[slot_of(bb)]
                if not ((o[1] in xfree) if o[0] == 'X' else last_m[o[1]] <= done[0]): break
                if first_m[bb] - m > LA: break
                owner[slot_of(bb)] = ('W', bb)
                kind, arg = blocks[bb]
                if kind == 'H': assert m > 58 and FH[-1] not in fillq
                if ty == 1 and bb == 7: dmaq.extend(srd_adv(S_C0, 896))
                if bb == (21, 28)[ty]: dmaq.extend(srd_adv(S_G, f"s{sDC}") + srd_adv(S_U, f"s{sDC}"))
                dmaq.extend(dma_block(bb, slot_of(bb), kind, vidx[bb]))
                nxt[0] += 1
        def rd(r):
            e = M[r]; d = AF + 4 * (r % NB)
            return [f"ds_read_b64_tr_b16 v[{d+2*jh}:{d+2*jh+1}], v{e[2]} offset:{e[3] + jh*512}" for jh in range(2)]
        side = {}
        def at(m, items): side.setdefault(m, []).extend(items)
        urg = {}
        def atu(m, items): urg.setdefault(m, []).extend(items)
        at(4, [f"ds_write_b32 v{vSTW}, v{vVAR[0]}", f"ds_write_b32 v{vSTW}, v{vVAR[1]} offset:32"])
        at(12, [nonce_load, f"ds_read_b32 v{vIF2}, v{vSTR}"])
        at(5, F2)
        at(20, [f"v_rsq_f32 v{vF}, v{vIF2}", f"v_mul_f32 v{vC1P}, {f32(GC1)}, v{vF}", f"v_mul_f32 v{vC2P}, v{vF}, v{vF}",
                f"v_mul_f32 v{vC2P}, v{vC2P}, v{vF}", f"v_mul_f32 v{vC2P}, {f32(GC2)}, v{vC2P}"])
        at(29, qkv_epi(ACC1, ty, 'QS'))
        atu(48, [lambda: nonce_check(f"L_non{ty}")])
        atu(P('QF1', 52), [flag_store(sQF, 'QS')])
        burst = {}
        if ty == 0:
            at(85, gelu(ACC1 + 16, sH1, 0, 'HS1') + gelu(ACC1 + 32, sH1, 1024, 'HS1'))
            atu(P('HF1', 130), [flag_store(sHF1, 'HS1', two=True)])
        else:
            at(57, qkv_epi(ACC1 + 16, 2, 'QS2'))
            atu(P('QF2', 80), [flag_store(sQF, 'QS2', off=512)])
            at(113, gelu(ACC2, sH1, 0, 'HS2'))
        at(30, F3)
        at(58, FH if ty else [])
        xq = list(range(8, 28))
        I(xread(0)); emit(rd(0))
        for k in range(1, D): I(xread(k)); emit(rd(k))
        for k in range(D, 8): I(xread(k))
        bars = sorted([(x if x in burst else x - D) for x in stage_first if x > 0])
        bar_m = 0
        rd_next = D
        for m in range(140):
            def stage_sync(r, staggered):
                i = stage_first[r]; hi = STAGES[i + 1]
                assert nxt[0] >= hi and not any(f"('W', {bb})" in str(x) for x in dmaq for bb in range(hi)), (ty, m, hi, nxt[0])
                if len(xfree) < 7:
                    k = (28 - len(xq)) // 4
                    p.waitreg(f"v[{XN+16*k-4}:{XN+16*k-1}]")
                    xfree.update(range(k))
                need = lambda tag, env, hi=hi: tag[0] == 'W' and tag[1] < hi
                if staggered: return need
                p.waitvm(need)
                I("s_barrier")
            if m == 3:
                p.waitreg(f"v[{XN+28}:{XN+31}]")
                I("s_barrier")
                xfree.update((0, 1)); release(-1)
            if m in burst:
                bl = burst[m]
                need = stage_sync(m, True)
                cbar(True, need)
                I(f"s_setprio {P('BPRIO', 0)}")
                emit(bl[:-P('BTAIL', 21)])
                cbar(False, need)
                while rd_next < m + D: emit(rd(rd_next)); rd_next += 1
                emit(bl[-P('BTAIL', 21):])
                release(m - 1); bar_m = m
            elif (m + D) in stage_first and (m + D) not in burst:
                stage_sync(m + D, False)
                release(m - 1); bar_m = m
            nb_ = min([x for x in bars if x > m] + [140])
            lv = lambda mm: (4 * (mm - bar_m)) // (nb_ - bar_m)
            if m == bar_m or lv(m) != lv(m - 1): I(f"s_setprio {3 - lv(m)}")
            if m == PM:
                ST('pa0'); poll_check(f"L_pa{ty}", vPK); ST('pa1')
                a_, b_, c_ = kv_group(-3); dmaq += a_ + b_ + c_
                dmaq += qloads()
            lim = min([x for x in burst if x > m] + [140])
            if rd_next <= m + D and rd_next < lim: emit(rd(rd_next)); rd_next += 1
            budget = 2 if (m & 1) == 0 else 3
            if len(fillq) + len(dmaq) > 12: budget += P('XB', 4)
            if m >= 3:
                for _ in range(3):
                    if xq:
                        k = xq.pop(0)
                        if k == 16: emit([f"v_add_u32 v{fa+j}, 65536, v{fa+j}" for j in range(4)])
                        I(xread(k))
            e = M[m]; a_ = AF + 4 * (m % NB); c = e[4]; ks = e[5]
            if (m & 1) == 0 and m + 1 < rd_next and m >= 28:
                a2 = AF + 4 * ((m + 1) % NB)
                p.waitreg(f"v[{a2}:{a2+3}]")
            cin = '0' if ks == 0 else f"v[{c}:{c+15}]"
            I(f"v_mfma_f32_32x32x16_bf16 v[{c}:{c+15}], v[{a_}:{a_+3}], v[{XN+4*ks}:{XN+4*ks+3}], {cin}")
            fillq += side.get(m, [])
            for it in urg.get(m, []):
                assert not any('buffer_store' in str(x) for x in fillq), ("stores still queued", ty, m)
                emit([it]); budget -= 2
            pace(m)
            if m == P('KV2', 130):
                for st in (-2, -1):
                    a_, b_, c_ = kv_group(st); dmaq += a_ + b_ + c_
            if m == PM - 12:
                assert F3[-1] not in fillq
                dmaq.append(poll_load(vPK))
            nv = False
            while budget > 0:
                it = None
                for q in (dmaq, fillq):
                    if q and not (nv and 'buffer_' in str(q[0])):
                        it = q.pop(0); break
                if it is None: break
                nv = nv or 'buffer_' in str(it)
                emit([it]); budget -= len(it) if isinstance(it, Atom) else 1
            if m == 83: ST('p1')
            ST(f'm{m}')
        assert nxt[0] == 35
        emit(fillq); emit(dmaq)
        ST('p2')
        if ty == 0: ge = gelu(ACC2, sH2, 0, 'HS2') + gelu(ACC2 + 16, sH2, 1024, 'HS2')
        else: ge = gelu(ACC2 + 16, sH1, 1024, 'HS2') + gelu(ACC1 + 32, sH2, 0, 'HS2')
        kv = []
        for st in (-2, -1):
            if P('KV2', 130) > 139:
                a_, b_, c_ = kv_group(st); kv += a_ + b_ + c_
        k0 = P('KV0', 60)
        emit(interleave([[x] for x in ge[:k0]], kv) + interleave([[x] for x in ge[k0:]], sc))

    p.waitvm(lambda tag, env: tag[0] == 'W' and tag[1] < 3)
    I("s_waitcnt lgkmcnt(0)\ns_barrier")
    ST('barA')
    I(f"s_cmp_lg_u32 s{sTY}, 0\ns_cbranch_scc1 L_p1C")
    altA, altC = p.cond("type", 2)
    with altA:
        phase1(0)
        I("s_branch L_fin")
    with altC:
        p.label("L_p1C")
        phase1(1)
    p.label("L_fin")
    vK, vV0, vV1, vT0, vT1, vT2, vT3, vM, vWO, vGA, vGA1, vXO, vL16B = 14, 2, 3, 4, 5, 6, 7, 8, 9, 10, 11, 12, 13
    XRS = T + 4
    GA3 = 224

    def smfma(half):
        cin = '0' if half == 0 else f"v[{SB}:{SB+15}]"
        return f"v_mfma_f32_32x32x16_bf16 v[{SB}:{SB+15}], v[{KF+4*half}:{KF+4*half+3}], v[{Q+4*half}:{Q+4*half+3}], {cin}"

    ST('gelu')
    I(smfma(0)); I(smfma(1))
    I(f"v_lshrrev_b32 v{vT0}, 3, v{vLANE}\nv_and_b32 v{vT1}, 7, v{vLANE}")
    I(f"v_lshlrev_b32 v{vT2}, 1, v{vT0}\nv_and_b32 v{vT2}, 4, v{vT2}\nv_xor_b32 v{vT2}, v{vT2}, v{vT1}")
    I(f"v_mul_u32_u24 v{vWO}, 896, v{vT0}\nv_lshl_add_u32 v{vWO}, v{vT2}, 4, v{vWO}")
    vWO2 = T
    I(f"v_add_u32 v{vWO2}, {8*896 - 1024}, v{vWO}")
    I(f"v_add_u32 v{vL16B}, {144*1024}, v{vL16}")
    I(f"v_and_b32 v{vT0}, 3, v{vLANE}\nv_lshlrev_b32 v{vGA}, 3, v{vT0}")
    I(f"v_bfe_u32 v{vT0}, v{vLANE}, 4, 1\nv_lshl_add_u32 v{vGA}, v{vT0}, 5, v{vGA}")
    I(f"v_bfe_u32 v{vT1}, v{vLANE}, 3, 1\nv_lshl_add_u32 v{vGA}, v{vT1}, 6, v{vGA}")
    I(f"v_bfe_u32 v{vT3}, v{vLANE}, 2, 2\nv_lshl_add_u32 v{vGA}, v{vT3}, 7, v{vGA}")
    I(f"v_lshrrev_b32 v{vT2}, 5, v{vLANE}\nv_lshl_add_u32 v{vGA}, v{vT2}, 9, v{vGA}")
    I(f"v_add_u32 v{vGA}, s{sWM0}, v{vGA}\nv_xor_b32 v{vGA1}, 64, v{vGA}")
    I(f"v_add_u32 v{vK}, s{sKB}, v{vL16}")
    I(f"v_and_b32 v{vT1}, 1, v{vLANE}\nv_xor_b32 v{vT2}, v{vT2}, v{vT1}")
    I(f"v_mul_u32_u24 v{vV0}, {1024+128}, v{vT0}")
    I(f"v_lshl_add_u32 v{vV0}, v{vT1}, 9, v{vV0}\nv_lshl_add_u32 v{vV0}, v{vT2}, 6, v{vV0}\nv_lshl_add_u32 v{vV0}, v{vT3}, 4, v{vV0}")
    I(f"v_bfe_u32 v{vT1}, v{vLANE}, 1, 1\nv_lshl_add_u32 v{vV0}, v{vT1}, 3, v{vV0}")
    I(f"v_add_u32 v{vV0}, s{sKB}, v{vV0}\nv_add_u32 v{vV0}, 2048, v{vV0}\nv_xor_b32 v{vV1}, 128, v{vV0}")

    def set_pads():
        I(f"v_sub_f32 v{vT0}, 0, v{vM}")
        I(f"v_and_b32 v{vT1}, 0xffff0000, v{vT0}\nv_sub_f32 v{vT0}, v{vT0}, v{vT1}")
        I(f"v_and_b32 v{vT2}, 0xffff0000, v{vT0}\nv_sub_f32 v{vT0}, v{vT0}, v{vT2}")
        I(f"v_lshrrev_b32 v{vT1}, 16, v{vT1}\nv_or_b32 v{vT1}, v{vT1}, v{vT2}\nv_lshrrev_b32 v{vT0}, 16, v{vT0}")
        I(f"v_and_b32 v{vT1}, v{vT1}, v{vHI}\nv_and_b32 v{vT0}, v{vT0}, v{vHI}")
        I(f"v_and_or_b32 v{Q+6}, v{Q+6}, v{vKEEP}, v{vT1}\nv_and_or_b32 v{Q+7}, v{Q+7}, v{vKEEP}, v{vT0}")

    def max16(c, first):
        o = []
        if first:
            o += [f"v_max3_f32 v{vM}, v{c}, v{c+1}, v{c+2}", f"v_max_f32 v{vM}, v{vM}, v{c+15}"]
            ks = range(3, 15, 2)
        else:
            ks = range(0, 16, 2)
        return o + [f"v_max3_f32 v{vM}, v{vM}, v{c+k}, v{c+k+1}" for k in ks]

    def cross_max():
        I(f"v_mov_b32 v{vT0}, v{vM}\nv_permlane32_swap_b32 v{vT0}, v{vM}\nv_max_f32 v{vM}, v{vM}, v{vT0}")

    emit(max16(SB, True)); cross_max(); set_pads()

    def gw_issue(n):
        slot, tag = n & 3, ('GW', n)
        lo_, hi_ = (0, 4) if n < 4 else (4, 14)
        m0 = f"s_add_u32 m0, s{sWM0}, {slot*2048}"
        d = [Atom((m0, (f"buffer_load_dwordx4 v{vWO}, {RW}, s{sGW} offen lds", tag))),
             Atom((m0, (f"buffer_load_dwordx4 v{vWO2}, {RW}, s{sGW} offen offset:1024 lds", tag)))]
        post = []
        if n == 3:
            post = [f"s_lshl_b32 s{sGW}, s{sR8}, 3", f"s_add_u32 s{sGW}, s{sGW}, s{sW}", f"s_mul_i32 s{sGW}, s{sGW}, {16*896}", f"s_add_u32 s{sGW}, s{sGW}, s{sCOL}"]
        elif n < 13:
            post = [f"s_add_u32 s{sGW}, s{sGW}, {128*896}", f"s_sub_u32 s{sT2}, s{sGW}, {(hi_-lo_)*128*896}",
                    Atom((f"s_cmp_ge_u32 s{sGW}, {hi_*128*896}", f"s_cselect_b32 s{sGW}, s{sT2}, s{sGW}"))]
        return d + post

    def gb_issue(n):
        b = GB + 8 * (n & 3)
        lo_, hi_ = (0, 4) if n < 4 else (4, 14)
        d = [f"buffer_load_dwordx4 v[{b}:{b+3}], v{vL16}, {R}, s{sGN} offen sc1", f"buffer_load_dwordx4 v[{b+4}:{b+7}], v{vL16B}, {R}, s{sGN} offen sc1"]
        post = []
        if n == 3: post = [f"s_lshl_b32 s{sGN}, s{sR8}, 13", f"s_add_u32 s{sGN}, s{sGN}, s{sAB}"]
        elif n < 13:
            post = [f"s_add_u32 s{sGN}, s{sGN}, 8192", f"s_sub_u32 s{sT1}, s{sGN}, s{sAB}", f"s_sub_u32 s{sRG[6]}, s{sGN}, {(hi_-lo_)*8192}",
                    Atom((f"s_cmp_eq_u32 s{sT1}, {hi_*8192}", f"s_cselect_b32 s{sGN}, s{sRG[6]}, s{sGN}"))]
        return d + post

    sWB, sWS, sOFS = sRG[1], sRG[2], sRG[3]
    def wo_setup():
        return L([f"s_lshl_b32 s{sWB}, s{sQT}, 14", f"s_cmp_eq_u32 s{sQT}, 1", f"s_cselect_b32 s{sWB}, {80*1024}, s{sWB}",
                  f"s_add_u32 s{sOFS}, s{sQT}, 1", f"s_and_b32 s{sOFS}, s{sOFS}, 2",
                  f"s_mul_i32 s{sWS}, s{sQT}, {112*896}", f"s_add_u32 s{sWS}, s{sWS}, s{sCOL}",
                  f"s_mov_b32 s{S_D}, s8", f"s_mov_b32 s{S_D+1}, s9", f"s_mov_b32 s{S_D+2}, {448*896}"])
    def wo_slot(e_expr, halves=(0, 1)):
        o = e_expr + [f"s_add_u32 s{sE0}, s{sE0}, s{sOFS}", f"s_and_b32 s{sE0}, s{sE0}, 7",
                      f"s_lshr_b32 s{sRG[4]}, s{sE0}, 1", f"s_mul_i32 s{sRG[4]}, s{sRG[4]}, {28*896 - 2*16*896}",
                      f"s_mul_i32 s{sRG[5]}, s{sE0}, {16*896}", f"s_add_u32 s{sRG[4]}, s{sRG[4]}, s{sRG[5]}", f"s_add_u32 s{sRG[4]}, s{sRG[4]}, s{sWS}",
                      f"s_lshl_b32 s{sRG[5]}, s{sE0}, 11", f"s_add_u32 s{sRG[5]}, s{sRG[5]}, s{sWB}"]
        for h in halves:
            o.append(Atom((f"s_mov_b32 m0, s{sRG[5]}",
                           (f"buffer_load_dwordx4 v{(vWO, vWO2)[h]}, {RD_}, s{sRG[4]} offen offset:{1024*h} lds", 'WO'))))
        return o

    def g_reads(off, ga, a0_=None, a1_=None):
        return [f"ds_read_b64_tr_b16 v[{ga+4*ct+2*jh}:{ga+4*ct+2*jh+1}], v{(a0_ or vGA, a1_ or vGA1)[ct]} offset:{off + jh*1024}"
                for ct in range(2) for jh in range(2)]

    def g_mfma(ga, gb, ct, tt, first=False):
        c = G + 16 * (2 * ct + tt)
        cin = '0' if first else f"v[{c}:{c+15}]"
        return f"v_mfma_f32_32x32x16_bf16 v[{c}:{c+15}], v[{ga+4*ct}:{ga+4*ct+3}], v[{gb+4*tt}:{gb+4*tt+3}], {cin}"

    def kread(t): return [f"ds_read_b128 v[{KF+4*h}:{KF+4*h+3}], v{vK} offset:{(t % 12)*4096 + h*1024}" for h in range(2)]
    def vread(t, u):
        return [f"ds_read_b64_tr_b16 v[{VF+4*u+2*jh}:{VF+4*u+2*jh+1}], v{(vV0, vV1)[jh]} offset:{((t + 1) % 12)*4096 + u*256}" for jh in range(2)]
    def pv(t, first=False):
        cin = '0' if first else f"v[{O}:{O+15}]"
        return f"v_mfma_f32_32x32x16_bf16 v[{O}:{O+15}], v[{VF+4*t}:{VF+4*t+3}], v[{PF+4*t}:{PF+4*t+3}], {cin}"

    def vphase():
        emit([f"v_exp_f32 v{SB+k}, v{SB+k}" for k in range(16)])
        emit([f"v_cvt_pk_bf16_f32 v{PF+k}, v{SB+2*k}, v{SB+2*k+1}" for k in range(8)])

    T0 = P('T0', 6)
    NIN = P('NIN', 11)

    assert NIN >= 11
    gabuf = lambda n: GA3 if (n == 13 and NIN == 11) else GA + 8 * (n & 1)
    def grd(n):
        p.waitvm(lambda tag, env: tag[0] == 'GW' and tag[1] <= n)
        emit(g_reads((n & 3) * 2048, gabuf(n)))

    def late_flags():
        return [Atom((f"s_cmp_eq_u32 s{sTY}, 0", f"s_cselect_b32 s{sHF1}, s{sHF2}, s{sHF1}")),
                flag_store(sHF1, 'HS2', two=True), flag_store(sHF2, 'HS2')]

    def attention(gemm):
        S = {k: [] for k in ('kv', 'gw', 'gb', 'misc', 'wo')}
        def add(stream, e, d, key, items):
            for it in items: S[stream].append((e, d, key, it))
        vpre = [[] for _ in range(34)]
        rdone = [-1]
        for st in range(0, 6):
            a_, b_, c_ = kv_group(st)
            add('kv', 4 * st + 2, 4 * st + 8, 'x', a_); add('kv', 4 * st + 3, 4 * st + 8, ('KV', st), b_ + c_)
        if gemm:
            PB, LF, PC = P('PB', 3), P('LF', 4), P('PC', 10)
            for n in range(14):
                use = T0 + 2 * n
                ew = (0, 1, 2, 2)[n] if n < 4 else T0 + 2 * n - 7
                eb = PB + (1, 2, 3, 4)[n] if n < 4 else max(T0 + 2 * n - 6, PC + 1)
                add('gw', ew, min(use - 1, 28), ('GW', n), gw_issue(n))
                add('gb', eb, use if n < NIN else 40, ('GB', n), gb_issue(n))
            w0 = wo_slot([f"s_mul_i32 s{sE0}, s{sKH}, 3"])
            add('wo', 1, 50, 'x', wo_setup() + w0[:-2] + L([f"s_bitcmp1_b32 s{sE0}, 0", f"s_cselect_b32 s{sE0}, {12*896}, s{sFLAG}",
                                                          f"s_cselect_b32 s{sE0}, s{sE0}, {16*896}"]))
            add('wo', 27, 29, 'WO', w0[-2:] + [f"s_add_u32 s{sRG[4]}, s{sRG[4]}, s{sE0}", f"s_add_u32 s{sRG[5]}, s{sRG[5]}, 2048"] + w0[-2:] +
                [f"s_sub_u32 s{sRG[4]}, s{sRG[4]}, s{sE0}", f"s_add_u32 s{sRG[4]}, s{sRG[4]}, {28*896}", f"s_add_u32 s{sRG[5]}, s{sRG[5]}, 2048"] + w0[-2:])
            ms = sorted([(PB - 2, [poll_load(vPH)], 'P1'), (LF, late_flags(), 'LF'), (PC - 2, [poll_load(vPH)], 'P2')], key=lambda x: x[0])
            for e, items, key in ms: add('misc', e, e, key, items)
            assert PC - 2 > PB
            vpre[PB] += [lambda: chk('P1'), lambda: ST('pb0'), lambda: poll_check("L_pb", vPH, 0xff), lambda: ST('pb1')]
            vpre[PC] += [lambda: chk('P2'), lambda: ST('pc0'), lambda: poll_check("L_pc", vPH), lambda: ST('pc1')]
        isvm = lambda it: 'buffer_' in str(it)
        def chk(key):
            assert not any(x[2] == key and isvm(x[3]) for q in S.values() for x in q), ("not issued in time", key)
        p.waitvm(need0)
        I("s_waitcnt lgkmcnt(0)\ns_barrier")
        emit(kread(0))
        if gemm: ST('astart')
        for t in range(32):
            st, i = t >> 2, t & 3
            n = (t - T0) >> 1
            g_on = gemm and t >= T0 and n < NIN
            def gap(budget, vm_ok):
                while budget > 0:
                    cand = [q for q in S.values() if q and q[0][0] <= t and (vm_ok or not isvm(q[0][3]))]
                    if not cand: break
                    q = min(cand, key=lambda q: (not isvm(q[0][3]), q[0][1]))
                    it = q.pop(0)[3]
                    if isvm(it): vm_ok = False
                    emit([it]); budget -= len(it) if isinstance(it, Atom) else 1
            busy = len([x for q in S.values() for x in q if x[0] <= t and isvm(x[3])]) > 2
            needkv = lambda tag, env, st=st: tag[0] == 'KV' and tag[1] <= st - 2
            if i == 2:
                chk(('KV', st - 2)); cbar(True, needkv)
            I(f"s_setprio {3 - ((i - 2) & 3)}")
            I(smfma(0)); gap(5, True)
            I(smfma(1))
            if t < 31: emit(kread(t + 1))
            gap(3, not g_on)
            if t > 0: I(pv(0, t == 1))
            emit(vread(t, 0)); gap(3, busy or not g_on)
            if t > 0: I(pv(1))
            emit(vread(t, 1))
            if not g_on: gap(8, False)
            if g_on:
                gap(3, False)
                chk(('GB', n))
                ga, gb = GA + 8 * (n & 1), GB + 8 * (n & 3)
                I(g_mfma(ga, gb, t & 1, 0, n == 0))
                gap(5, True)
                I(g_mfma(ga, gb, t & 1, 1, n == 0))
            if gemm and t >= T0 - 1 and ((t - T0) & 1) == 1 and n + 1 < 14:
                chk(('GW', n + 1)); grd(n + 1); rdone[0] = n + 1
            if i == 2: cbar(False, needkv)
            emit(vpre[t])
            vphase()
            if gemm: ST(f"t{t}")
        I(pv(0)); I(pv(1))
        for q in S.values(): emit([x[3] for x in q])
        if gemm:
            for n in range(rdone[0] + 1, 14): grd(n)

    I(f"s_cmp_eq_u32 s{sGEMM}, 0\ns_cbranch_scc1 L_plain0")
    ag, an = p.cond("gemm", 2)
    with ag:
        attention(True)
        I("s_branch L_attn_done")
    with an:
        p.label("L_plain0")
        emit(late_flags())
        p.label("L_plain")
        attention(False)
    p.label("L_attn_done")
    I("s_setprio 0")
    ST('aend')
    FLAGS = 65536
    I(f"s_lshl_b32 s{sT0}, s{sW}, 2\ns_add_u32 s{sT0}, s{sT0}, {FLAGS}\nv_mov_b32 v{vT2}, s{sT0}")
    I(f"s_lshl_b32 s{sT0}, s{sQT}, 13\ns_add_u32 s{sT0}, s{sT0}, {WLDS}\nv_add_u32 v{vT3}, s{sT0}, v{vL16}")
    I(f"v_and_b32 v{vT1}, 7, v{vLANE}\nv_lshlrev_b32 v{vM}, 2, v{vT1}\nv_add_u32 v{vM}, {FLAGS}, v{vM}")
    I(f"v_and_b32 v{vT0}, v{O+12}, v{vHI}")
    I(f"v_mov_b32 v{vT1}, {f32(2.0**P('THR', 30))}")
    I(f"v_cmp_ngt_f32 s[{sN0}:{sN1}], v{vT1}, v{vT0}")
    I(f"s_cmp_lg_u64 s[{sN0}:{sN1}], 0\ns_cselect_b32 s{sT0}, 1, 0\nv_mov_b32 v{vT1}, s{sT0}")
    I(f"ds_write_b32 v{vT2}, v{vT1}")
    I("s_cbranch_vccnz L_nowr")
    a0_, a1_ = p.cond("kh", 2)
    with a0_:
        I("s_waitcnt lgkmcnt(0)")
        for k in range(4): I(f"ds_write_b128 v{vT3}, v[{O+4*k}:{O+4*k+3}] offset:{k*1024}")
    p.label("L_nowr")
    p.waitvm(lambda tag, env: tag == 'WO')
    I("s_waitcnt lgkmcnt(0)\ns_barrier")
    I(f"ds_read_b32 v{vT2}, v{vM}")
    for k in range(4): I(f"ds_read_b128 v[{TMP+4*k}:{TMP+4*k+3}], v{vT3} offset:{k*1024}")
    I(f"v_cmp_ne_u32 s[{sN0}:{sN1}], 0, v{vT2}")
    I(f"s_cmp_lg_u64 s[{sN0}:{sN1}], 0\ns_cselect_b32 s{sT0}, 1, 0\ns_andn2_b32 s{sT0}, s{sT0}, s{sFLAG}")
    I(f"s_cmp_lg_u32 s{sT0}, 0\ns_cbranch_scc1 L_fallback")

    def rest_down():
        for n in range(NIN, 14):
            for tt in range(2):
                for ct in range(2): I(g_mfma(gabuf(n), GB + 8 * (n & 3), ct, tt))
    def resid():
        I(f"s_bfe_u32 s{sT0}, s{sW}, 0x10001\ns_lshl_b32 s{sT1}, s{sRB3}, 1\ns_add_u32 s{sT0}, s{sT0}, s{sT1}\ns_mul_i32 s{sT0}, s{sT0}, {32*896}")
        I(f"s_lshl_b32 s{sT1}, s{sKH}, 6\ns_add_u32 s{sT0}, s{sT0}, s{sT1}\ns_and_b32 s{sT1}, s{sW}, 1\ns_lshl_b32 s{sT1}, s{sT1}, 5")
        I(f"s_add_u32 s{sT0}, s{sT0}, s{sT1}\ns_add_u32 s{sT0}, s{sT0}, s{sCOL}")
        I(f"v_and_b32 v{vT0}, 31, v{vLANE}\nv_mul_u32_u24 v{vXO}, 896, v{vT0}\nv_lshrrev_b32 v{vT1}, 5, v{vLANE}")
        I(f"v_lshl_add_u32 v{vXO}, v{vT1}, 4, v{vXO}\nv_add_u32 v{vXO}, s{sT0}, v{vXO}")
        I(f"buffer_load_dwordx4 v[{XRS}:{XRS+3}], v{vXO}, s[{S_X}:{S_X+3}], 0 offen")
        I(f"v_lshlrev_b32 v{vT0}, 4, v{vT0}\nv_lshl_add_u32 v{vT0}, v{vT1}, 10, v{vT0}")
        I(f"s_lshl_b32 s{sT0}, s{sW}, 11\nv_add_u32 v{vV0}, s{sT0}, v{vT0}")
        I(f"s_lshl_b32 s{sT0}, s{sQT}, 11\ns_lshl_b32 s{sT1}, s{sKH}, 15\ns_add_u32 s{sT0}, s{sT0}, s{sT1}\ns_add_u32 s{sT0}, s{sT0}, {WLDS}\nv_add_u32 v{vV1}, s{sT0}, v{vT0}")

    I("s_cbranch_vccnz L_lag")
    a0_, a1_ = p.cond("kh", 2)
    with a1_:
        p.label("L_lag")
        for k in range(16): I(f"v_add_f32 v{O+k}, v{O+k}, v{TMP+k}")
        I(f"v_mov_b32 v{vT0}, v{O+12}\nv_mov_b32 v{vT1}, v{O+12}\nv_permlane32_swap_b32 v{vT0}, v{vT1}")
        I(f"v_rcp_f32 v{vT1}, v{vT1}")
        for h in range(2):
            for k in range(8 * h, 8 * h + 8): I(f"v_mul_f32 v{O+k}, v{O+k}, v{vT1}")
            for k in range(4 * h, 4 * h + 4): I(f"v_cvt_pk_bf16_f32 v{TMP+k}, v{O+2*k}, v{O+2*k+1}")
            if h:
                for k in (6, 7): I(f"v_and_b32 v{TMP+k}, v{TMP+k}, v{vKEEP}")
            I(f"buffer_store_dwordx4 v[{TMP+4*h}:{TMP+4*h+3}], v{vL16}, {R}, s{sOS} offen offset:{1024*h} sc1", tag='OS')
        emit([flag_store(sOF, 'OS')])
        ST('opub')
        I(f"s_cmp_eq_u32 s{sGEMM}, 0\ns_cbranch_scc1 L_end")
        rest_down()
        resid()
        for k in range(16): I(f"ds_write_b128 v{vT3}, v[{G+4*k}:{G+4*k+3}] offset:{(k >> 3) * 32768 + (k & 7) * 1024}")
    with a0_:
        I(f"s_cmp_eq_u32 s{sGEMM}, 0\ns_cbranch_scc1 L_end")
        I(f"s_lshl_b32 s{sT0}, s{sRB3}, 3\ns_add_u32 s{sT0}, s{sT0}, s{sQT}\ns_lshl_b32 s{sT0}, s{sT0}, 5\ns_add_u32 s{sT0}, s{sT0}, {F_O}")
        I(f"v_and_b32 v{vT0}, 1, v{vLANE}\nv_bfe_u32 v{vT1}, v{vLANE}, 1, 2\nv_lshl_add_u32 v{vT0}, v{vT0}, 4, v{vT1}\nv_lshl_add_u32 v{vPH}, v{vT0}, 3, s{sT0}")
        I(f"s_cmp_eq_u32 s{sFLAG}, 0\ns_cbranch_scc1 L_wo_ok")
        f0_, f1_ = p.cond("fb", 2)
        with f1_:
            for e in range(6): emit(wo_slot([f"s_mov_b32 s{sE0}, {e}"]))
        p.label("L_wo_ok")
        for e in (6, 7): emit(wo_slot([f"s_mov_b32 s{sE0}, {e}"]))
        I(poll_load(vPH))
        resid()
        rest_down()
        I(f"s_sub_u32 s{sT0}, s{sWB}, s{sWM0}\nv_add_u32 v{vT2}, s{sT0}, v{vGA}\nv_add_u32 v{vT3}, s{sT0}, v{vGA1}")
        AW, BW = 80, 144
        p.waitvm(lambda tag, env: tag == 'WO')
        for j in range(8): emit(g_reads(j * 2048, AW + 8 * j, vT2, vT3))
        I(f"s_mul_i32 s{sT1}, s{sQT}, {7*1024}\ns_add_u32 s{sT1}, s{sT1}, s{sAB}\ns_add_u32 s{sT1}, s{sT1}, {112*1024}\ns_add_u32 s{sT2}, s{sT1}, 4096")
        I(f"s_lshl_b32 s{sT0}, s{sW}, 14\nv_add_u32 v{vT0}, s{sT0}, v{vL16}")
        poll_check("L_pd", vPH)
        ST('opoll')
        for j in range(8):
            b = BW + 8 * j
            I(f"buffer_load_dwordx4 v[{b}:{b+3}], v{vL16}, {R}, s{(sT1, sT2)[j >> 2]} offen offset:{(j & 3) * 1024} sc1")
            I(f"buffer_load_dwordx4 v[{b+4}:{b+7}], v{vL16B}, {R}, s{(sT1, sT2)[j >> 2]} offen offset:{(j & 3) * 1024} sc1")
        for j in range(6):
            for tt in range(2):
                for ct in range(2): I(g_mfma(AW + 8 * j, BW + 8 * j, ct, tt))
        wr = lambda tl_: [f"ds_write_b128 v{vT0}, v[{G+16*tl_+4*k}:{G+16*tl_+4*k+3}] offset:{(4*tl_+k)*1024}" for k in range(4)]
        order = [(0, 0), (1, 0), (0, 1), (1, 1)]
        for idx, (ct, tt) in enumerate(order):
            for j in (6, 7): I(g_mfma(AW + 8 * j, BW + 8 * j, ct, tt))
            if idx: emit(wr(2 * order[idx - 1][0] + order[idx - 1][1]))
        ST('womfma')
        emit(wr(3))
        I("s_branch L_final")
    p.label("L_final")
    ACC = 208
    for k in range(4):
        I(f"v_lshlrev_b32 v{ACC+2*k}, 16, v{XRS+k}\nv_and_b32 v{ACC+2*k+1}, 0xffff0000, v{XRS+k}")
    I("s_waitcnt lgkmcnt(0)\ns_barrier")
    ST('redw')
    RDB = 80
    for sw in range(8):
        for h in range(2):
            d = RDB + sw * 8 + h * 4
            if sw < 4: I(f"ds_read_b128 v[{d}:{d+3}], v{vV0} offset:{sw * 16384 + h * 512}")
            else: I(f"ds_read_b128 v[{d}:{d+3}], v{vV1} offset:{(sw - 4) * 8192 + h * 512}")
    for sw in range(8):
        for k in range(8): I(f"v_add_f32 v{ACC+k}, v{ACC+k}, v{RDB+sw*8+k}")
    for k in range(4): I(f"v_cvt_pk_bf16_f32 v{XRS+k}, v{ACC+2*k}, v{ACC+2*k+1}")
    I(f"buffer_store_dwordx4 v[{XRS}:{XRS+3}], v{vXO}, s[{S_O}:{S_O+3}], 0 offen")
    if prof is not None: I("s_waitcnt vmcnt(0)")
    p.stamp(8)
    if prof is not None: I(f"s_mov_b32 s{sT0}, s{sW}")
    if 'dbgst' in EXP:
        I(f"s_waitcnt vmcnt(0) lgkmcnt(0)\ns_mov_b32 s{S_D}, s{sDP}\ns_mov_b32 s{S_D+1}, s{sDP+1}\ns_mov_b32 s{S_D+2}, 256")
        I(f"s_cmp_eq_u32 s2, 8\ns_cselect_b32 s{sT1}, 8, 4096\ns_cmp_eq_u32 s2, 135\ns_cselect_b32 s{sT1}, 36, s{sT1}\ns_cmp_eq_u32 s{sW}, 0\ns_cselect_b32 s{sT1}, s{sT1}, 4096")
        for k, j in enumerate((1, 2, 3, 4, 5, 6, 8)):
            I(f"s_sub_u32 s{sT2}, s{84+2*j}, s84\nv_mov_b32 v2, s{sT2}\nbuffer_store_dword v2, v{vZ}, {RD_}, s{sT1} offen offset:{4*k}")
    else:
        p.dump_stamps(9, sT0, S_WS)
    p.label("L_end")
    I("s_endpgm")
    p.root.append(Fence())
    p.label("L_fallback")
    I("s_waitcnt vmcnt(0) lgkmcnt(0)\ns_nop 15\ns_barrier")
    I(f"s_mov_b32 s{sFLAG}, 1")
    emit(kv_init())
    for n in (-3, -2, -1):
        a_, b_, c_ = kv_group(n); emit(a_ + b_ + c_)
    I(f"v_and_b32 v{Q+6}, v{Q+6}, v{vKEEP}\nv_and_b32 v{Q+7}, v{Q+7}, v{vKEEP}")
    I(f"v_mov_b32 v{vM}, 0xff800000")
    I(f"s_mul_i32 s{sT1}, s{sKH}, {32*6144}\ns_sub_u32 s{sT0}, s{sHB2}, s{sT1}\ns_mov_b32 s{sT1}, 64")
    p.label("L_fbloop")
    with p.loop('f', 2):
        I(f"buffer_load_dwordx4 v[{KF}:{KF+3}], v{vL16}, {R}, s{sT0} offen sc1")
        I(f"buffer_load_dwordx4 v[{KF+4}:{KF+7}], v{vL16}, {R}, s{sT0} offen offset:1024 sc1")
        I(smfma(0)); I(smfma(1))
        emit(max16(SB, False))
        I(f"s_add_u32 s{sT0}, s{sT0}, 6144\ns_sub_u32 s{sT1}, s{sT1}, 1\ns_cmp_lg_u32 s{sT1}, 0\ns_cbranch_scc1 L_fbloop")
    cross_max()
    set_pads()
    I("s_waitcnt vmcnt(0) lgkmcnt(0)\ns_nop 7")
    I("s_branch L_plain")
    for fn in outofline:
        p.root.append(Fence())
        fn()
    p.label("L_code_end")
    I("s_endpgm")
    p.finalize()
    return p


if __name__ == "__main__":
    p = gen_mk("x")
    print(p.text()); print(p.max_vgpr())
```
